```python
import torch

def _softmax(x, axis=-1):
    return torch.softmax(x, dim=axis)

def _gelu(x):
    return torch.nn.functional.gelu(x, approximate='tanh')

def _silu(x):
    return torch.nn.functional.silu(x)

def _sigmoid(x):
    return torch.sigmoid(x)

def _layernorm(x, axis=-1, eps=1e-05):
    m = x.mean(dim=axis, keepdim=True)
    v = x.var(dim=axis, keepdim=True, unbiased=False)
    return (x - m) / torch.sqrt(v + eps)

def _scatter_add(tgt, idx, src, axis=0):
    return tgt.clone().index_add_(axis, idx, src)

def _segment_sum(src, seg, n):
    out = torch.zeros((n,) + src.shape[1:], dtype=src.dtype)
    return out.index_add_(0, seg, src)

def _pad(x, pw):
    flat = tuple((v for pair in reversed(pw) for v in pair))
    return torch.nn.functional.pad(x, flat)
kernel_name = 'gated_mix__linear_kernel_hedgehog__memory_aug_recurrent_mem_tr__prompt'

def setup_inputs():

    _w = lambda a: (lambda t: t.to(torch.bfloat16) if t.is_floating_point() else t)(torch.as_tensor(a))

    def _A_setup():
        B, S, D, H = (1, 2048, 448, 16)
        Dh = D // H
        return {'x': _w((lambda *s: torch.randn(*s, dtype=torch.bfloat16) * 0.05)(B, S, D)), 'wqkv': _w((lambda *s: torch.randn(*s, dtype=torch.bfloat16) * 1.6)(D, 3 * D)), 'w_phi': _w((lambda *s: torch.randn(*s, dtype=torch.bfloat16) * 1.6)(H, Dh, Dh) * Dh ** (-0.5)), 'wo': _w((lambda *s: torch.randn(*s, dtype=torch.bfloat16) * 0.05)(D, D))}
    _A_in = _A_setup()

    def _B_setup():
        B, S, Dm = (1, 2048, 448)
        H, Dh = (16, 256)
        M, seg = (8, 32)
        seg = min(seg, S)
        S = S // seg * seg
        return {'x': _w((lambda *s: torch.randn(*s, dtype=torch.bfloat16) * 0.05)(B, S, Dm)), 'mem0': _w((lambda *s: torch.randn(*s, dtype=torch.bfloat16) * 0.8)(B, M, Dm)), 'Wq': _w((lambda *s: torch.randn(*s, dtype=torch.bfloat16) * 1.6)(Dm, H, Dh) * Dm ** (-0.5)), 'Wk': _w((lambda *s: torch.randn(*s, dtype=torch.bfloat16) * 1.6)(Dm, H, Dh) * Dm ** (-0.5)), 'Wv': _w((lambda *s: torch.randn(*s, dtype=torch.bfloat16) * 0.8)(Dm, H, Dh) * Dm ** (-0.5)), 'Wo': _w((lambda *s: torch.randn(*s, dtype=torch.bfloat16) * 0.8)(H, Dh, Dm) * (H * Dh) ** (-0.5)), 'seg_len': seg}
    _B_in = _B_setup()
    return {'A_x': _A_in['x'], 'A_wqkv': _A_in['wqkv'], 'A_w_phi': _A_in['w_phi'], 'A_wo': _A_in['wo'], 'B_x': _B_in['x'], 'B_mem0': _B_in['mem0'], 'B_Wq': _B_in['Wq'], 'B_Wk': _B_in['Wk'], 'B_Wv': _B_in['Wv'], 'B_Wo': _B_in['Wo'], 'B_seg_len': _B_in['seg_len'], 'gate_w': _w((lambda *s: torch.randn(*s, dtype=torch.bfloat16) * 0.05)(448) * 16.0)}

def reference(A_x, A_wqkv, A_w_phi, A_wo, B_x, B_mem0, B_Wq, B_Wk, B_Wv, B_Wo, B_seg_len, gate_w):

    def _A_ref(x, wqkv, w_phi, wo):
        B, S, D = x.shape
        H = 16
        Dh = D // H
        qkv = (lambda x, *d: x.permute(*d))((x @ wqkv).reshape(B, S, 3, H, Dh), 2, 0, 3, 1, 4)
        q, k, v = (qkv[0], qkv[1], qkv[2])
        pq = torch.einsum('bhsd,hdf->bhsf', q, w_phi)
        pk = torch.einsum('bhsd,hdf->bhsf', k, w_phi)
        phi_q = torch.concatenate([_softmax(pq, axis=-1), _softmax(-pq, axis=-1)], axis=-1)
        phi_k = torch.concatenate([_softmax(pk, axis=-1), _softmax(-pk, axis=-1)], axis=-1)
        kv = torch.einsum('bhsf,bhsd->bhfd', phi_k, v)
        z = torch.einsum('bhsf->bhf', phi_k)
        num = torch.einsum('bhqf,bhfd->bhqd', phi_q, kv)
        den = torch.einsum('bhqf,bhf->bhq', phi_q, z)[..., None] + 1e-06
        o = num / den
        return (lambda x, *d: x.permute(*d))(o, 0, 2, 1, 3).reshape(B, S, D) @ wo

    def _B_ref(x, mem0, Wq, Wk, Wv, Wo, seg_len):
        B, S, Dm = x.shape
        H, Dh = (Wq.shape[1], Wq.shape[2])
        M = mem0.shape[1]
        scale = Dh ** (-0.5)
        n_seg = S // seg_len
        L = M + seg_len
        idx = torch.arange(L)
        mask = (idx[:, None] < M) | (idx[:, None] >= idx[None, :])
        mem = mem0
        outs = []
        for s in range(n_seg):
            xs = x[:, s * seg_len:(s + 1) * seg_len, :].clone()
            h = torch.concatenate([mem, xs], axis=1)
            q = torch.einsum('btd,dhe->bhte', h, Wq)
            k = torch.einsum('btd,dhe->bhte', h, Wk)
            v = torch.einsum('btd,dhe->bhte', h, Wv)
            scores = torch.einsum('bhqe,bhke->bhqk', q, k) * scale
            scores = torch.where(mask[None, None], scores, -1000000000.0)
            p = _softmax(scores, axis=-1)
            o = torch.einsum('bhqk,bhke->bhqe', p, v)
            o = torch.einsum('bhte,hed->btd', o, Wo)
            mem = o[:, :M, :].clone()
            outs.append(o[:, M:, :])
        return torch.concatenate(outs, axis=1)
    x = A_x
    g = _sigmoid((x * gate_w).sum(-1, keepdims=True))
    a = _A_ref(x, A_wqkv, A_w_phi, A_wo)
    b = _B_ref(x, B_mem0, B_Wq, B_Wk, B_Wv, B_Wo, B_seg_len)
    return g * a + (1 - g) * b
```

```python
class Asm:
    def __init__(self):
        self.lines = []
        self.uid = 0
    def __call__(self, s):
        for ln in s.strip('\n').split('\n'):
            if not ln.strip():
                continue
            self.lines.append('    ' + ln.strip() if not ln.strip().endswith(':') else ln.strip())
    def label(self, name):
        self.lines.append(name + ':')
    def raw(self, s):
        self.lines.append(s)
    def new(self, base):
        self.uid += 1
        return f'{base}_{self.uid}'
    def text(self):
        return '\n'.join(self.lines) + '\n'

def vr(b, n=1):
    return f'v{b}' if n == 1 else f'v[{b}:{b+n-1}]'
def ar(b, n=1):
    return f'a{b}' if n == 1 else f'a[{b}:{b+n-1}]'
def sr(b, n=1):
    return f's{b}' if n == 1 else f's[{b}:{b+n-1}]'

HSZ = 401408
OFF_AF = 0
OFF_BT = 16 * HSZ
OFF_WB = 32 * HSZ
WBB = 28672
WBS = 16 * WBB
OFF_SB = OFF_WB + 64 * WBS
SBS = 47104
OFF_MEMI = OFF_SB
OFF_PB = OFF_SB + 7168
OFF_HU = OFF_SB + 17408
OFF_XN = OFF_SB + 18432
OFF_SC = OFF_SB + 66 * SBS
SCS = 48128
OFF_MEMG = OFF_SC
OFF_PXX = OFF_SC + 7168
OFF_PXM = OFF_PXX + 32768
OFF_DUMMY = OFF_SC + 64 * SCS
OFF_XP = OFF_DUMMY + 8192
OFF_HF = OFF_XP + 2048 * 896
HFH = 6 * 14336
OFF_OB = OFF_HF + 16 * HFH
OFF_KVP = OFF_OB + 64 * 32768
OFF_G = OFF_KVP + 128 * 8192
OFF_FL = OFF_G + 8192
FL_KV = 4096
FL_O = 4096 + 1024
FL_BYTES = 8192
OFF_END1 = OFF_FL + FL_BYTES
WS_BYTES = 268435456

KA_AX, KA_WQKV, KA_WPHI, KA_WO, KA_BX, KA_MEM0, KA_WQ, KA_WK, KA_WV, KA_WOB, KA_SEG, KA_GATE, KA_OUT, KA_DBG, KA_WS = [8 * i for i in range(15)]

def kd(name, vgpr=512, accum=256, sgpr=96):
    return f'''.amdhsa_kernel {name}
  .amdhsa_next_free_vgpr {vgpr}
  .amdhsa_next_free_sgpr {sgpr}
  .amdhsa_accum_offset {accum}
  .amdhsa_group_segment_fixed_size 0
  .amdhsa_kernarg_size 120
  .amdhsa_user_sgpr_count 2
  .amdhsa_user_sgpr_kernarg_segment_ptr 1
  .amdhsa_system_sgpr_workgroup_id_x 1
  .amdhsa_float_denorm_mode_32 3
  .amdhsa_float_denorm_mode_16_64 3
.end_amdhsa_kernel
'''

LOG2E = 1.4426950408889634
import struct as _st
def f32(x):
    return '0x%08x' % _st.unpack('<I', _st.pack('<f', x))[0]
OOB = '0x80000000'

def srd(o, s, ka_reg, nbytes):
    o(f's_mov_b32 s{s+2}, {nbytes}')
    o(f's_mov_b32 s{s+3}, 0x20000')
```

```python
from common import *

LDS_K1 = 32768 + 2 * 57344
MM = 'v_mfma_f32_16x16x32_bf16'

def gen_prep(o, name):
    WS, SM_, SN = 4, 8, 12
    o.label(name)
    o(f'''
    s_cmp_ge_u32 s2, 256
    s_cbranch_scc1 {name}_end
    s_load_dwordx2 s[4:5], s[0:1], {KA_WS}
    s_load_dwordx2 s[40:41], s[0:1], {KA_MEM0}
    s_load_dwordx4 s[44:47], s[0:1], {KA_WQ}
    s_load_dwordx4 s[48:51], s[0:1], {KA_WV}
    s_load_dwordx4 s[52:55], s[0:1], {KA_AX}
    s_load_dwordx2 s[56:57], s[0:1], {KA_WPHI}
    s_load_dwordx2 s[60:61], s[0:1], {KA_GATE}
    v_lshrrev_b32 v1, 6, v0
    v_and_b32 v0, 63, v0
    v_readfirstlane_b32 s16, v1
    v_lshlrev_b32 v1, 4, v0                    ; l*16
    v_and_b32 v2, 15, v0                       ; n
    v_lshrrev_b32 v3, 4, v0                    ; q
    s_mov_b32 s6, {WS_BYTES}
    s_mov_b32 s7, 0x20000
    s_mov_b32 s10, {448*8192}
    s_mov_b32 s11, 0x20000
    s_mov_b32 s14, {448*8192}
    s_mov_b32 s15, 0x20000
    s_mov_b32 s42, 7168
    s_mov_b32 s43, 0x20000
    s_waitcnt lgkmcnt(0)
    s_cmp_ge_u32 s2, 224
    s_cbranch_scc1 {name}_misc
    ''')
    o(f'''
    s_and_b32 s17, s2, 31                      ; matrix
    s_lshr_b32 s18, s2, 5
    s_and_b32 s19, s17, 15                     ; head
    s_cmp_ge_u32 s17, 16
    s_cselect_b32 s8, s48, s44
    s_cselect_b32 s9, s49, s45
    s_cselect_b32 s12, s50, s46
    s_cselect_b32 s13, s51, s47
    v_lshrrev_b32 v4, 3, v0
    v_and_b32 v5, 7, v0
    v_xor_b32 v5, v5, v4
    v_lshlrev_b32 v5, 4, v5
    v_lshl_add_u32 v4, v4, 13, v5
    s_lshl_b32 s20, s18, 19                    ; part*64*8192
    s_lshl_b32 s21, s19, 9
    s_add_u32 s20, s20, s21
    s_lshl_b32 s22, s16, 7
    s_add_u32 s20, s20, s22
    s_lshl_b32 s23, s16, 13
    ''')
    for i in range(8):
        o(f's_add_u32 m0, s23, {i*1024}')
        o(f's_add_u32 s22, s20, {i*65536}')
        o(f'buffer_load_dwordx4 v4, s[8:11], s22 offen lds')
    o(f'''
    s_mul_i32 s24, s16, {112*8192}
    s_add_u32 s24, s24, s21
    s_mul_i32 s25, s19, 229376
    s_mul_i32 s26, s16, 14336
    s_add_u32 s25, s25, s26
    s_mov_b32 s27, 65536
    s_mov_b32 s28, 128
    s_cmp_ge_u32 s17, 16
    s_cselect_b32 s24, s25, s24                ; base
    s_cselect_b32 s27, 1024, s27
    s_cselect_b32 s28, 57344, s28
    s_cselect_b64 vcc, -1, 0
    s_add_u32 s26, s26, 32768
    v_cndmask_b32 v5, v4, v1, vcc
    ''')
    def stage(slot):
        o(f's_mov_b32 s22, s24')
        for i in range(14):
            o(f's_add_u32 m0, s26, {slot*57344 + i*1024}')
            o('s_nop 0')
            o(f'buffer_load_dwordx4 v5, s[12:15], s22 offen lds')
            o(f's_add_u32 s22, s22, s27')
        o(f's_add_u32 s24, s24, s28')
    stage(0)
    stage(1)
    arm(o, name + '_g')
    o(f'''
    v_bfe_u32 v6, v0, 3, 1
    v_lshlrev_b32 v6, 4, v6
    v_bfe_u32 v7, v0, 1, 1
    v_lshl_add_u32 v6, v7, 3, v6
    v_bfe_u32 v7, v0, 2, 1
    v_lshl_add_u32 v6, v7, 2, v6
    v_and_b32 v7, 1, v0
    v_add_u32 v6, v6, v7
    ''')
    for beta in range(2):
        for ksp in range(2):
            d = 8 + 2 * beta + ksp
            o(f'''
            v_add_u32 v7, {2*beta}, v6
            v_add_u32 v{d}, {4*ksp}, v3
            v_xor_b32 v{d}, v{d}, v7
            v_and_b32 v{d}, 7, v{d}
            v_lshlrev_b32 v{d}, 4, v{d}
            v_lshl_add_u32 v{d}, v7, 7, v{d}
            ''')
    ACC, FA, FB = 32, 144, 160
    acc = lambda mt, t: ACC + (mt * 7 + t) * 4
    def compute(ec, slot, isB):
        for ksp in range(2):
            for mt in range(4):
                o(f'ds_read_b128 {vr(FA+4*mt,4)}, v{8+2*(mt&1)+ksp} offset:{ec*8192 + (mt>>1)*4096}')
            for t in range(7):
                if isB:
                    for rd in range(2):
                        o(f'ds_read_b64_tr_b16 {vr(FB+4*t+2*rd,2)}, v{12+slot} offset:{(32*ksp+4*rd)*896 + 32*t}')
                else:
                    o(f'ds_read_b128 {vr(FB+4*t,4)}, v{12+2*slot+ksp} offset:{t*2048}')
            per = 2 if isB else 1
            for t in range(7):
                o(f's_waitcnt lgkmcnt({min(15, (6-t)*per)})')
                for mt in range(4):
                    c = '0' if (ec == 0 and ksp == 0) else vr(acc(mt, t), 4)
                    o(f'{MM} {vr(acc(mt,t),4)}, {vr(FA+4*mt,4)}, {vr(FB+4*t,4)}, {c}')
    def mainloop(isB):
        o('s_waitcnt vmcnt(18)\ns_barrier')
        compute(0, 0, isB)
        o('s_barrier')
        stage(0)
        o('s_waitcnt vmcnt(14)\ns_barrier')
        compute(1, 1, isB)
        o('s_barrier')
        stage(1)
        o('s_waitcnt vmcnt(14)\ns_barrier')
        compute(2, 0, isB)
        o('s_waitcnt vmcnt(0)\ns_barrier')
        compute(3, 1, isB)
        o('s_nop 7')
    def epilogue(isB):
        for t in range(7):
            for kb in range(2):
                a, b = acc(2 * kb, t), acc(2 * kb + 1, t)
                if not isB:
                    for r in range(4):
                        o(f'v_mul_f32 v{a+r}, s30, v{a+r}')
                        o(f'v_mul_f32 v{b+r}, s30, v{b+r}')
                o(f'v_cvt_pk_bf16_f32 v{a}, v{a}, v{a+1}')
                o(f'v_cvt_pk_bf16_f32 v{a+1}, v{a+2}, v{a+3}')
                o(f'v_cvt_pk_bf16_f32 v{a+2}, v{b}, v{b+1}')
                o(f'v_cvt_pk_bf16_f32 v{a+3}, v{b+2}, v{b+3}')
                if isB:
                    o(f'buffer_store_dwordx4 {vr(a,4)}, v{20+t}, s[4:7], s31 offen offset:{kb*1024}')
                else:
                    o(f'buffer_store_dwordx4 {vr(a,4)}, v1, s[4:7], s31 offen offset:{kb*1024}')
            if not isB:
                o(f's_add_u32 s31, s31, 14336')
    o(f's_cmp_ge_u32 s17, 16\ns_cbranch_scc1 {name}_B')
    for slot in range(2):
        for ksp in range(2):
            d = 12 + 2 * slot + ksp
            o(f'''
            v_add_u32 v{d}, {4*ksp}, v3
            v_xor_b32 v{d}, v{d}, v2
            v_and_b32 v{d}, 7, v{d}
            v_lshlrev_b32 v{d}, 4, v{d}
            v_lshl_add_u32 v{d}, v2, 7, v{d}
            v_add_u32 v{d}, s26, v{d}
            v_add_u32 v{d}, {slot*57344}, v{d}
            ''')
    o(f'''
    s_mov_b32 s30, {f32(LOG2E/16)}
    s_mul_i32 s31, s19, {HSZ}
    s_mul_i32 s22, s16, {7*14336}
    s_add_u32 s31, s31, s22
    s_lshl_b32 s22, s18, 11
    s_add_u32 s31, s31, s22
    s_add_u32 s31, s31, {OFF_AF}
    ''')
    mainloop(False)
    epilogue(False)
    o('s_endpgm')
    o.label(name + '_B')
    o(f'''
    v_lshrrev_b32 v12, 2, v2
    v_lshl_add_u32 v12, v3, 3, v12
    v_mul_u32_u24 v12, 896, v12
    v_and_b32 v7, 3, v0
    v_lshl_add_u32 v12, v7, 3, v12
    s_mul_i32 s22, s16, 224
    s_add_u32 s22, s22, 32768
    v_add_u32 v12, s22, v12
    v_add_u32 v13, 57344, v12
    s_mul_i32 s22, s16, 112
    s_and_b32 s29, s19, 3
    s_mul_i32 s29, s29, 28
    ''')
    for t in range(7):
        d = 20 + t
        o(f'''
        v_add_u32 v14, s22, v2
        v_add_u32 v14, {16*t}, v14                 ; c
        v_mul_u32_u24 v15, 2341, v14
        v_lshrrev_b32 v15, 16, v15                 ; b = c / 28
        v_mul_u32_u24 v16, 28, v15
        v_sub_u32 v14, v14, v16                    ; cl
        v_and_b32 v16, 1, v14
        v_mul_u32_u24 v16, 14, v16
        v_lshrrev_b32 v14, 1, v14
        v_add3_u32 v14, v14, v16, s29              ; p
        v_mul_u32_u24 v{d}, {HSZ}, v15
        v_lshrrev_b32 v16, 4, v14
        v_mul_u32_u24 v16, 14336, v16
        v_add_u32 v{d}, v{d}, v16
        v_and_b32 v14, 15, v14
        v_lshl_add_u32 v14, v3, 4, v14
        v_lshl_add_u32 v{d}, v14, 4, v{d}
        ''')
    o(f'''
    s_lshr_b32 s31, s19, 2
    s_mul_i32 s31, s31, {7*14336}
    s_lshl_b32 s22, s18, 11
    s_add_u32 s31, s31, s22
    s_add_u32 s31, s31, {OFF_BT}
    ''')
    mainloop(True)
    epilogue(True)
    o('s_endpgm')
    o.label(name + '_misc')
    o(f'''
    s_sub_u32 s17, s2, 224
    s_lshl_b32 s17, s17, 2
    s_add_u32 s17, s17, s16
    s_mov_b32 s8, s52
    s_mov_b32 s9, s53
    s_mov_b32 s10, {2048*896}
    s_mov_b32 s12, s54
    s_mov_b32 s13, s55
    s_mov_b32 s14, {448*2688}
    s_mov_b32 s58, {16*28*28*2}
    s_mov_b32 s59, 0x20000
    s_mov_b32 s62, 896
    s_mov_b32 s63, 0x20000
    s_mul_i32 s18, s17, 14336
    s_mul_i32 s19, s16, 14336
    ''')
    for i in range(14):
        o(f's_add_u32 m0, s19, {i*1024}')
        o(f's_add_u32 s22, s18, {i*1024}')
        o(f'buffer_load_dwordx4 v1, s[8:11], s22 offen lds')
    GW, XR = 32, 96
    o('v_lshlrev_b32 v4, 4, v3')
    for ks in range(14):
        o(f'buffer_load_dwordx4 {vr(GW+4*ks,4)}, v4, s[60:63], 0 offen offset:{ks*64}')
    arm(o, name + '_m')
    o(f'''
    s_cmp_ge_u32 s17, 4
    s_cbranch_scc1 {name}_nofl
    v_mov_b32 v8, 0
    v_mov_b32 v9, 0
    v_mov_b32 v10, 0
    v_mov_b32 v11, 0
    s_lshl_b32 s22, s17, 11
    s_add_u32 s22, s22, {OFF_FL}
    buffer_store_dwordx4 v[8:11], v1, s[4:7], s22 offen
    buffer_store_dwordx4 v[8:11], v1, s[4:7], s22 offen offset:1024
    {name}_nofl:
    v_mul_u32_u24 v5, 896, v2
    v_lshl_add_u32 v5, v3, 4, v5
    v_add_u32 v5, s19, v5
    v_and_b32 v6, 8, v0
    v_and_b32 v7, 1, v0
    v_lshl_add_u32 v6, v7, 2, v6
    v_bfe_u32 v7, v0, 2, 1
    v_lshl_add_u32 v6, v7, 1, v6
    v_bfe_u32 v7, v0, 1, 1
    v_add_u32 v6, v6, v7
    v_mul_u32_u24 v6, 896, v6
    v_lshrrev_b32 v7, 1, v3
    v_lshl_add_u32 v6, v7, 5, v6
    v_and_b32 v7, 1, v3
    v_lshl_add_u32 v6, v7, 3, v6
    v_add_u32 v6, s19, v6
    s_lshr_b32 s20, s17, 1
    s_mul_i32 s20, s20, {SBS}
    s_and_b32 s21, s17, 1
    s_mul_i32 s21, s21, 14336
    s_add_u32 s20, s20, s21
    s_add_u32 s20, s20, {OFF_XN}
    s_add_u32 s21, s18, {OFF_XP}
    s_waitcnt vmcnt(0)
    ''')
    for ks in range(14):
        o(f'ds_read_b128 {vr(XR+4*ks,4)}, v5 offset:{ks*64}')
    XQ = XR + 56
    o('s_waitcnt lgkmcnt(0)')
    for ks in range(14):
        o(f'ds_read2_b32 {vr(XQ+4*ks,2)}, v6 offset0:{16*ks} offset1:{16*ks+4}')
        o(f'ds_read2_b32 {vr(XQ+4*ks+2,2)}, v6 offset0:{16*ks+1} offset1:{16*ks+5}')
        o(f'buffer_store_dwordx4 {vr(XR+4*ks,4)}, v1, s[4:7], s20 offen offset:{(ks&3)*1024}')
        if ks & 3 == 3:
            o('s_add_u32 s20, s20, 4096')
    o('v_mov_b32 v8, 0\nv_mov_b32 v9, 0')
    for ks in range(14):
        for r in range(4):
            o(f'v_dot2_f32_bf16 v{8+(r&1)}, v{XR+4*ks+r}, v{GW+4*ks+r}, v{8+(r&1)}')
    o('s_waitcnt lgkmcnt(0)')
    for ks in range(14):
        o(f'buffer_store_dwordx4 {vr(XQ+4*ks,4)}, v1, s[4:7], s21 offen offset:{(ks&3)*1024}')
        if ks & 3 == 3:
            o('s_add_u32 s21, s21, 4096')
    o(f'''
    v_add_f32 v8, v8, v9
    v_xor_b32 v10, 16, v0
    v_lshlrev_b32 v10, 2, v10
    ds_bpermute_b32 v9, v10, v8
    v_xor_b32 v10, 32, v0
    v_lshlrev_b32 v10, 2, v10
    s_waitcnt lgkmcnt(0)
    v_add_f32 v8, v8, v9
    ds_bpermute_b32 v9, v10, v8
    s_waitcnt lgkmcnt(0)
    v_add_f32 v8, v8, v9
    v_mul_f32 v8, {f32(-LOG2E)}, v8
    v_exp_f32 v8, v8
    s_nop 0
    v_add_f32 v8, 1.0, v8
    v_rcp_f32 v8, v8
    v_lshlrev_b32 v10, 2, v2
    s_lshl_b32 s22, s17, 6
    s_add_u32 s22, s22, {OFF_G}
    buffer_store_dword v8, v10, s[4:7], s22 offen
    s_cmp_ge_u32 s17, 96
    s_cbranch_scc1 {name}_end
    s_and_b32 s18, s17, 1                      ; half
    s_lshr_b32 s19, s17, 1
    s_and_b32 s20, s19, 15                     ; head
    s_lshr_b32 s21, s19, 4                     ; part
    v_bfe_u32 v6, v0, 3, 1
    v_lshlrev_b32 v6, 4, v6
    v_bfe_u32 v7, v0, 1, 1
    v_lshl_add_u32 v6, v7, 3, v6
    v_bfe_u32 v7, v0, 2, 1
    v_lshl_add_u32 v6, v7, 2, v6
    v_and_b32 v7, 1, v0
    v_add_u32 v6, v6, v7
    v_mul_u32_u24 v6, 2688, v6
    v_lshl_add_u32 v6, v3, 4, v6
    s_mul_i32 s22, s18, {224*2688}
    s_mul_i32 s23, s21, 896
    s_add_u32 s22, s22, s23
    s_mul_i32 s23, s20, 56
    s_add_u32 s22, s22, s23
    ''')
    AFR = 32
    for k7 in range(7):
        for beta in range(2):
            d = AFR + (k7 * 2 + beta) * 4
            o(f's_add_u32 s23, s22, {(32*k7 + 2*beta)*2688}')
            o(f'buffer_load_dwordx2 {vr(d,2)}, v6, s[12:15], s23 offen')
            o(f'buffer_load_dwordx2 {vr(d+2,2)}, v6, s[12:15], s23 offen offset:8')
    PH, PT = 96, 104
    o(f'''
    v_mul_u32_u24 v7, {8*56}, v3
    v_lshl_add_u32 v7, v2, 1, v7
    v_mov_b32 v9, {OOB}
    v_cmp_gt_u32 vcc, 12, v2
    s_mul_i32 s23, s20, 1568
    s_nop 0
    v_cndmask_b32 v8, v9, v7, vcc
    v_cmp_gt_u32 vcc, 3, v3
    s_nop 1
    v_cndmask_b32 v10, v9, v7, vcc             ; e >= 4: q < 3
    v_cndmask_b32 v11, v9, v8, vcc
    ''')
    for nt in range(2):
        for e in range(8):
            va = (7, 8, 10, 11)[nt + 2 * (e >= 4)]
            o(f'buffer_load_ushort v{PT+8*nt+e}, v{va}, s[56:59], s23 offen offset:{e*56 + nt*32}')
    o(f'''
    s_mov_b32 s30, {f32(LOG2E)}
    s_waitcnt vmcnt(0)
    s_cmp_lg_u32 s21, 2
    s_cbranch_scc1 {name}_phi
    s_mov_b32 s30, 1.0
    v_lshlrev_b32 v7, 3, v3
    v_sub_u32 v7, v2, v7                       ; n - 8q
    v_mov_b32 v8, 0x3f80
    v_cmp_gt_u32 vcc, 12, v2
    s_nop 1
    v_cndmask_b32 v9, 0, v8, vcc
    ''')
    for nt in range(2):
        for e in range(8):
            o(f'v_cmp_eq_u32 vcc, {e - 16*nt}, v7')
            o('s_nop 1')
            o(f'v_cndmask_b32 v{PT+8*nt+e}, 0, v{8+nt}, vcc')
    o.label(name + '_phi')
    for nt in range(2):
        for r in range(4):
            o(f'v_lshl_or_b32 v{PH+4*nt+r}, v{PT+8*nt+2*r+1}, 16, v{PT+8*nt+2*r}')
    o(f'''
    s_mul_i32 s31, s20, {HFH}
    s_mul_i32 s23, s21, {2*14336}
    s_add_u32 s31, s31, s23
    s_mul_i32 s23, s18, 7168
    s_add_u32 s31, s31, s23
    s_add_u32 s31, s31, {OFF_HF}
    s_add_u32 s32, s31, 14336
    ''')
    D = 128
    for k7 in range(7):
        for nt in range(2):
            for beta in range(2):
                o(f'{MM} {vr(D+16*k7+8*nt+4*beta,4)}, {vr(AFR+(k7*2+beta)*4,4)}, {vr(PH+4*nt,4)}, 0')
    o('s_nop 7')
    for k7 in range(7):
        for nt in range(2):
            a = D + 16 * k7 + 8 * nt
            for r in range(8):
                o(f'v_mul_f32 v{a+r}, s30, v{a+r}')
            for r in range(4):
                o(f'v_cvt_pk_bf16_f32 v{a+r}, v{a+2*r}, v{a+2*r+1}')
            o(f'buffer_store_dwordx4 {vr(a,4)}, v1, s[4:7], s{31+nt} offen offset:{(k7&3)*1024}')
        if k7 == 3:
            o('s_add_u32 s31, s31, 4096\ns_add_u32 s32, s32, 4096')
    o.label(name + '_end')
    o('s_endpgm')

def arm(o, tag):
    o(f'''
    s_lshr_b32 s64, s2, 2                      ; step
    s_and_b32 s65, s2, 3
    s_lshl_b32 s65, s65, 4
    s_lshl_b32 s66, s16, 2
    s_add_u32 s65, s65, s66
    s_mul_i32 s66, s64, {SBS}
    s_add_u32 s66, s66, {OFF_SB}
    s_mul_i32 s67, s64, {SCS}
    s_add_u32 s67, s67, {OFF_SC - 17*1024}
    ''')
    for i in range(4):
        r = 240 + 4 * i
        L = f'{tag}_u{i}'
        o(f'''
        v_mov_b32 v{r}, -1
        v_mov_b32 v{r+1}, -1
        v_mov_b32 v{r+2}, -1
        v_mov_b32 v{r+3}, -1
        s_add_u32 s68, s65, {i}
        s_cmp_lt_u32 s68, 17
        s_cselect_b32 s69, s66, s67
        s_cselect_b32 s70, 0, 17
        s_sub_u32 s70, s68, s70
        s_lshl_b32 s68, s68, 10
        s_add_u32 s69, s69, s68
        s_cmp_lg_u32 s64, 0
        s_cbranch_scc1 {L}
        s_cmp_ge_u32 s70, 7
        s_cbranch_scc1 {L}
        v_lshrrev_b32 v238, 2, v2
        v_lshlrev_b32 v238, 1, v238
        v_and_b32 v239, 1, v0
        v_add_u32 v238, v238, v239
        v_mul_u32_u24 v238, 896, v238
        v_lshl_add_u32 v238, v3, 5, v238
        v_bfe_u32 v239, v0, 1, 1
        v_lshl_add_u32 v238, v239, 4, v238
        s_lshl_b32 s70, s70, 7
        buffer_load_dwordx4 v[{r}:{r+3}], v238, s[40:43], s70 offen
        s_waitcnt vmcnt(0)
        v_min_u32 v{r}, 0xfffffffe, v{r}
        v_min_u32 v{r+1}, 0xfffffffe, v{r+1}
        v_min_u32 v{r+2}, 0xfffffffe, v{r+2}
        v_min_u32 v{r+3}, 0xfffffffe, v{r+3}
        {L}:
        buffer_store_dwordx4 v[{r}:{r+3}], v1, s[4:7], s69 offen
        ''')
```

```python
from common import *

S_WS, S_DBG = 4, 12
S_W, S_ROLE, S_STEP, S_BUD = 16, 17, 18, 19
S_M0, S_M1 = 20, 21
S_T0, S_T1, S_T2, S_T3 = 22, 23, 24, 25
S_PB = 26
S_X0, S_X1 = 27, 28
S_Z = 30
S_MO = 35
S_MG = 36
S_MODE = 37
S_TOUCH = 38
S_ZP = 39
S_FM = 82
S_FA = 84
S_ST = 40

V_L16, V_IDX = 1, 2
V_TW, V_TR = 3, 4
V_A0, V_A1, V_A2, V_A3, V_A4, V_A5, V_A6, V_A7 = 5, 6, 7, 8, 9, 10, 11, 12
V_TMP = 13
V_MEMF = 16
V_ACC = 44
V_XK = 72
V_MK = 104
V_WT = 120

L_MEMS = 0
L_TIMG = 7424
L_SP = L_TIMG + 8192
L_ZERO = L_SP + 8192
L_END = L_ZERO + 1024

CFG = dict(flags=0, diag=1, gapA=32, gapB=16, gapB2=8, sp=6, ahead=1, f1=3, f2=4, tw=1, tl=56, xg=(2, 6, 10, 14, 18))

def wreg(t, j):
    u = t * 7 + j
    return ar(8 * u, 8) if u < 32 else vr(V_WT + 8 * (u - 32), 8)
def wreg_half(t, j, hf):
    u = t * 7 + j
    return ar(8 * u + 4 * hf, 4) if u < 32 else vr(V_WT + 8 * (u - 32) + 4 * hf, 4)
def acc(t): return V_ACC + 4 * t
def memf(j): return V_MEMF + 4 * j
def SM(d, a, b): return f'v_smfmac_f32_16x16x64_bf16 {vr(d,4)}, {vr(a,4)}, {b}, v{V_IDX}'
def M(t, j): return SM(acc(t), memf(j), wreg(t, j))
def zero(r): return f'v_mov_b32 v{r}, 0'
def zero4(a): return [zero(a + i) for i in range(4)]

def zero_ds(a): return f'ds_read_b128 {vr(a,4)}, v{V_L16} offset:{L_ZERO}'
def pause(o, n):
    if n >= 4:
        o(f's_sleep {n // 4}')
    if n % 4:
        o(f's_nop {4 * (n % 4) - 1}')

def post(t):
    a = acc(t)
    return [f'v_add_f32 v{a}, v{a}, v{a+2}', f'v_add_f32 v{a+1}, v{a+1}, v{a+3}',
            f'v_cvt_pk_bf16_f32 v{a}, v{a}, v{a+1}', f'ds_write_b32 v{V_TW}, v{a} offset:{t*256}']

def merge(o, main, fill):
    for i, m in enumerate(main):
        o(m)
        for f in fill.get(i, []):
            o(f)

LIGHT = None
MARK = False
def stamp(o, k, on):
    if MARK:
        o(f'; MARK {k}')
    if on or (LIGHT and k in LIGHT):
        o(f's_memtime {sr(S_ST+2*k,2)}')

def trace(o, reset=False):
    if CFG.get('trace'):
        if reset:
            o('s_mov_b32 s76, 0')
        o('s_memtime s[78:79]\ns_waitcnt lgkmcnt(0)\ns_mov_b32 m0, s76\ns_nop 0\nv_writelane_b32 v0, s78, m0\ns_add_u32 s76, s76, 1\ns_and_b32 s76, s76, 63')

def flags_reload(o):
    o(f'''
    v_lshrrev_b32 v{V_TMP+1}, 2, v{V_L16}
    buffer_load_dword v{V_TMP}, v{V_TMP+1}, {sr(S_WS,4)}, s{S_FA} offen sc1
    s_waitcnt vmcnt(0)
    v_cmp_ne_u32 {sr(S_FM,2)}, 0, v{V_TMP}
    s_nop 0
    ''')

def mem_issue(o):
    o(f'buffer_load_dwordx4 {vr(memf(0),4)}, v{V_L16}, {sr(S_WS,4)}, s{S_M0} offen sc1')
    o(f'buffer_load_dwordx4 {vr(memf(1),4)}, v{V_L16}, {sr(S_WS,4)}, s{S_M1} offen sc1')

def poll_and_head(o, w, exit_label, extra_reads, fill2, stamps, early=(), after_barrier=None):
    kk = [(j + 2 * w) % 7 for j in range(7)]
    L, OK = o.new('Lpm'), o.new('Lok')
    m = memf(0)
    o(f's_branch {OK}')
    o.label(L)
    mem_issue(o)
    o(f's_sub_u32 s{S_BUD}, s{S_BUD}, 1')
    o(f's_cbranch_scc1 {exit_label}')
    o('s_nop 2')
    for z in zero4(acc(0)) + zero4(acc(1)):
        o(z)
    o.label(OK)
    o('s_waitcnt vmcnt(3)')
    o(f'v_max3_u32 v{V_TMP}, v{m}, v{m+1}, v{m+2}')
    o('s_waitcnt vmcnt(2)')
    trace(o)
    stamp(o, 0, stamps)
    o(f'v_max3_u32 v{V_TMP+1}, v{m+4}, v{m+5}, v{m+6}')
    o(f'v_max3_u32 v{V_TMP}, v{m+3}, v{m+7}, v{V_TMP}')
    o(M(0, 0))
    o(f'v_max_u32 v{V_TMP}, v{V_TMP}, v{V_TMP+1}')
    o(f'v_cmp_eq_u32 vcc, -1, v{V_TMP}')
    o(M(1, 0))
    o(f'ds_write_b128 v{V_L16}, {vr(memf(0),4)} offset:{L_MEMS+kk[0]*1024}')
    o(f's_cbranch_vccnz {L}')
    if w != 3:
        o(f'ds_write_b128 v{V_L16}, {vr(memf(1),4)} offset:{L_MEMS+kk[1]*1024}')
    for t in range(2, 7):
        o(M(t, 0))
        if t - 2 < len(early):
            o(early[t - 2])
    o('s_waitcnt lgkmcnt(0)')
    stamp(o, 4, stamps)
    o('s_barrier')
    stamp(o, 5, stamps)
    rd = [f'ds_read_b128 {vr(memf(j),4)}, v{V_L16} offset:{L_MEMS+kk[j]*1024}' for j in range(2, 7)]
    o(rd[0])
    o(rd[1])
    if after_barrier:
        after_barrier()
    rest = rd[2:] + extra_reads
    main = [M(t, 1) for t in range(7)]
    fill = {i: [r] for i, r in enumerate(rest)}
    for k, v in fill2.items():
        fill.setdefault(k, []).extend(v)
    merge(o, main, fill)
    stamp(o, 6, stamps)

def load_weights(o, w, isA):
    kk = [(j + 2 * w) % 7 for j in range(7)]
    n = 0
    for t in range(7):
        voff = V_L16
        base = (7 * w + t) * 14336
        for j in range(7):
            o(f's_add_u32 s{S_T1}, s{S_T0}, {base + kk[j]*2048}')
            for hf in range(2):
                o(f'buffer_load_dwordx4 {wreg_half(t,j,hf)}, v{voff}, {sr(S_WS,4)}, s{S_T1} offen offset:{hf*1024}')
                n += 1
            if n % 14 == 0 and n >= 42:
                o('s_waitcnt vmcnt(40)')

def xkey_loads(w):
    r = []
    for kt in range(2):
        for ks in range(2):
            for hf in range(2):
                d = V_XK + kt * 16 + ks * 8 + hf * 4
                va = V_A1 if (ks == 1 and hf == 1) else V_L16
                r.append(f'buffer_load_dwordx4 {vr(d,4)}, v{va}, {sr(S_WS,4)}, s{S_X0+kt} offen offset:{(8*ks+4*hf)*256}')
    return r

def tile_phase(extra):
    main, fill = [], {}
    for t in range(7):
        for j in range(2, 7):
            main.append(M(t, j))
    for t in range(6):
        p = post(t)
        b = 5 * (t + 1)
        fill.setdefault(b + 2, []).append(p[0])
        fill.setdefault(b + 3, []).append(p[1])
        fill.setdefault(b + 4, []).append(p[2])
        fill.setdefault(min(b + 5, 34), []).append(p[3])
    for k, v in extra.items():
        fill.setdefault(k, []).extend(v)
    return main, fill

def gen_A(o, w, nsteps, stamps, exit_label):
    o(f'''
    v_and_b32 v{V_TMP}, 15, v0                 ; n
    v_lshrrev_b32 v{V_TMP+1}, 4, v0            ; q
    v_and_b32 v{V_TMP+2}, 1, v{V_TMP+1}        ; q&1
    v_and_b32 v{V_A1}, 0x1f0, v{V_L16}         ; (l&31)*16
    v_lshrrev_b32 v{V_TW}, 2, v{V_TMP}
    v_lshlrev_b32 v{V_TW}, 6, v{V_TW}
    v_and_b32 v{V_A0}, 1, v0
    v_lshl_add_u32 v{V_TW}, v{V_A0}, 5, v{V_TW}
    v_lshl_add_u32 v{V_TW}, v{V_TMP+1}, 3, v{V_TW}
    v_bfe_u32 v{V_A0}, v0, 1, 1
    v_lshl_add_u32 v{V_TW}, v{V_A0}, 2, v{V_TW}
    v_add_u32 v{V_TW}, {L_TIMG + w*2048}, v{V_TW}
    v_lshlrev_b32 v{V_TR}, 8, v{V_TMP+1}
    v_lshl_add_u32 v{V_TR}, v{V_TMP}, 3, v{V_TR}
    v_add_u32 v{V_TR}, {L_TIMG + w*2048}, v{V_TR}
    ; (q>>1)*256 + (4*(j>>1) + 2*(q&1) + (j&1))*16
    v_bfe_u32 v{V_A2}, v0, 1, 1
    v_lshlrev_b32 v{V_A2}, 7, v{V_A2}
    v_bfe_u32 v{V_A0}, v0, 2, 1
    v_lshl_add_u32 v{V_A2}, v{V_A0}, 6, v{V_A2}
    v_lshl_add_u32 v{V_A2}, v{V_TMP+2}, 5, v{V_A2}
    v_and_b32 v{V_A0}, 1, v0
    v_lshl_add_u32 v{V_A2}, v{V_A0}, 4, v{V_A2}
    v_lshrrev_b32 v{V_A0}, 5, v0
    v_lshl_add_u32 v{V_A2}, v{V_A0}, 8, v{V_A2}
    v_lshlrev_b32 v{V_A0}, 6, v{V_TMP+1}
    v_bfe_u32 v{V_A3}, v0, 2, 1
    v_lshl_add_u32 v{V_A0}, v{V_A3}, 5, v{V_A0}
    v_add_u32 v{V_A0}, {(w&1)*16}, v{V_A0}
    v_lshrrev_b32 v{V_A3}, 3, v{V_TMP}
    v_lshl_add_u32 v{V_A6}, v{V_A3}, 8, v{V_A0}
    v_and_b32 v{V_A3}, 3, v0
    v_lshl_add_u32 v{V_A6}, v{V_A3}, 2, v{V_A6}
    v_lshl_add_u32 v{V_A7}, v{V_A3}, 1, v{V_A0}
    s_and_b32 s{S_T2}, s{S_ROLE}, 3
    s_lshl_b32 s{S_T3}, s{S_T2}, 9
    v_add_u32 v{V_A6}, s{S_T3}, v{V_A6}
    s_lshr_b32 s{S_T3}, s{S_T2}, 1
    s_lshl_b32 s{S_T3}, s{S_T3}, 8
    s_and_b32 s{S_T2}, s{S_T2}, 1
    s_lshl_b32 s{S_T2}, s{S_T2}, 3
    s_add_u32 s{S_T3}, s{S_T3}, s{S_T2}
    v_add_u32 v{V_A7}, s{S_T3}, v{V_A7}
    s_lshr_b32 s{S_PB}, s{S_ROLE}, 2
    s_mul_i32 s{S_PB}, s{S_PB}, 2560
    s_add_u32 s{S_PB}, s{S_PB}, {OFF_PB}
    v_add_u32 v{V_A4}, {L_SP + 8}, v{V_L16}
    v_mov_b32 v{V_TMP}, 0
    v_lshlrev_b32 v{V_TMP+1}, 2, v0
    ds_write_b32 v{V_TMP+1}, v{V_TMP} offset:{L_TIMG + w*2048 + 1792}
    ds_write_b32 v{V_TMP+1}, v{V_TMP} offset:{L_MEMS + 7168}
    s_mul_i32 s{S_T0}, s{S_ROLE}, {HSZ}
    s_add_u32 s{S_T0}, s{S_T0}, {OFF_AF}
    v_lshlrev_b32 v{V_A3}, 7, v0
    v_min_u32 v{V_A0}, {22*128}, v{V_A3}
    s_mul_i32 s{S_Z}, s{S_ROLE}, {23*128}
    s_add_u32 s{S_Z}, s{S_Z}, {OFF_SB + SBS}
    s_mul_i32 s{S_TOUCH}, s{S_ROLE}, {WBB}
    s_add_u32 s{S_TOUCH}, s{S_TOUCH}, {OFF_WB + w*128}
    v_min_u32 v{V_A3}, {(CFG['tl']-1)*128}, v{V_A3}
    v_lshlrev_b32 v{V_A3}, 2, v{V_A3}
    s_mov_b32 s{S_X0}, {OFF_XN + 14*w*256}
    s_mov_b32 s{S_X1}, {OFF_XN + 14*w*256 + 14336}
    ''')
    load_weights(o, w, True)
    for t in range(7):
        for z in zero4(acc(t)):
            o(z)
    o('s_waitcnt vmcnt(0) lgkmcnt(0)')
    if CFG['diag']: o('s_memrealtime s[70:71]\ns_memtime s[80:81]\ns_mov_b32 s76, 0')
    mem_issue(o)
    mem_issue(o)
    LOOP = o.new('LA')
    o.label(LOOP)
    mkr = []
    for ks in range(2):
        for hf in range(2):
            mkr.append(f'ds_read_b128 {vr(V_MK+ks*8+hf*4,4)}, v{V_A2} offset:{L_MEMS+(7*w+4*ks+2*hf)*256}')
    xl = xkey_loads(w)
    xl = [xl[0], xl[1], xl[4], xl[5], xl[2], xl[3], xl[6], xl[7]]
    if CFG.get('nox'): xl = ['s_nop 0'] * 8
    early = ['s_nop 0'] * 5
    early[w & 1] = xl[0]
    early[3 + (w & 1)] = xl[1]
    early = [e if e != 's_nop 0' else '' for e in early]
    poll_and_head(o, w, exit_label, mkr, {}, stamps, early)
    o('s_waitcnt lgkmcnt(%d)' % (0 if stamps else 4))
    TF0, TF1 = acc(1), acc(2)
    SA = [memf(0), memf(1), acc(0)]
    extra = {0: [xl[2]], 2: [xl[3]], 4: [xl[4]], 6: [xl[5]], 11: [xl[6]], 16: [xl[7]],
             1: ['s_waitcnt vmcnt(3)'],
             3: [zero_ds(SA[0])], 5: [zero_ds(SA[1])], 21: [zero_ds(SA[2])],
             26: [f'ds_read_b64_tr_b16 {vr(TF0,2)}, v{V_TR}'], 31: [f'ds_read_b64_tr_b16 {vr(TF0+2,2)}, v{V_TR} offset:128']}
    main, fill = tile_phase(extra)
    merge(o, main, fill)
    stamp(o, 12, stamps)
    keys = lambda kt, ks: vr(V_XK + kt * 16 + ks * 8, 8) if kt < 2 else vr(V_MK + ks * 8, 8)
    o('s_waitcnt vmcnt(4) lgkmcnt(%d)' % (0 if stamps else 1))
    o(SM(SA[0], TF0, keys(0, 0)))
    o(SM(SA[1], TF0, keys(1, 0)))
    p6 = post(6)
    o(p6[0]); o(p6[1]); o(p6[2]); o(p6[3])
    o(f'ds_read_b64_tr_b16 {vr(TF1,2)}, v{V_TR} offset:1024')
    o(f'ds_read_b64_tr_b16 {vr(TF1+2,2)}, v{V_TR} offset:1152')
    o(SM(SA[2], TF0, keys(2, 0)))
    stamp(o, 7, stamps)
    for z in zero4(acc(5))[:CFG['f1']]:
        o('s_nop 1')
        o(z)
    o('s_waitcnt vmcnt(0) lgkmcnt(0)')
    stamp(o, 8, stamps)
    Y = [acc(3), acc(4)]
    for kt in range(3):
        o(SM(SA[kt], TF1, keys(kt, 1)))
    first = 1 - (w & 1)
    plane = lambda par: L_SP + (par * 4 + w) * 1024
    add = lambda par, kt: o(f'v_add_f32 v{Y[par]+kt}, v{SA[kt]+par}, v{SA[kt]+2+par}')
    o(f's_cmp_eq_u32 s{S_MODE}, 1')
    add(first, 0); add(1 - first, 0)
    o('s_nop 1')
    add(first, 1)
    o(f'ds_write_b64 v{V_L16}, {vr(Y[first],2)} offset:{plane(first)}')
    add(1 - first, 1)
    if w >= 2:
        o(f'ds_write_b64 v{V_L16}, {vr(Y[1-first],2)} offset:{plane(1-first)}')
        add(0, 2); add(1, 2)
        o(f'ds_write2st64_b32 v{V_A4}, v{Y[0]+2}, v{Y[1]+2} offset0:{4*w} offset1:{16+4*w}')
    else:
        add(first, 2)
        o(f'ds_write_b32 v{V_L16}, v{Y[first]+2} offset:{plane(first)+8}')
        add(1 - first, 2)
    for z in zero4(acc(6))[:CFG['f2']]:
        o('s_nop 2')
        o(z)
    o('s_waitcnt lgkmcnt(0)')
    stamp(o, 13, stamps)
    o('s_barrier')
    stamp(o, 9, stamps)
    L1, L2 = o.new('Ls'), o.new('Ls')
    SLOW, BACK = o.new('Lslow'), o.new('Lback')
    R = memf(2)
    E = memf(5)
    s0, s1, s2 = Y[w & 1], Y[w & 1] + 1, Y[w & 1] + 2
    if w < 2:
        srcs = [x for x in range(4) if x != w]
        for i, sw in enumerate(srcs):
            o(f'ds_read_b128 {vr(R+4*i,4)}, v{V_L16} offset:{L_SP + (w*4 + sw)*1024}')
        for i in range(3):
            o('s_waitcnt lgkmcnt(%d)' % (0 if stamps else 2 - i))
            if i < 2:
                o(f'v_pk_add_f32 {vr(s0,2)}, {vr(s0,2)}, {vr(R+4*i,2)}')
                o(f'v_add_f32 v{s2}, v{s2}, v{R+4*i+2}')
            else:
                for kt in range(3):
                    o(f'v_add_f32 v{s0+kt}, v{s0+kt}, v{R+4*i+kt}')
                for kt in range(3):
                    o(f'v_exp_f32 v{E+kt}, v{s0+kt}')
        stamp(o, 10, stamps)
        dpp = lambda op, r, sh: f'{op}_dpp v{r}, v{r}, v{r} row_ror:{sh} row_mask:0xf bank_mask:0xf'
        o(f'v_add_f32 v{E+3}, v{E}, v{E+1}')
        o(f'v_fma_f32 v{E+3}, v{E+2}, 0.5, v{E+3}')
        o(f'v_max3_f32 v{V_TMP}, |v{s0}|, |v{s1}|, |v{s2}|')
        o(f'v_cmp_nge_f32 vcc, 0x42800000, v{V_TMP}')
        o(dpp('v_add_f32', E + 3, 8))
        for sh in (4, 2, 1):
            o('s_nop 1')
            o(dpp('v_add_f32', E + 3, sh))
        stamp(o, 11, stamps)
        o(f'v_rcp_f32 v{E+3}, v{E+3}')
        o(f's_cbranch_vccnz {SLOW}')
        o.label(BACK)
        o(f'v_mul_f32 v{E}, v{E}, v{E+3}')
        o(f'v_mul_f32 v{E+1}, v{E+1}, v{E+3}')
        o(f'v_mul_f32 v{E+2}, v{E+2}, v{E+3}')
        o(f'v_cvt_pk_bf16_f32 v{E}, |v{E}|, |v{E+1}|')
        o(f'v_cvt_pk_bf16_f32 v{E+2}, |v{E+2}|, |v{E+2}|')
        o(f's_cbranch_scc1 {L1}')
        o(f'buffer_store_dword v{E}, v{V_A6}, {sr(S_WS,4)}, s{S_PB} offen')
        o(f'buffer_store_short v{E+2}, v{V_A7}, {sr(S_WS,4)}, s{S_PB} offen offset:2048')
        o.label(L2)
        o(f's_add_u32 s{S_PB}, s{S_PB}, {SBS}')
    else:
        for t in range(7):
            for z in zero4(acc(t)):
                o(z)
                o('s_nop 0')
    stamp(o, 3, stamps)
    o('s_barrier')
    for r, v in ((S_X0, SBS), (S_X1, SBS), (S_TOUCH, WBS), (S_Z, SBS), (S_M0, SBS), (S_M1, SBS), (S_STEP, 1)):
        o(f's_add_u32 s{r}, s{r}, {v}')
    o(f's_cmp_ge_u32 s{S_STEP}, {nsteps}')
    o(f's_cbranch_scc1 {exit_label}')
    trace(o, True)
    if w == 3:
        o(f'buffer_load_dword v{V_TMP+2}, v{V_A0}, {sr(S_WS,4)}, s{S_Z} offen')
    if w < CFG['tw']:
        LT1, LT2 = o.new('Lt'), o.new('Lt')
        if CFG['flags']:
            o(f's_bitcmp1_b64 {sr(S_FM,2)}, s{S_STEP}')
            o(f's_cbranch_scc1 {LT1}')
            flags_reload(o)
            o(f's_bitcmp1_b64 {sr(S_FM,2)}, s{S_STEP}')
            o(f's_cbranch_scc0 {LT2}')
        o.label(LT1)
        o(f'buffer_load_dword v{V_TMP+2}, v{V_A3}, {sr(S_WS,4)}, s{S_TOUCH} offen sc1')
        o.label(LT2)
    trace(o)
    if w < 2:
        for t in range(7):
            for z in zero4(acc(t)):
                o(z)
    pause(o, CFG['gapA'] + (0 if w < 2 else 7))
    mem_issue(o)
    pause(o, CFG['sp'])
    mem_issue(o)
    o(f's_branch {LOOP}')
    if w < 2:
        o.label(L1)
        o(f'buffer_store_dword v{E}, v{V_A6}, {sr(S_WS,4)}, s{S_PB} offen sc1')
        o(f'buffer_store_short v{E+2}, v{V_A7}, {sr(S_WS,4)}, s{S_PB} offen offset:2048 sc1')
        o(f's_branch {L2}')
        o.label(SLOW)
        o(f'v_max3_f32 v{V_TMP}, v{s0}, v{s1}, v{s2}')
        for sh in (8, 4, 2, 1):
            o('s_nop 1')
            o(f'v_max_f32_dpp v{V_TMP}, v{V_TMP}, v{V_TMP} row_ror:{sh} row_mask:0xf bank_mask:0xf')
        for kt in range(3):
            o(f'v_sub_f32 v{s0+kt}, v{s0+kt}, v{V_TMP}')
            o(f'v_exp_f32 v{E+kt}, v{s0+kt}')
        o('s_nop 0')
        o(f'v_add_f32 v{E+3}, v{E}, v{E+1}')
        o(f'v_fma_f32 v{E+3}, v{E+2}, 0.5, v{E+3}')
        for sh in (8, 4, 2, 1):
            o('s_nop 1')
            o(dpp('v_add_f32', E + 3, sh))
        o(f'v_rcp_f32 v{E+3}, v{E+3}')
        o(f's_branch {BACK}')

def gen_B(o, w, nsteps, stamps, exit_label):
    o(f's_sub_u32 s{S_T2}, s{S_ROLE}, 16')
    o(f's_mul_i32 s{S_T3}, s{S_T2}, 28')
    o(f'''
    v_and_b32 v{V_TMP}, 15, v0                 ; n
    v_lshrrev_b32 v{V_TMP+1}, 4, v0            ; q
    ''')
    o(f's_mul_i32 s{S_T0}, s{S_T2}, {HSZ}')
    o(f's_add_u32 s{S_T0}, s{S_T0}, {OFF_BT}')
    load_weights(o, w, False)
    V_KEEP, V_JUNK = V_A6, V_TMP + 2
    o(f'''
    v_lshlrev_b32 v{V_TW}, 4, v{V_TMP}
    v_lshl_add_u32 v{V_TW}, v{V_TMP+1}, 2, v{V_TW}
    v_add_u32 v{V_TW}, {L_TIMG + w*2048}, v{V_TW}
    v_mul_u32_u24 v{V_TR}, 28, v{V_TMP+1}
    v_add_u32 v{V_TR}, v{V_TR}, v{V_TMP}
    v_lshlrev_b32 v{V_TR}, 4, v{V_TR}
    v_add_u32 v{V_TR}, {L_TIMG + w*2048}, v{V_TR}
    v_lshlrev_b32 v{V_A7}, 1, v{V_TMP}
    v_add_u32 v{V_A7}, s{S_T3}, v{V_A7}
    v_lshrrev_b32 v{V_A5}, 4, v{V_A7}
    v_lshlrev_b32 v{V_A5}, 8, v{V_A5}
    v_lshl_add_u32 v{V_A5}, v{V_TMP+1}, 6, v{V_A5}
    v_bfe_u32 v{V_A6}, v{V_A7}, 3, 1
    v_lshl_add_u32 v{V_A5}, v{V_A6}, 5, v{V_A5}
    v_bfe_u32 v{V_A6}, v{V_A7}, 1, 2
    v_lshl_add_u32 v{V_A5}, v{V_A6}, 2, v{V_A5}
    v_add_u32 v{V_A5}, {16*(w&1)}, v{V_A5}
    v_mov_b32 v{V_A7}, 0x80000000
    v_cmp_gt_u32 vcc, 14, v{V_TMP}
    s_nop 1
    v_cndmask_b32 v{V_A5}, v{V_A7}, v{V_A5}, vcc
    v_cmp_gt_u32 vcc, 32, v0
    s_nop 1
    v_cndmask_b32 v{V_A2}, v{V_A7}, v{V_L16}, vcc
    v_lshlrev_b32 v{V_A3}, 3, v0               ; l*8
    v_mov_b32 v{V_A4}, 0x80008000
    v_min_u32 v{V_A0}, 13, v{V_TMP}
    v_mul_u32_u24 v{V_A1}, 14, v{V_TMP+1}
    v_add_lshl_u32 v{V_A0}, v{V_A0}, v{V_A1}, 4    ; (14q + min(n,13))*16
    s_mul_i32 s{S_T3}, s{S_T2}, {WBB}
    s_add_u32 s{S_Z}, s{S_T3}, {OFF_WB + w*7168}
    s_add_u32 s{S_Z+1}, s{S_Z}, 3584
    s_mov_b32 s{S_PB}, {OFF_PB + w*2560}
    s_mov_b32 s{S_MO}, {OFF_MEMI + SBS}
    s_mov_b32 s{S_MG}, {OFF_DUMMY}
    s_mov_b32 s{S_ZP}, {OFF_MEMG}
    ''')
    o('s_waitcnt vmcnt(0)')
    for t in range(7):
        for z in zero4(acc(t)):
            o(z)
    ZM = [V_MK, V_MK + 8]
    if CFG.get('now'):
        for r in range(32): o(zero(V_XK + r))
    for z in zero4(V_MK + 4) + zero4(V_MK + 12):
        o(z)
    if CFG['diag']: o('s_memrealtime s[70:71]\ns_memtime s[80:81]\ns_mov_b32 s76, 0')
    mem_issue(o)
    mem_issue(o)
    LOOP = o.new('LB')
    o.label(LOOP)
    Wr = lambda u, ct: V_XK + 16 * u + 8 * ct
    wl = []
    for hl in range(4):
        for ct in range(2):
            wl.append(f'buffer_load_dwordx4 {vr(Wr(hl>>1,ct)+4*(hl&1),4)}, v{V_A0}, {sr(S_WS,4)}, s{S_Z+(hl>>1)} offen offset:{(hl&1)*1792+ct*896} sc1')
    if CFG.get('now'): wl = ['s_nop 0'] * 8
    pub = f'buffer_store_dword v{V_KEEP}, v{V_A5}, {sr(S_WS,4)}, s{S_MG} offen sc1'
    early = []
    f2 = {0: wl[0:1], 1: wl[1:2], 2: wl[2:3], 3: wl[3:5], 4: wl[5:7], 5: wl[7:8]}
    if w < 2 and not CFG.get('nopub'):
        f2[6] = [pub]
    LFW, LFB = o.new('Lfw'), o.new('Lfb')
    def chk():
        if CFG['flags']:
            o(f's_bitcmp1_b64 {sr(S_FM,2)}, s{S_STEP}')
            o(f's_cbranch_scc0 {LFW}')
            o.label(LFB)
    poll_and_head(o, w, exit_label, [], f2, stamps, early, chk)
    o('s_waitcnt lgkmcnt(0)')
    main, fill = tile_phase({})
    merge(o, main, fill)
    o('s_nop 7')
    for p in post(6):
        o(p)
    o(f'ds_read_b128 {vr(ZM[0],4)}, v{V_TR}')
    o(f'ds_read_b128 {vr(ZM[1],4)}, v{V_TR} offset:224')
    P = memf(2)
    D = [memf(5), memf(6)]
    def p_issue():
        o(f'buffer_load_dwordx4 {vr(P,4)}, v{V_L16}, {sr(S_WS,4)}, s{S_PB} offen sc1')
        o(f'buffer_load_dwordx4 {vr(P+4,4)}, v{V_L16}, {sr(S_WS,4)}, s{S_PB} offen offset:1024 sc1')
        o(f'buffer_load_dwordx4 {vr(P+8,4)}, v{V_A2}, {sr(S_WS,4)}, s{S_PB} offen offset:2048 sc1')
    pause(o, CFG['gapB'])
    trace(o, True)
    p_issue()
    trace(o)
    for t in range(7):
        for z in zero4(acc(t)):
            o(z)
    for z in zero4(D[0]) + zero4(D[1]):
        o(z)
    p_issue()
    o(f's_add_u32 s{S_Z}, s{S_Z}, {WBS}')
    o(f's_add_u32 s{S_Z+1}, s{S_Z+1}, {WBS}')
    o(f'''
    s_add_u32 s{S_M0}, s{S_M0}, {SBS}
    s_add_u32 s{S_M1}, s{S_M1}, {SBS}
    s_add_u32 s{S_STEP}, s{S_STEP}, 1
    ''')
    o('s_waitcnt lgkmcnt(0)')
    stamp(o, 1, stamps)
    LP, OK = o.new('Lpp'), o.new('Lok')
    T0, T1 = V_TMP, V_TMP + 1
    o(f's_branch {OK}')
    o.label(LP)
    p_issue()
    o(f's_sub_u32 s{S_BUD}, s{S_BUD}, 1')
    o(f's_cbranch_scc1 {exit_label}')
    o('s_nop 2')
    for z in zero4(D[0]):
        o(z)
    o.label(OK)
    o('s_waitcnt vmcnt(5)')
    o(f'v_or3_b32 v{T0}, v{P}, v{P+1}, v{P+2}')
    o('s_waitcnt vmcnt(4)')
    o(f'v_or3_b32 v{T1}, v{P+4}, v{P+5}, v{P+6}')
    o(f'v_or3_b32 v{T0}, v{T0}, v{P+3}, v{P+7}')
    o(SM(D[0], P, vr(Wr(0, 0), 8)))
    o('s_waitcnt vmcnt(3)')
    trace(o)
    stamp(o, 2, stamps)
    o(f'v_or3_b32 v{T1}, v{T1}, v{P+8}, v{P+9}')
    o(f'v_or3_b32 v{T0}, v{T0}, v{P+10}, v{P+11}')
    o(SM(D[0], P + 4, vr(Wr(1, 0), 8)))
    o(f'v_bitop3_b32 v{T0}, v{T0}, v{T1}, v{V_A4} bitop3:0xa8')
    o(f'v_cmp_ne_u32 vcc, 0, v{T0}')
    o(SM(D[0], P + 8, vr(ZM[0], 8)))
    o(f's_cbranch_vccnz {LP}')
    o(SM(D[1], P, vr(Wr(0, 1), 8)))
    o(SM(D[1], P + 4, vr(Wr(1, 1), 8)))
    o(SM(D[1], P + 8, vr(ZM[1], 8)))
    stamp(o, 7, stamps)
    Y = V_XK if not CFG.get('now') else memf(2)
    o(f'v_add_f32 v{Y}, v{D[0]}, v{D[0]+2}')
    o(f'v_add_f32 v{Y+2}, v{D[0]+1}, v{D[0]+3}')
    o(f's_cmp_eq_u32 s{S_MODE}, 1')
    o('s_nop 4')
    o(f'v_add_f32 v{Y+1}, v{D[1]}, v{D[1]+2}')
    o(f'v_add_f32 v{Y+3}, v{D[1]+1}, v{D[1]+3}')
    if w == 0:
        o(f'ds_write_b64 v{V_A3}, {vr(Y+2,2)} offset:{L_SP + 2048}')
    elif w == 1:
        o(f'ds_write_b64 v{V_A3}, {vr(Y,2)} offset:{L_SP + 512}')
    else:
        o(f'ds_write_b64 v{V_A3}, {vr(Y,2)} offset:{L_SP + 512*w}')
        o(f'ds_write_b64 v{V_A3}, {vr(Y+2,2)} offset:{L_SP + 2048 + 512*w}')
    o('s_waitcnt lgkmcnt(0)')
    stamp(o, 8, stamps)
    o('s_barrier')
    stamp(o, 9, stamps)
    L1, L2 = o.new('Ls'), o.new('Ls')
    if w < 2:
        R = Y + 4
        own = Y + 2 * w
        srcs = [x for x in range(4) if x != w]
        for i, sw in enumerate(srcs):
            o(f'ds_read_b64 {vr(R+2*i,2)}, v{V_A3} offset:{L_SP + 2048*w + 512*sw}')
        for i in range(3):
            o('s_waitcnt lgkmcnt(%d)' % (0 if stamps else 2 - i))
            o(f'v_pk_add_f32 {vr(own,2)}, {vr(own,2)}, {vr(R+2*i,2)}')
        o(f'v_cvt_pk_bf16_f32 v{V_KEEP}, v{own}, v{own+1}')
        o(f'v_min_u32 v{V_KEEP}, 0xfffffffe, v{V_KEEP}')
        o(f's_cbranch_scc1 {L1}')
        o(f'buffer_store_dword v{V_KEEP}, v{V_A5}, {sr(S_WS,4)}, s{S_MO} offen')
        o.label(L2)
    else:
        o('s_sleep 2')
    stamp(o, 3, stamps)
    LAST = o.new('Llast')
    o(f's_add_u32 s{S_ZP}, s{S_ZP}, {SCS}')
    o(f's_mov_b32 s{S_MG}, s{S_ZP}')
    o(f's_cmp_ge_u32 s{S_STEP}, {nsteps}')
    o(f's_cbranch_scc1 {LAST}')
    o(f's_add_u32 s{S_MO}, s{S_MO}, {SBS}')
    o(f's_add_u32 s{S_PB}, s{S_PB}, {SBS}')
    pause(o, CFG['gapB2'])
    mem_issue(o)
    pause(o, CFG['sp'])
    mem_issue(o)
    o(f's_branch {LOOP}')
    if w < 2:
        o.label(L1)
        o(f'buffer_store_dword v{V_KEEP}, v{V_A5}, {sr(S_WS,4)}, s{S_MO} offen sc1')
        o(f's_branch {L2}')
    if CFG['flags']:
        o.label(LFW)
        flags_reload(o)
        o(f's_bitcmp1_b64 {sr(S_FM,2)}, s{S_STEP}')
        o(f's_cbranch_scc1 {LFB}')
        o(f's_sub_u32 s{S_BUD}, s{S_BUD}, 1')
        o(f's_cbranch_scc1 {exit_label}')
        o('s_sleep 2')
        o(f's_branch {LFW}')
    o.label(LAST)
    if w < 2:
        o(pub)
    o(f's_branch {exit_label}')

def team_common_setup(o, w):
    kk = [(j + 2 * w) % 7 for j in range(7)]
    o(f'''
    v_lshlrev_b32 v{V_L16}, 4, v0
    v_mov_b32 v{V_IDX}, 0x44444444
    v_mov_b32 v{V_TMP}, 0xeeeeeeee
    v_and_b32 v{V_TMP+1}, 2, v0
    v_cmp_ne_u32 vcc, 0, v{V_TMP+1}
    s_nop 1
    v_cndmask_b32 v{V_IDX}, v{V_IDX}, v{V_TMP}, vcc
    v_mov_b32 v{V_TMP}, 0
    v_lshlrev_b32 v{V_TMP+1}, 2, v0
    ds_write_b32 v{V_TMP+1}, v{V_TMP} offset:{L_ZERO + 256*w}
    s_mov_b32 s{S_STEP}, 0
    s_mov_b64 {sr(S_FM,2)}, 0
    s_and_b32 s{S_FA}, s{S_ROLE}, 15
    s_lshl_b32 s{S_FA}, s{S_FA}, 8
    s_add_u32 s{S_FA}, s{S_FA}, {OFF_FL}
    s_mov_b32 s{S_M0}, {OFF_MEMI + kk[0]*1024}
    s_mov_b32 s{S_M1}, {OFF_MEMI + kk[1]*1024}
    ''')

def gen_team_body(o, exit_label, nsteps=63, stamps=False):
    labs = {}
    for role in 'AB':
        for w in range(4):
            labs[role, w] = o.new(f'Lteam{role}{w}')
    LB = o.new('LteamB')
    o(f's_cmp_ge_u32 s{S_ROLE}, 16')
    o(f's_cbranch_scc1 {LB}')
    for role in 'AB':
        if role == 'B':
            o.label(LB)
        for w in range(1, 4):
            o(f's_cmp_eq_u32 s{S_W}, {w}')
            o(f's_cbranch_scc1 {labs[role,w]}')
        o(f's_branch {labs[role,0]}')
    for role in 'AB':
        for w in range(4):
            o.raw('.p2align 6')
            o.label(labs[role, w])
            team_common_setup(o, w)
            if role == 'A':
                gen_A(o, w, nsteps, stamps, exit_label)
            else:
                gen_B(o, w, nsteps, stamps, exit_label)
```

```python
from common import *
import team as T
from team import S_WS, S_W, S_BUD, wreg_half, wreg, V_L16, V_IDX

MM = 'v_mfma_f32_16x16x32_bf16'
M16 = 'v_mfma_f32_16x16x16_bf16'
NCOPY = 6
S_OUT, S_WO = 8, 44
S_ID, S_J, S_SEG = 17, 18, 20
WSR = sr(S_WS, 4)
V_N, V_Q = 3, 4

def lane_consts(o):
    o(f'''
    v_lshlrev_b32 v{V_L16}, 4, v0
    v_and_b32 v{V_N}, 15, v0
    v_lshrrev_b32 v{V_Q}, 4, v0
    ''')

def jninv(o, d, t):
    o(f'''
    v_and_b32 v{d}, 8, v0
    v_and_b32 v{t}, 1, v0
    v_lshl_add_u32 v{d}, v{t}, 2, v{d}
    v_bfe_u32 v{t}, v0, 2, 1
    v_lshl_add_u32 v{d}, v{t}, 1, v{d}
    v_bfe_u32 v{t}, v0, 1, 1
    v_add_u32 v{d}, v{d}, v{t}
    ''')

def load_w448(o, base_off):
    o(f'''
    s_mul_i32 s22, s{S_ID}, {HSZ}
    s_mul_i32 s23, s{S_W}, {7*14336}
    s_add_u32 s22, s22, s23
    s_add_u32 s22, s22, {base_off}
    ''')
    n = 0
    for t in range(7):
        for j in range(7):
            for hf in range(2):
                o(f'buffer_load_dwordx4 {wreg_half(t,j,hf)}, v{V_L16}, {WSR}, s22 offen offset:{hf*1024}')
                n += 1
            o('s_add_u32 s22, s22, 2048')
            if n % 14 == 0 and n >= 42:
                o('s_waitcnt vmcnt(40)')

def x_issue(o, XR, ks):
    for tt in range(2):
        d = XR + (ks % 4) * 8 + tt * 4
        if ks < 4:
            o(f'buffer_load_dwordx4 {vr(d,4)}, v{V_L16}, {WSR}, s{24+tt} offen offset:{ks*1024}')
        else:
            o(f's_add_u32 s26, s{24+tt}, {(ks>>2)*4096}')
            o(f'buffer_load_dwordx4 {vr(d,4)}, v{V_L16}, {WSR}, s26 offen offset:{(ks&3)*1024}')

def x_start(o, XR, seg_sgpr):
    o(f's_mul_i32 s24, s{seg_sgpr}, 28672')
    o(f's_add_u32 s24, s24, {OFF_XP}')
    o('s_add_u32 s25, s24, 14336')
    for ks in range(3):
        x_issue(o, XR, ks)

def gemm_seg(o, XR, ntile, mf, younger, at3=None):
    for ks in range(14):
        if ks + 3 < 14:
            x_issue(o, XR, ks + 3)
        left = min(ks + 3, 13) - ks
        o(f's_waitcnt vmcnt({2*left + (younger if ks < 3 else 0)})')
        if ks == 3 and at3:
            at3()
        for t in range(ntile):
            for tt in range(2):
                o(mf(tt, t, ks, XR + (ks % 4) * 8 + tt * 4))

def poll_counter(o, off, target, exit_label, tmp):
    L = o.new('Lpc')
    o(f'v_mov_b32 v{tmp+1}, 0')
    o.label(L)
    o(f'''
    buffer_load_dword v{tmp}, v{tmp+1}, {WSR}, s{off} offen sc1
    s_sub_u32 s{S_BUD}, s{S_BUD}, 1
    s_cbranch_scc1 {exit_label}
    s_waitcnt vmcnt(0)
    v_cmp_le_u32 vcc, {target}, v{tmp}
    s_sleep 8
    s_cbranch_vccz {L}
    ''')

def xq(o, op, r, t):
    for sw in ('v_permlane16_swap_b32', 'v_permlane32_swap_b32'):
        o(f'v_mov_b32 v{t}, v{r}')
        o('s_nop 1')
        o(f'{sw} v{r}, v{t}')
        o(f'{op} v{r}, v{r}, v{t}')

def gen_WB(o, exit_label):
    ACC, XR, SO = 16, 72, 104
    L_WO, L_RT, L_RED = 0, 32768, 65536
    acc = lambda tt, t: ACC + (tt * 7 + t) * 4
    lane_consts(o)
    o(f's_mov_b32 s{S_SEG}, s{S_J}')
    x_start(o, XR, S_SEG)
    load_w448(o, OFF_BT)
    for t in range(7):
        o(f'''
        v_add_u32 v5, {16*t}, v{V_N}                 ; p
        v_mul_u32_u24 v6, 4682, v5
        v_lshrrev_b32 v6, 16, v6                   ; p / 14
        v_mul_u32_u24 v7, 14, v6
        v_sub_u32 v5, v5, v7
        v_mul_u32_u24 v7, 14, v{V_Q}
        v_add_lshl_u32 v5, v5, v7, 4
        v_mul_u32_u24 v6, 896, v6
        v_add_u32 v{SO+t}, v5, v6
        ''')
    o(f'''
    s_mul_i32 s27, s{S_ID}, {WBB}
    s_mul_i32 s23, s{S_W}, 7168
    s_add_u32 s27, s27, s23
    s_add_u32 s27, s27, {OFF_WB}
    s_mov_b32 s28, {OFF_DUMMY}
    s_lshl_b32 s29, s{S_ID}, 8
    s_add_u32 s29, s29, {OFF_FL}
    v_mov_b32 v5, 0
    v_mov_b32 v6, 1
    s_waitcnt vmcnt(0)
    ''')
    LW = o.new('LW')
    o.label(LW)
    def at3():
        o('s_barrier')
        o(f'buffer_store_dword v6, v5, {WSR}, s28 offen sc1')
    gemm_seg(o, XR, 7, lambda tt, t, ks, x: f'{MM} {vr(acc(tt,t),4)}, {vr(x,4)}, {wreg_half(t,ks>>1,ks&1)}, ' + ('0' if ks == 0 else vr(acc(tt, t), 4)), 7, at3)
    o(f'''
    s_mul_i32 s30, s{S_SEG}, {WBS}
    s_add_u32 s30, s30, s27
    s_lshl_b32 s28, s{S_SEG}, 2
    s_add_u32 s28, s28, s29
    s_add_u32 s{S_SEG}, s{S_SEG}, {NCOPY}
    s_min_u32 s31, s{S_SEG}, 63
    ''')
    x_start(o, XR, 31)
    for t in range(7):
        a, b = acc(0, t), acc(1, t)
        for r in range(4):
            o(f'v_cvt_pk_bf16_f32 v{a+r}, v{a+r}, v{b+r}')
        o(f'buffer_store_dwordx4 {vr(a,4)}, v{SO+t}, {WSR}, s30 offen sc1')
    o(f'''
    s_cmp_lt_u32 s{S_SEG}, 64
    s_cbranch_scc1 {LW}
    s_waitcnt vmcnt(0)
    s_barrier
    buffer_store_dword v6, v5, {WSR}, s28 offen sc1
    ''')
    V_TW, V_TR, V_WO, V_OO, V_RW, V_RR, TMP = 5, 6, 7, 8, 9, 10, 11
    D, WF, MF, RA, ZM = 16, 32, 64, 92, 104
    Dr = lambda tt, ct: D + (tt * 2 + ct) * 4
    o(f'''
    v_mul_u32_u24 v{TMP}, {4*896}, v{V_Q}
    v_lshl_add_u32 v{TMP}, v{V_N}, 2, v{TMP}
    v_mov_b32 v{TMP+2}, {OOB}
    v_cmp_gt_u32 vcc, 3, v{V_Q}
    s_mul_i32 s22, s{S_W}, {112*896}
    s_mul_i32 s23, s{S_ID}, 56
    v_cndmask_b32 v{TMP+1}, v{TMP+2}, v{TMP}, vcc
    s_add_u32 s22, s22, s23
    ''')
    for hl in range(4):
        for hf in range(2):
            o(f's_add_u32 s23, s22, {(28*hl + 16*hf)*896}')
            for e in range(4):
                o(f'buffer_load_dword v{32+8*hl+4*hf+e}, v{TMP+hf}, {sr(S_WO,4)}, s23 offen offset:{e*896}')
    o(f'''
    s_mov_b32 s22, 0x05040100
    s_mov_b32 s23, 0x07060302
    s_lshl_b32 s26, s{S_W}, 13
    v_add_u32 v{V_WO}, s26, v{V_L16}
    s_waitcnt vmcnt(0)
    ''')
    for hl in range(4):
        for ct in range(2):
            for r in range(4):
                o(f'v_perm_b32 v{64+4*ct+r}, v{32+8*hl+2*r+1}, v{32+8*hl+2*r}, s{22+ct}')
            o(f'ds_write_b128 v{V_WO}, {vr(64+4*ct,4)} offset:{L_WO + (hl*2+ct)*1024}')
    o(f'''
    v_mov_b32 v{V_IDX}, 0x44444444
    v_mov_b32 v{TMP}, 0xeeeeeeee
    v_and_b32 v{TMP+1}, 2, v0
    v_cmp_ne_u32 vcc, 0, v{TMP+1}
    s_lshl_b32 s26, s{S_W}, 11
    s_add_u32 s26, s26, {L_RT}
    v_cndmask_b32 v{V_IDX}, v{V_IDX}, v{TMP}, vcc
    v_lshlrev_b32 v{V_TW}, 4, v{V_N}
    v_lshl_add_u32 v{V_TW}, v{V_Q}, 2, v{V_TW}
    v_add_u32 v{V_TW}, s26, v{V_TW}
    v_mul_u32_u24 v{V_TR}, 28, v{V_Q}
    v_add_lshl_u32 v{V_TR}, v{V_TR}, v{V_N}, 4
    v_add_u32 v{V_TR}, s26, v{V_TR}
    v_min_u32 v14, 13, v{V_N}
    v_mul_u32_u24 v{TMP}, 14, v{V_Q}
    v_add_lshl_u32 v14, v14, v{TMP}, 4
    s_lshl_b32 s26, s{S_W}, 10
    s_add_u32 s26, s26, {L_RED}
    v_add_u32 v{V_RW}, s26, v{V_L16}
    s_lshl_b32 s26, s{S_W}, 12
    s_add_u32 s26, s26, {L_RED}
    v_add_u32 v{V_RR}, s26, v{V_L16}
    v_lshrrev_b32 v{TMP}, 1, v{V_Q}
    v_lshlrev_b32 v{TMP}, 3, v{TMP}
    v_and_b32 v{TMP+1}, 1, v{V_Q}
    v_lshl_add_u32 v{TMP}, v{TMP+1}, 1, v{TMP}
    s_lshr_b32 s22, s{S_W}, 1
    s_lshl_b32 s22, s22, 4
    s_and_b32 s23, s{S_W}, 1
    s_add_u32 s22, s22, s23
    v_add_u32 v{TMP}, s22, v{TMP}
    v_mul_u32_u24 v{TMP}, 896, v{TMP}
    v_lshl_add_u32 v{TMP}, v{V_N}, 2, v{TMP}
    s_mul_i32 s22, s{S_ID}, 56
    v_add_u32 v{TMP}, s22, v{TMP}
    v_cmp_gt_u32 vcc, 14, v{V_N}
    v_mov_b32 v15, 0x80008000
    s_mov_b32 s{S_SEG}, s{S_J}
    v_cndmask_b32 v{V_OO}, v{TMP+2}, v{TMP}, vcc
    ''')
    LF = o.new('LF')
    o.label(LF)
    o(f'''
    s_lshr_b32 s22, s{S_SEG}, 3
    s_lshl_b32 s22, s22, 7
    s_add_u32 s22, s22, {OFF_FL + FL_O}
    ''')
    poll_counter(o, 22, 4, exit_label, TMP)
    o(f'''
    s_lshl_b32 s22, s{S_SEG}, 15
    s_lshl_b32 s23, s{S_W}, 13
    s_add_u32 s22, s22, s23
    s_add_u32 s22, s22, {OFF_OB}
    s_add_u32 s23, s22, 4096
    s_mul_i32 s30, s{S_SEG}, {WBS}
    s_add_u32 s30, s30, s27
    s_add_u32 s31, s30, 3584
    s_mul_i32 s32, s{S_SEG}, {SCS}
    s_add_u32 s32, s32, {OFF_SC}
    s_add_u32 s33, s32, 4096
    ''')
    OF = MF
    for hl in range(4):
        for tt in range(2):
            o(f'buffer_load_dwordx4 {vr(OF+8*hl+4*tt,4)}, v{V_L16}, {WSR}, s{22+(hl>>1)} offen offset:{(hl&1)*2048+tt*1024} sc1')
    for i in range(8):
        o(f'ds_read_b128 {vr(WF+4*i,4)}, v{V_WO} offset:{L_WO + i*1024}')
    o('s_waitcnt vmcnt(0) lgkmcnt(0)')
    for hl in range(4):
        for tt in range(2):
            for ct in range(2):
                o(f'{MM} {vr(Dr(tt,ct),4)}, {vr(OF+8*hl+4*tt,4)}, {vr(WF+8*hl+4*ct,4)}, ' + ('0' if hl == 0 else vr(Dr(tt, ct), 4)))
    for hl in range(4):
        for ct in range(2):
            o(f'buffer_load_dwordx4 {vr(WF+8*hl+4*ct,4)}, v14, {WSR}, s{30+(hl>>1)} offen offset:{(hl&1)*1792+ct*896} sc1')
    LM = o.new('LM')
    o.label(LM)
    for j in range(7):
        o(f'buffer_load_dwordx4 {vr(MF+4*j,4)}, v{V_L16}, {WSR}, s{32+(j>>2)} offen offset:{(j&3)*1024} sc1')
    o(f's_sub_u32 s{S_BUD}, s{S_BUD}, 1')
    o(f's_cbranch_scc1 {exit_label}')
    o('s_waitcnt vmcnt(0)')
    o(f'v_max_u32 v{TMP}, v{MF}, v{MF+1}')
    for r in range(2, 28, 2):
        o(f'v_max3_u32 v{TMP}, v{TMP}, v{MF+r}, v{MF+r+1}')
    LM2 = o.new('LM')
    o(f'v_cmp_eq_u32 vcc, -1, v{TMP}')
    o(f's_cbranch_vccz {LM2}')
    o('s_sleep 6')
    o(f's_branch {LM}')
    o.label(LM2)
    ra = lambda t: RA + (t % 3) * 4
    def post(t):
        a = ra(t)
        return [f'v_add_f32 v{a}, v{a}, v{a+2}', f'v_add_f32 v{a+1}, v{a+1}, v{a+3}',
                f'v_cvt_pk_bf16_f32 v{a}, v{a}, v{a+1}', f'ds_write_b32 v{V_TW}, v{a} offset:{t*256}']
    for r in range(8):
        o(f'v_mov_b32 v{RA+r}, 0')
    o('s_nop 0')
    for t in range(7):
        fill = {}
        if t >= 1:
            p = post(t - 1)
            fill = {2: [p[0]], 3: [p[1]], 4: [p[2]], 5: [p[3]]}
        if t + 1 < 7 and t >= 1:
            z = [f'v_mov_b32 v{ra(t+1)+r}, 0' for r in range(4)]
            fill[0] = z[0:2]
            fill[1] = z[2:4]
        T.merge(o, [T.SM(ra(t), MF + 4 * j, wreg(t, j)) for j in range(7)], fill)
    o('s_nop 7')
    for p in post(6):
        o(p)
    o(f'ds_read_b128 {vr(ZM,4)}, v{V_TR}')
    o(f'ds_read_b128 {vr(ZM+4,4)}, v{V_TR} offset:224')
    PX = MF
    o(f'''
    s_lshl_b32 s22, s{S_W}, 13
    s_add_u32 s22, s22, s32
    s_add_u32 s22, s22, 7168
    s_add_u32 s23, s22, 4096
    s_lshl_b32 s26, s{S_W}, 11
    s_add_u32 s26, s26, s32
    s_add_u32 s26, s26, {7168 + 32768}
    s_waitcnt lgkmcnt(0)
    ''')
    LP, LP2 = o.new('LP'), o.new('LP')
    o.label(LP)
    for hl in range(4):
        for tt in range(2):
            o(f'buffer_load_dwordx4 {vr(PX+8*hl+4*tt,4)}, v{V_L16}, {WSR}, s{22+(hl>>1)} offen offset:{(hl&1)*2048+tt*1024} sc1')
    for tt in range(2):
        o(f'buffer_load_dwordx4 {vr(PX+32+4*tt,4)}, v{V_L16}, {WSR}, s26 offen offset:{tt*1024} sc1')
    o(f's_sub_u32 s{S_BUD}, s{S_BUD}, 1')
    o(f's_cbranch_scc1 {exit_label}')
    o('s_waitcnt vmcnt(0)')
    o(f'v_or_b32 v{TMP}, v{PX}, v{PX+1}')
    for r in range(2, 40, 2):
        o(f'v_or3_b32 v{TMP}, v{TMP}, v{PX+r}, v{PX+r+1}')
    o(f'v_and_b32 v{TMP}, v{TMP}, v15')
    o(f'v_cmp_ne_u32 vcc, 0, v{TMP}')
    o(f's_cbranch_vccz {LP2}')
    o('s_sleep 2')
    o(f's_branch {LP}')
    o.label(LP2)
    for hl in range(5):
        for tt in range(2):
            for ct in range(2):
                b = WF + 8 * hl + 4 * ct if hl < 4 else ZM + 4 * ct
                o(f'{MM} {vr(Dr(tt,ct),4)}, {vr(PX+8*hl+4*tt,4)}, {vr(b,4)}, {vr(Dr(tt,ct),4)}')
    o('s_nop 7')
    for tt in range(2):
        for rp in range(2):
            for ct in range(2):
                o(f'ds_write_b64 v{V_RW}, {vr(Dr(tt,ct)+2*rp,2)} offset:{(tt*2+rp)*4096 + ct*8}')
    o('s_waitcnt lgkmcnt(0)')
    o('s_barrier')
    for sw in range(4):
        o(f'ds_read_b128 {vr(WF+4*sw,4)}, v{V_RR} offset:{sw*1024}')
    o(f'''
    s_mul_i32 s22, s{S_SEG}, 28672
    v_xor_b32 v{V_RW}, 0x4000, v{V_RW}
    v_xor_b32 v{V_RR}, 0x4000, v{V_RR}
    s_add_u32 s{S_SEG}, s{S_SEG}, {NCOPY}
    s_waitcnt lgkmcnt(0)
    ''')
    for r in range(4):
        o(f'v_add_f32 v{WF+r}, v{WF+r}, v{WF+4+r}')
        o(f'v_add_f32 v{WF+8+r}, v{WF+8+r}, v{WF+12+r}')
    for r in range(4):
        o(f'v_add_f32 v{WF+r}, v{WF+r}, v{WF+8+r}')
    o(f'''
    v_cvt_pk_bf16_f32 v{TMP}, v{WF}, v{WF+2}
    v_cvt_pk_bf16_f32 v112, v{WF+1}, v{WF+3}
    buffer_store_dword v{TMP}, v{V_OO}, {sr(S_OUT,4)}, s22 offen
    buffer_store_dword v112, v{V_OO}, {sr(S_OUT,4)}, s22 offen offset:3584
    s_cmp_lt_u32 s{S_SEG}, 64
    s_cbranch_scc1 {LF}
    s_branch {exit_label}
    ''')
LDS_WB = 65536 + 32768

def gen_TA(o, exit_label):
    ACC, XR = 16, 72
    acc = lambda tt, t: ACC + (tt * 7 + t) * 4
    V_XK, V_MK, V_LW, V_G, V_PM, TMP = 5, 6, 7, 8, 9, 10
    S = 104
    lane_consts(o)
    o(f's_mov_b32 s{S_SEG}, s{S_J}')
    x_start(o, XR, S_SEG)
    load_w448(o, OFF_AF)
    jninv(o, V_G, TMP)
    o(f'''
    v_lshrrev_b32 v{TMP}, 1, v{V_Q}
    v_and_b32 v{TMP+1}, 1, v{V_Q}
    v_lshlrev_b32 v{V_XK}, 4, v{V_G}
    v_lshl_add_u32 v{V_XK}, v{TMP}, 8, v{V_XK}
    v_lshl_add_u32 v{V_XK}, v{TMP+1}, 3, v{V_XK}
    v_and_b32 v{V_MK}, 13, v0
    v_lshlrev_b32 v{V_MK}, 4, v{V_MK}
    v_lshl_add_u32 v{V_MK}, v{TMP}, 5, v{V_MK}
    v_lshl_add_u32 v{V_MK}, v{TMP+1}, 3, v{V_MK}
    v_lshlrev_b32 v{TMP}, 3, v{TMP}
    v_lshl_add_u32 v{TMP}, v{TMP+1}, 1, v{TMP}
    v_sub_u32 v{TMP}, v{V_G}, v{TMP}
    v_cmp_le_i32 s[48:49], 0, v{TMP}
    v_cmp_le_i32 s[50:51], 4, v{TMP}
    v_cmp_le_i32 s[52:53], 1, v{TMP}
    v_cmp_le_i32 s[54:55], 5, v{TMP}
    v_lshlrev_b32 v{V_G}, 2, v{V_G}
    s_mul_i32 s26, s{S_W}, 6144
    v_add_u32 v{V_LW}, s26, v{V_L16}
    v_lshlrev_b32 v{V_PM}, 4, v{V_N}
    v_lshl_add_u32 v{V_PM}, v{V_Q}, 2, v{V_PM}
    s_and_b32 s22, s{S_ID}, 3
    s_lshl_b32 s22, s22, 8
    v_add_u32 v{V_PM}, s22, v{V_PM}
    v_mov_b32 v14, v{V_L16}
    s_waitcnt vmcnt(0)
    ''')
    LT = o.new('LT')
    o.label(LT)
    gemm_seg(o, XR, 7, lambda tt, t, ks, x: f'{MM} {vr(acc(tt,t),4)}, {wreg_half(t,ks>>1,ks&1)}, {vr(x,4)}, ' + ('0' if ks == 0 else vr(acc(tt, t), 4)), 0)
    o(f'''
    s_mul_i32 s30, s{S_SEG}, {SBS}
    s_mul_i32 s22, s{S_W}, {14*256}
    s_add_u32 s30, s30, s22
    s_add_u32 s30, s30, {OFF_XN}
    s_add_u32 s31, s30, 14336
    s_mul_i32 s32, s{S_SEG}, {SCS}
    s_add_u32 s32, s32, {OFF_SC}
    s_mul_i32 s22, s{S_W}, {7*256}
    s_add_u32 s33, s32, s22
    s_lshl_b32 s34, s{S_SEG}, 7
    s_lshl_b32 s22, s{S_W}, 6
    s_add_u32 s34, s34, s22
    s_add_u32 s34, s34, {OFF_G}
    ''')
    for t in range(7):
        for tt in range(2):
            a = acc(tt, t)
            o(f'v_cvt_pk_bf16_f32 v{a}, v{a}, v{a+1}')
            o(f'v_cvt_pk_bf16_f32 v{a+1}, v{a+2}, v{a+3}')
            o(f'buffer_load_dwordx2 {vr(a+2,2)}, v{V_XK}, {WSR}, s{30+tt} offen offset:{t*512}')
    o(f'buffer_load_dword v15, v{V_G}, {WSR}, s34 offen')
    SX = {(0, 0): XR, (1, 0): XR + 4, (1, 1): XR + 8}
    SMm = [XR + 12, XR + 16]
    o('s_waitcnt vmcnt(0)')
    for t in range(7):
        for (tt, kt), d in SX.items():
            o(f'{M16} {vr(d,4)}, {vr(acc(kt,t)+2,2)}, {vr(acc(tt,t),2)}, ' + ('0' if t == 0 else vr(d, 4)))
    LM, LM2 = o.new('LM'), o.new('LM')
    o.label(LM)
    for t in range(7):
        o(f'buffer_load_dwordx2 {vr(acc(0,t)+2,2)}, v{V_MK}, {WSR}, s33 offen offset:{t*256} sc1')
    o(f's_sub_u32 s{S_BUD}, s{S_BUD}, 1')
    o(f's_cbranch_scc1 {exit_label}')
    o(f'ds_write_b128 v{V_LW}, {vr(SX[0,0],4)}')
    o(f'ds_write_b128 v{V_LW}, {vr(SX[1,0],4)} offset:3072')
    o(f'ds_write_b128 v{V_LW}, {vr(SX[1,1],4)} offset:4096')
    o('s_waitcnt vmcnt(0)')
    o(f'v_max_u32 v{TMP}, v{acc(0,0)+2}, v{acc(0,0)+3}')
    for t in range(1, 7):
        o(f'v_max3_u32 v{TMP}, v{TMP}, v{acc(0,t)+2}, v{acc(0,t)+3}')
    o(f'v_cmp_eq_u32 vcc, -1, v{TMP}')
    o(f's_cbranch_vccz {LM2}')
    o('s_sleep 4')
    o(f's_branch {LM}')
    o.label(LM2)
    for t in range(7):
        for tt in range(2):
            o(f'{M16} {vr(SMm[tt],4)}, {vr(acc(0,t)+2,2)}, {vr(acc(tt,t),2)}, ' + ('0' if t == 0 else vr(SMm[tt], 4)))
    o('s_nop 7')
    o(f'ds_write_b64 v{V_LW}, {vr(SMm[0],2)} offset:2048')
    o(f'ds_write_b64 v{V_LW}, {vr(SMm[1],2)} offset:5120')
    o(f'''
    s_mov_b32 s35, s{S_SEG}
    s_add_u32 s{S_SEG}, s{S_SEG}, {NCOPY}
    s_min_u32 s31, s{S_SEG}, 63
    s_waitcnt lgkmcnt(0)
    s_barrier
    ''')
    LN, L1 = o.new('LN'), o.new('L1')
    o(f's_cmp_ge_u32 s{S_W}, 2')
    o(f's_cbranch_scc1 {LN}')
    o(f's_cmp_eq_u32 s{S_W}, 1')
    o(f's_cbranch_scc1 {L1}')
    R = ACC
    for tt in range(2):
        if tt == 1:
            o.label(L1)
        kts = [0] if tt == 0 else [0, 1]
        for sw in range(4):
            for kt in kts:
                o(f'ds_read_b128 {vr(R+12*sw+4*kt,4)}, v14 offset:{sw*6144 + tt*3072 + kt*1024}')
            o(f'ds_read_b64 {vr(R+12*sw+8,2)}, v14 offset:{sw*6144 + tt*3072 + 2048}')
        regs = [4 * kt + r for kt in kts for r in range(4)] + [8, 9]
        o(f'v_mov_b32 v{TMP+1}, 0xff800000')
        o(f'v_sub_f32 v15, 1.0, v15')
        o('s_waitcnt lgkmcnt(0)')
        for r in regs:
            o(f'v_add_f32 v{R+r}, v{R+r}, v{R+12+r}')
            o(f'v_add_f32 v{R+24+r}, v{R+24+r}, v{R+36+r}')
        for r in regs:
            o(f'v_add_f32 v{R+r}, v{R+r}, v{R+24+r}')
        for r in range(4):
            o(f'v_cndmask_b32 v{R+4*tt+r}, v{TMP+1}, v{R+4*tt+r}, s[{48+2*r}:{49+2*r}]')
        o(f'v_max_f32 v{TMP}, v{R+8}, v{R+9}')
        for i in range(0, len(regs) - 2, 2):
            o(f'v_max3_f32 v{TMP}, v{TMP}, v{R+regs[i]}, v{R+regs[i+1]}')
        xq(o, 'v_max_f32', TMP, TMP + 2)
        for r in regs:
            o(f'v_sub_f32 v{R+r}, v{R+r}, v{TMP}')
        for r in regs:
            o(f'v_exp_f32 v{R+r}, v{R+r}')
        o('s_nop 0')
        o(f'v_add_f32 v{TMP}, v{R+8}, v{R+9}')
        for r in regs[:-2]:
            o(f'v_add_f32 v{TMP}, v{TMP}, v{R+r}')
        xq(o, 'v_add_f32', TMP, TMP + 2)
        o(f'v_rcp_f32 v{TMP}, v{TMP}')
        o('s_nop 0')
        o(f'v_mul_f32 v{TMP}, v{TMP}, v15')
        for r in regs:
            o(f'v_mul_f32 v{R+r}, v{R+r}, v{TMP}')
        for r in range(4):
            hi = f'|v{R+4+r}|' if tt == 1 else '0'
            o(f'v_cvt_pk_bf16_f32 v{S+r}, |v{R+r}|, {hi}')
        o(f'v_cvt_pk_bf16_f32 v{S+4}, |v{R+8}|, |v{R+9}|')
        o(f'''
        s_lshl_b32 s22, s{S_ID}, 11
        s_add_u32 s22, s22, s32
        s_add_u32 s22, s22, {7168 + tt*1024}
        s_lshr_b32 s23, s{S_ID}, 2
        s_lshl_b32 s23, s23, 11
        s_add_u32 s23, s23, s32
        s_add_u32 s23, s23, {7168 + 32768 + tt*1024}
        buffer_store_dwordx4 {vr(S,4)}, v{V_L16}, {WSR}, s22 offen sc1
        buffer_store_dword v{S+4}, v{V_PM}, {WSR}, s23 offen sc1
        ''')
        if tt == 0:
            o(f's_branch {LN}')
    o.label(LN)
    o(f'v_xor_b32 v{V_LW}, 0x8000, v{V_LW}')
    o(f'v_xor_b32 v14, 0x8000, v14')
    x_start(o, XR, 31)
    o(f's_cmp_lt_u32 s{S_SEG}, 64')
    o(f's_cbranch_scc1 {LT}')
    o(f's_branch {exit_label}')
LDS_TA = 65536

def gen_HG(o, exit_label):
    def hw(t, ks):
        u = t * 14 + ks
        return ar(4 * u, 4) if u < 64 else vr(176 + 4 * (u - 64), 4)
    ACC, XR, KV, W = 16, 64, 96, 128
    acc = lambda tt, t: ACC + (tt * 6 + t) * 4
    kv = lambda sg, ft, dt: KV + ((sg * 2 + ft) * 2 + dt) * 4
    V_ONE, V_PH, V_G, TMP = 8, 5, 6, 12
    lane_consts(o)
    o(f'''
    s_lshl_b32 s{S_SEG}, s{S_J}, 3
    s_lshl_b32 s27, s{S_ID}, 2
    s_add_u32 s27, s27, s{S_W}                 ; head
    ''')
    x_start(o, XR, S_SEG)
    o(f's_mul_i32 s22, s27, {HFH}')
    o(f's_add_u32 s22, s22, {OFF_HF}')
    for u in range(84):
        o(f'buffer_load_dwordx4 {hw(u // 14, u % 14)}, v{V_L16}, {WSR}, s22 offen offset:{(u&3)*1024}')
        if u & 3 == 3:
            o('s_add_u32 s22, s22, 4096')
        if u % 12 == 11 and u > 40:
            o('s_waitcnt vmcnt(40)')
    jninv(o, V_G, TMP)
    o(f'''
    v_lshlrev_b32 v{V_G}, 2, v{V_G}
    v_cmp_eq_u32 vcc, 12, v{V_N}
    v_cmp_gt_u32 s[48:49], 3, v{V_Q}
    v_cmp_gt_u32 s[50:51], 12, v{V_N}
    v_cndmask_b32 v{V_ONE}, 0, 1.0, vcc
    v_mov_b32 v{V_ONE+1}, v{V_ONE}
    v_mov_b32 v{V_ONE+2}, v{V_ONE}
    v_mov_b32 v{V_ONE+3}, v{V_ONE}
    s_lshl_b32 s26, s{S_W}, 15
    v_add_u32 v{V_PH}, s26, v{V_L16}
    s_mov_b32 s28, 0
    ''')
    for r in range(32):
        o(f'v_mov_b32 v{KV+r}, 0')
    o('s_waitcnt vmcnt(0)')
    LH = o.new('LH')
    o.label(LH)
    def mf(tt, t, ks, x):
        c = vr(acc(tt, t), 4) if ks else (vr(V_ONE, 4) if t == 5 else '0')
        a, b = (hw(t, ks), vr(x, 4)) if t < 2 else (vr(x, 4), hw(t, ks))
        return f'{MM} {vr(acc(tt,t),4)}, {a}, {b}, {c}'
    gemm_seg(o, XR, 6, mf, 0)
    o(f's_add_u32 s{S_SEG}, s{S_SEG}, 1')
    o(f's_min_u32 s31, s{S_SEG}, 63')
    x_start(o, XR, 31)
    for tt in range(2):
        y = acc(tt, 0)
        mx, mn, t2, EP, EM = W, W + 1, W + 2, W + 8, W + 16
        for r in range(4):
            o(f'v_cndmask_b32 v{y+4+r}, v{y}, v{y+4+r}, s[48:49]')
        o(f'v_max3_f32 v{mx}, v{y}, v{y+1}, v{y+2}')
        o(f'v_min3_f32 v{mn}, v{y}, v{y+1}, v{y+2}')
        o(f'v_max3_f32 v{mx}, v{mx}, v{y+3}, v{y+4}')
        o(f'v_min3_f32 v{mn}, v{mn}, v{y+3}, v{y+4}')
        o(f'v_max3_f32 v{mx}, v{mx}, v{y+5}, v{y+6}')
        o(f'v_min3_f32 v{mn}, v{mn}, v{y+5}, v{y+6}')
        o(f'v_max_f32 v{mx}, v{mx}, v{y+7}')
        o(f'v_min_f32 v{mn}, v{mn}, v{y+7}')
        xq(o, 'v_max_f32', mx, t2)
        xq(o, 'v_min_f32', mn, t2)
        for r in range(8):
            o(f'v_sub_f32 v{EP+r}, v{y+r}, v{mx}')
            o(f'v_sub_f32 v{EM+r}, v{mn}, v{y+r}')
        for r in range(8):
            o(f'v_exp_f32 v{EP+r}, v{EP+r}')
            o(f'v_exp_f32 v{EM+r}, v{EM+r}')
        o('s_nop 0')
        for r in range(4, 8):
            o(f'v_cndmask_b32 v{EP+r}, 0, v{EP+r}, s[48:49]')
            o(f'v_cndmask_b32 v{EM+r}, 0, v{EM+r}, s[48:49]')
        o(f'v_add_f32 v{mx}, v{EP}, v{EP+1}')
        o(f'v_add_f32 v{mn}, v{EM}, v{EM+1}')
        for r in range(2, 8):
            o(f'v_add_f32 v{mx}, v{mx}, v{EP+r}')
            o(f'v_add_f32 v{mn}, v{mn}, v{EM+r}')
        xq(o, 'v_add_f32', mx, t2)
        xq(o, 'v_add_f32', mn, t2)
        o(f'v_rcp_f32 v{mx}, v{mx}')
        o(f'v_rcp_f32 v{mn}, v{mn}')
        o('s_nop 0')
        for r in range(8):
            o(f'v_mul_f32 v{EP+r}, v{EP+r}, v{mx}')
            o(f'v_mul_f32 v{EM+r}, v{EM+r}, v{mn}')
        for r in range(4):
            o(f'v_cvt_pk_bf16_f32 v{EP+r}, v{EP+2*r}, v{EP+2*r+1}')
        for r in range(4):
            o(f'v_cvt_pk_bf16_f32 v{EM+r}, v{EM+2*r}, v{EM+2*r+1}')
        o(f'ds_write_b128 v{V_PH}, {vr(EP,4)} offset:{tt*2048}')
        o(f'ds_write_b128 v{V_PH}, {vr(EM,4)} offset:{tt*2048+1024}')
    o(f'v_add_u32 v{V_PH}, 4096, v{V_PH}')
    items = [(tt, r) for tt in range(2) for r in range(4)]
    y0 = lambda i: acc(items[i][0], 2) + items[i][1]
    y1 = lambda i: acc(items[i][0], 3) + items[i][1]
    MX, MN, N0, N1 = W, W + 8, W + 16, W + 24
    dpp = lambda op, r, sh: f'{op}_dpp v{r}, v{r}, v{r} row_ror:{sh} row_mask:0xf bank_mask:0xf'
    for i in range(8):
        o(f'v_cndmask_b32 v{y1(i)}, v{y0(i)}, v{y1(i)}, s[50:51]')
    for i in range(8):
        o(f'v_max_f32 v{MX+i}, v{y0(i)}, v{y1(i)}')
        o(f'v_min_f32 v{MN+i}, v{y0(i)}, v{y1(i)}')
    for sh in (8, 4, 2, 1):
        for i in range(8):
            o(dpp('v_max_f32', MX + i, sh))
        for i in range(8):
            o(dpp('v_min_f32', MN + i, sh))
    for i in range(8):
        o(f'v_sub_f32 v{N0+i}, v{MN+i}, v{y0(i)}')
        o(f'v_sub_f32 v{N1+i}, v{MN+i}, v{y1(i)}')
        o(f'v_sub_f32 v{y0(i)}, v{y0(i)}, v{MX+i}')
        o(f'v_sub_f32 v{y1(i)}, v{y1(i)}, v{MX+i}')
    for i in range(8):
        for r in (N0 + i, N1 + i, y0(i), y1(i)):
            o(f'v_exp_f32 v{r}, v{r}')
    o('s_nop 0')
    for i in range(8):
        o(f'v_cndmask_b32 v{y1(i)}, 0, v{y1(i)}, s[50:51]')
        o(f'v_cndmask_b32 v{N1+i}, 0, v{N1+i}, s[50:51]')
    for i in range(8):
        o(f'v_add_f32 v{MX+i}, v{y0(i)}, v{y1(i)}')
        o(f'v_add_f32 v{MN+i}, v{N0+i}, v{N1+i}')
    for sh in (8, 4, 2, 1):
        for i in range(8):
            o(dpp('v_add_f32', MX + i, sh))
        for i in range(8):
            o(dpp('v_add_f32', MN + i, sh))
    for i in range(16):
        o(f'v_rcp_f32 v{MX+i}, v{MX+i}')
    o('s_nop 0')
    for i in range(8):
        o(f'v_mul_f32 v{y0(i)}, v{y0(i)}, v{MX+i}')
        o(f'v_mul_f32 v{y1(i)}, v{y1(i)}, v{MX+i}')
        o(f'v_mul_f32 v{N0+i}, v{N0+i}, v{MN+i}')
        o(f'v_mul_f32 v{N1+i}, v{N1+i}, v{MN+i}')
    PK = W + 32
    for i in range(0, 8, 2):
        o(f'v_cvt_pk_bf16_f32 v{PK+i//2}, v{y0(i)}, v{y0(i+1)}')
        o(f'v_cvt_pk_bf16_f32 v{PK+4+i//2}, v{y1(i)}, v{y1(i+1)}')
        o(f'v_cvt_pk_bf16_f32 v{PK+8+i//2}, v{N0+i}, v{N0+i+1}')
        o(f'v_cvt_pk_bf16_f32 v{PK+12+i//2}, v{N1+i}, v{N1+i+1}')
    for dt in range(2):
        for i in range(0, 8, 2):
            a = acc(items[i][0], 4 + dt) + items[i][1]
            o(f'v_cvt_pk_bf16_f32 v{W+4*dt+i//2}, v{a}, v{a+1}')
    o('s_nop 1')
    for sg in range(2):
        for ft in range(2):
            for dt in range(2):
                o(f'{MM} {vr(kv(sg,ft,dt),4)}, {vr(PK+8*sg+4*ft,4)}, {vr(W+4*dt,4)}, {vr(kv(sg,ft,dt),4)}')
    o(f'''
    s_add_u32 s28, s28, 1
    s_cmp_lt_u32 s28, 8
    s_cbranch_scc1 {LH}
    s_lshl_b32 s29, s27, 16
    s_add_u32 s29, s29, {OFF_KVP}
    s_lshl_b32 s22, s{S_J}, 13
    s_add_u32 s22, s22, s29
    s_add_u32 s23, s22, 4096
    s_nop 7
    ''')
    for i in range(8):
        o(f'buffer_store_dwordx4 {vr(KV+4*i,4)}, v{V_L16}, {WSR}, s{22+(i>>2)} offen offset:{(i&3)*1024} sc1')
    def signal(off_sgpr):
        L = o.new('Lsg')
        o(f'''
        s_waitcnt vmcnt(0)
        s_barrier
        s_cmp_lg_u32 s{S_W}, 0
        s_cbranch_scc1 {L}
        v_mov_b32 v{TMP}, 1
        v_mov_b32 v{TMP+1}, 0
        s_mov_b64 exec, 1
        buffer_atomic_add v{TMP}, v{TMP+1}, {WSR}, s{off_sgpr} offen
        s_mov_b64 exec, -1
        {L}:
        ''')
    o(f's_lshl_b32 s30, s{S_ID}, 7')
    o(f's_add_u32 s30, s30, {OFF_FL + FL_KV}')
    signal(30)
    poll_counter(o, 30, 8, exit_label, TMP)
    for tb in range(8):
        dst = KV if tb == 0 else (16 if tb & 1 else 48)
        o(f's_add_u32 s23, s29, 4096')
        for i in range(8):
            o(f'buffer_load_dwordx4 {vr(dst+4*i,4)}, v{V_L16}, {WSR}, s{29 if i < 4 else 23} offen offset:{(i&3)*1024} sc1')
        o(f's_add_u32 s29, s29, 8192')
        if tb >= 2:
            o('s_waitcnt vmcnt(8)')
            p = 16 if (tb - 1) & 1 else 48
            for r in range(32):
                o(f'v_add_f32 v{KV+r}, v{KV+r}, v{p+r}')
    o('s_waitcnt vmcnt(0)')
    for r in range(32):
        o(f'v_add_f32 v{KV+r}, v{KV+r}, v{16+r}')
    KT = W
    for sg in range(2):
        for dt in range(2):
            for ft in range(2):
                for rp in range(2):
                    a = kv(sg, ft, dt) + 2 * rp
                    o(f'v_cvt_pk_bf16_f32 v{KT+(sg*2+dt)*4+2*ft+rp}, v{a}, v{a+1}')
    o(f'''
    s_lshl_b32 s26, s{S_W}, 15
    v_add_u32 v{V_PH}, s26, v{V_L16}
    v_add_u32 v7, 48, v{V_N}
    v_lshlrev_b32 v7, 2, v7
    s_lshl_b32 s22, s{S_J}, 18
    s_lshl_b32 s23, s27, 11
    s_add_u32 s22, s22, s23
    s_add_u32 s22, s22, {OFF_OB}
    s_lshl_b32 s23, s{S_J}, 10
    s_add_u32 s23, s23, {OFF_G}
    s_mov_b32 s28, 0
    ''')
    L2 = o.new('LH')
    o.label(L2)
    PQ, DD = 16, 32
    for i in range(4):
        o(f'ds_read_b128 {vr(PQ+4*i,4)}, v{V_PH} offset:{i*1024}')
    for tt in range(2):
        o(f'buffer_load_dword v{48+tt}, v{V_G}, {WSR}, s23 offen offset:{tt*64}')
    o('s_waitcnt lgkmcnt(0)')
    for sg in range(2):
        for tt in range(2):
            for dt in range(2):
                d = DD + (tt * 2 + dt) * 4
                o(f'{MM} {vr(d,4)}, {vr(KT+(sg*2+dt)*4,4)}, {vr(PQ+8*tt+4*sg,4)}, ' + ('0' if sg == 0 else vr(d, 4)))
    o('s_nop 7')
    for tt in range(2):
        o(f'ds_bpermute_b32 v{50+tt}, v7, v{DD+8*tt+4}')
    o('s_waitcnt vmcnt(0) lgkmcnt(0)')
    for tt in range(2):
        o(f'v_add_f32 v{50+tt}, {f32(1e-6)}, v{50+tt}')
        o(f'v_rcp_f32 v{50+tt}, v{50+tt}')
    o('s_nop 0')
    for tt in range(2):
        d = DD + 8 * tt
        o(f'v_mul_f32 v{50+tt}, v{50+tt}, v{48+tt}')
        for r in range(8):
            o(f'v_mul_f32 v{d+r}, v{d+r}, v{50+tt}')
        for r in range(4):
            o(f'v_cvt_pk_bf16_f32 v{56+4*tt+r}, v{d+2*r}, v{d+2*r+1}')
        o(f'v_cndmask_b32 v{58+4*tt}, 0, v{58+4*tt}, s[48:49]')
        o(f'v_cndmask_b32 v{59+4*tt}, 0, v{59+4*tt}, s[48:49]')
        o(f'buffer_store_dwordx4 {vr(56+4*tt,4)}, v{V_L16}, {WSR}, s22 offen offset:{tt*1024} sc1')
    o(f'''
    v_add_u32 v{V_PH}, 4096, v{V_PH}
    s_add_u32 s22, s22, 32768
    s_add_u32 s23, s23, 128
    s_add_u32 s28, s28, 1
    s_cmp_lt_u32 s28, 8
    s_cbranch_scc1 {L2}
    s_lshl_b32 s30, s{S_J}, 7
    s_add_u32 s30, s30, {OFF_FL + FL_O}
    ''')
    signal(30)
    o(f's_branch {exit_label}')
LDS_HG = 131072
```

```python
import sys
from common import *
import prep, team as T, workers as W

LDS_K2 = 131072
HEAD = open('gated_mix__linear_kernel_hedgehog__memory_aug_recurrent_mem_tr__prompt.s.ref').read().split('; Override launch')[0]

def gen_main(o, name, diag=False, force_slow=False):
    X = name + '_exit'
    o.label(name)
    o(f'''
    s_cmp_ge_u32 s2, 256
    s_cbranch_scc1 {name}_end
    s_load_dwordx2 s[4:5], s[0:1], {KA_WS}
    s_load_dwordx2 s[8:9], s[0:1], {KA_OUT}
    s_load_dwordx2 s[12:13], s[0:1], {KA_DBG}
    s_load_dwordx2 s[44:45], s[0:1], {KA_WO}
    ''')
    if diag:
        o('s_memrealtime s[68:69]')
    o(f'''
    s_getreg_b32 s3, hwreg(HW_REG_XCC_ID)
    s_and_b32 s3, s3, 15
    s_mov_b32 s6, {WS_BYTES}
    s_mov_b32 s7, 0x20000
    s_mov_b32 s10, {2048*896}
    s_mov_b32 s11, 0x20000
    s_mov_b32 s14, 256
    s_mov_b32 s15, 0x20000
    s_mov_b32 s46, {448*896}
    s_mov_b32 s47, 0x20000
    s_mov_b32 s{T.S_BUD}, 400000
    v_lshrrev_b32 v1, 6, v0
    v_and_b32 v0, 63, v0
    v_readfirstlane_b32 s{T.S_W}, v1
    s_waitcnt lgkmcnt(0)
    s_cmp_lg_u32 s{T.S_W}, 0
    s_cbranch_scc1 {name}_c2
    v_mov_b32 v2, 1
    v_mov_b32 v3, 0
    s_lshl_b32 s20, s3, 2
    s_mov_b64 exec, 1
    buffer_atomic_add v2, v3, s[12:15], s20 offen sc0
    s_mov_b64 exec, -1
    v_and_b32 v3, 15, v0
    v_lshlrev_b32 v3, 2, v3
    s_waitcnt vmcnt(0)
    v_readfirstlane_b32 s21, v2                ; ticket
    {name}_c1:
    buffer_load_dword v4, v3, s[12:15], 0 offen sc1
    s_sub_u32 s{T.S_BUD}, s{T.S_BUD}, 1
    s_cbranch_scc1 {name}_end
    s_waitcnt vmcnt(0)
    v_mov_b32 v5, v4
    s_nop 1
    v_add_u32_dpp v5, v5, v5 row_ror:8 row_mask:0xf bank_mask:0xf
    s_nop 1
    v_add_u32_dpp v5, v5, v5 row_ror:4 row_mask:0xf bank_mask:0xf
    s_nop 1
    v_add_u32_dpp v5, v5, v5 row_ror:2 row_mask:0xf bank_mask:0xf
    s_nop 1
    v_add_u32_dpp v5, v5, v5 row_ror:1 row_mask:0xf bank_mask:0xf
    v_cmp_gt_u32 vcc, 256, v5
    s_cbranch_vccnz {name}_c1
    v_and_b32 v6, 15, v0
    v_cmp_gt_u32 vcc, s3, v6
    s_nop 1
    v_cndmask_b32 v5, 0, v4, vcc
    s_nop 1
    v_add_u32_dpp v5, v5, v5 row_ror:8 row_mask:0xf bank_mask:0xf
    s_nop 1
    v_add_u32_dpp v5, v5, v5 row_ror:4 row_mask:0xf bank_mask:0xf
    s_nop 1
    v_add_u32_dpp v5, v5, v5 row_ror:2 row_mask:0xf bank_mask:0xf
    s_nop 1
    v_add_u32_dpp v5, v5, v5 row_ror:1 row_mask:0xf bank_mask:0xf
    v_cmp_le_u32 vcc, {32 if not force_slow else 1000}, v4
    s_nop 0
    v_readfirstlane_b32 s22, v5
    s_ff1_i32_b32 s23, vcc_lo
    s_add_u32 s22, s22, s21
    s_cmp_lt_i32 s23, 0
    s_cbranch_scc1 {name}_c3
    s_add_u32 s24, s22, 32
    s_cmp_ge_u32 s3, s23
    s_cselect_b32 s22, s22, s24
    s_cmp_lt_u32 s21, 32
    s_cselect_b32 s24, s21, s22
    s_cmp_eq_u32 s3, s23
    s_cselect_b32 s22, s24, s22
    s_branch {name}_c4
    {name}_c3:
    s_or_b32 s22, s22, 0x10000
    {name}_c4:
    v_mov_b32 v2, s22
    v_mov_b32 v3, 0
    ds_write_b32 v3, v2
    s_waitcnt lgkmcnt(0)
    {name}_c2:
    s_barrier
    v_mov_b32 v3, 0
    ds_read_b32 v2, v3
    s_waitcnt lgkmcnt(0)
    v_readfirstlane_b32 s22, v2
    s_barrier
    s_lshr_b32 s{T.S_MODE}, s22, 16
    s_and_b32 s{T.S_MODE}, s{T.S_MODE}, 1
    s_and_b32 s22, s22, 255
    s_mov_b32 s85, s22
    s_cmp_ge_u32 s22, 32
    s_cbranch_scc1 {name}_w
    s_mov_b32 s{T.S_ROLE}, s22
    ''')
    T.gen_team_body(o, X)
    o.raw('.p2align 6')
    o.label(name + '_w')
    o(f'''
    s_sub_u32 s22, s22, 32
    s_cmp_ge_u32 s22, 192
    s_cbranch_scc1 {name}_hg
    s_mul_i32 s23, s22, 10923
    s_lshr_b32 s23, s23, 16
    s_mul_i32 s24, s23, 6
    s_sub_u32 s{W.S_J}, s22, s24
    s_and_b32 s{W.S_ID}, s23, 15
    s_cmp_ge_u32 s23, 16
    s_cbranch_scc1 {name}_ta
    ''')
    W.gen_WB(o, X)
    o.label(name + '_ta')
    W.gen_TA(o, X)
    o.label(name + '_hg')
    o(f'''
    s_sub_u32 s22, s22, 192
    s_lshr_b32 s{W.S_ID}, s22, 3
    s_and_b32 s{W.S_J}, s22, 7
    ''')
    W.gen_HG(o, X)
    o.label(X)
    if diag:
        o(f'''
        s_memrealtime s[72:73]
        s_waitcnt lgkmcnt(0)
        s_lshl_b32 s3, s85, 2
        s_add_u32 s3, s3, s{T.S_W}
        s_lshl_b32 s3, s3, 5
        s_add_u32 s3, s3, {OFF_END1}
        v_mov_b32 v1, 0
        s_mov_b64 exec, 1
        ''')
        for i, s in enumerate([68, 70, 72, T.S_BUD, T.S_MODE]):
            o(f'v_mov_b32 v2, s{s}')
            o(f'buffer_store_dword v2, v1, s[4:7], s3 offen offset:{4*i}')
        o('s_waitcnt vmcnt(0)')
    o.label(name + '_end')
    o('s_endpgm')

def build(diag=False, force_slow=False):
    T.CFG['flags'] = 1
    T.CFG['diag'] = int(diag)
    o = Asm()
    hdr = HEAD + f'; @launch kernel=prep_kernel grid=(256,1,1) block=(256,1,1) lds={prep.LDS_K1}\n' \
               + f'; @launch kernel=main_kernel grid=(256,1,1) block=(256,1,1) lds={LDS_K2}\n'
    o.raw('.amdgcn_target "amdgcn-amd-amdhsa--gfx950"\n.text\n.globl prep_kernel\n.p2align 8\n.type prep_kernel,@function')
    prep.gen_prep(o, 'prep_kernel')
    o.raw('.globl main_kernel\n.p2align 8\n.type main_kernel,@function')
    gen_main(o, 'main_kernel', diag, force_slow)
    o.raw('.section .rodata,"a"\n.p2align 6')
    o.raw(kd('prep_kernel', 256, 256, 80))
    o.raw('.p2align 6')
    o.raw(kd('main_kernel', 512, 256, 96))
    return hdr + o.text()

if __name__ == '__main__':
    for a in sys.argv[2:]:
        if '=' in a:
            k, v = a.split('='); T.CFG[k] = int(v)
    open(sys.argv[1], 'w').write(build('diag' in sys.argv, 'slow' in sys.argv))
```

```python
from common import *

L_M, L_X = 57344, 143360
LDS_K1 = L_X + 17 * 912 + 128
MM = 'v_mfma_f32_16x16x32_bf16'
DIAG = False
CFG = dict(sc1=1, rot=1)

def fin(o):
    if CFG.get('slp'): o(f"s_sleep {CFG['slp']}")
    if DIAG:
        o(f'''
        s_waitcnt vmcnt(0)
        s_memrealtime s[74:75]
        s_lshl_b32 s3, s2, 2
        s_lshr_b32 s16, s16, 1
        s_add_u32 s3, s3, s16
        s_lshl_b32 s3, s3, 4
        s_add_u32 s3, s3, {OFF_END1 + 65536}
        v_mov_b32 v1, 0
        s_waitcnt lgkmcnt(0)
        v_mov_b32 v2, s72
        v_mov_b32 v3, s74
        v_mov_b32 v4, s76
        v_mov_b32 v5, s78
        buffer_store_dwordx4 v[2:5], v1, s[4:7], s3 offen
        ''')
    o('s_endpgm')

def mrow(o, d, t):
    o(f'''
    v_bfe_u32 v{d}, v0, 3, 1
    v_lshlrev_b32 v{d}, 4, v{d}
    v_bfe_u32 v{t}, v0, 1, 1
    v_lshl_add_u32 v{d}, v{t}, 3, v{d}
    v_bfe_u32 v{t}, v0, 2, 1
    v_lshl_add_u32 v{d}, v{t}, 2, v{d}
    v_and_b32 v{t}, 1, v0
    v_add_u32 v{d}, v{d}, v{t}
    ''')

def gen_prep(o, name):
    SC = ' sc1' if CFG['sc1'] else ''
    o.label(name)
    o(f'''
    s_cmp_ge_u32 s2, 256
    s_cbranch_scc1 {name}_end
    {'s_memrealtime s[72:73]' if DIAG else ''}
    s_load_dwordx2 s[4:5], s[0:1], {KA_WS}
    s_load_dwordx4 s[44:47], s[0:1], {KA_WQ}
    s_load_dwordx4 s[48:51], s[0:1], {KA_WV}
    s_load_dwordx2 s[56:57], s[0:1], {KA_MEM0}
    s_mov_b32 s58, 7168
    s_mov_b32 s59, 0x20000
    s_load_dwordx2 s[52:53], s[0:1], {KA_AX}
    s_load_dwordx2 s[60:61], s[0:1], {KA_GATE}
    v_lshrrev_b32 v1, 6, v0
    v_and_b32 v0, 63, v0
    v_readfirstlane_b32 s16, v1
    v_lshlrev_b32 v1, 4, v0                    ; l*16
    v_and_b32 v2, 15, v0                       ; n
    v_lshrrev_b32 v3, 4, v0                    ; q
    s_mov_b32 s6, {WS_BYTES}
    s_mov_b32 s7, 0x20000
    s_mov_b32 s10, {448*8192}
    s_mov_b32 s11, 0x20000
    s_mov_b32 s14, {448*8192}
    s_mov_b32 s15, 0x20000
    ''')
    o(f'''
    s_and_b32 s17, s2, 31                      ; matrix
    s_bfe_u32 s18, s2, 0x10005
    s_lshr_b32 s20, s2, 6
    s_and_b32 s19, s2, 7
    s_lshl_b32 s19, s19, 1
    s_lshr_b32 s21, s17, 3
    s_add_u32 s19, s19, s21
    s_and_b32 s19, s19, 15
    s_lshl_b32 s21, s19, 9
    v_lshrrev_b32 v4, 3, v0
    v_and_b32 v5, 7, v0
    v_xor_b32 v5, v5, v4
    v_lshlrev_b32 v5, 4, v5
    v_lshl_add_u32 v4, v4, 13, v5
    s_lshr_b32 s33, s2, 4
    s_lshl_b32 s33, s33, 3
    s_and_b32 s22, s2, 7
    s_add_u32 s33, s33, s22
    s_cmp_eq_u32 s16, 7
    s_cbranch_scc1 {name}_misc
    s_lshl_b32 s22, s16, 6
    v_add_u32 v5, s22, v0
    v_mul_u32_u24 v6, 4682, v5
    v_lshrrev_b32 v6, 16, v6
    v_mul_u32_u24 v7, 14, v6
    v_sub_u32 v5, v5, v7
    v_lshlrev_b32 v5, 4, v5
    v_mul_u32_u24 v6, 896, v6
    v_add_u32 v5, v5, v6
    s_mul_i32 s24, s18, 7
    s_add_u32 s24, s24, s16
    s_lshl_b32 s25, s24, 18
    s_add_u32 s25, s25, s21
    s_mul_i32 s26, s16, 12288
    s_add_u32 s26, s26, {L_M}
    s_waitcnt lgkmcnt(0)
    s_cmp_ge_u32 s17, 16
    s_cbranch_scc1 {name}_B
    ''')
    ACC, FA, FB = 32, 88, 128
    acc = lambda mt, t: ACC + (mt * 7 + t) * 4
    def stage_m(i):
        return ['\n'.join([f's_add_u32 m0, s{40+p}, {(i % 3)*4096}', f's_add_u32 s23, s{36+p}, {i*128}',
                           'buffer_load_dwordx4 v4, s[8:11], s23 offen lds']) for p in range(4)]
    def body(isB):
        def stage_n(i):
            return ['\n'.join([f's_add_u32 m0, s{(28, 34)[p]}, {i*14336}', f's_add_u32 s23, s{(27, 29)[p]}, {i*(57344 if isB else 128)}',
                               f'buffer_load_dwordx4 v{5 if isB else 4}, s[12:15], s23 offen lds']) for p in range(2)]
        if isB:
            o('s_mov_b32 s8, s48\ns_mov_b32 s9, s49\ns_mov_b32 s12, s50\ns_mov_b32 s13, s51')
            o(f'''
            s_mul_i32 s27, s19, 229376
            s_mul_i32 s22, s20, 224
            s_add_u32 s27, s27, s22
            s_lshl_b32 s28, s16, 10
            ''')
        else:
            o('s_mov_b32 s8, s44\ns_mov_b32 s9, s45\ns_mov_b32 s12, s46\ns_mov_b32 s13, s47')
            o(f'''
            s_mul_i32 s27, s20, 7
            s_add_u32 s27, s27, s16
            s_lshl_b32 s27, s27, 17
            s_add_u32 s27, s27, s21
            s_lshl_b32 s28, s16, 11
            ''')
        ds, dl = (28672, 7168) if isB else (65536, 1024)
        o(f'''
        s_add_u32 s29, s27, {ds}
        s_add_u32 s34, s28, {dl}
        s_cmp_eq_u32 s18, 1
        s_cselect_b32 s22, s29, s27
        s_cselect_b32 s29, s27, s29
        s_mov_b32 s27, s22
        s_cselect_b32 s22, s34, s28
        s_cselect_b32 s34, s28, s34
        s_mov_b32 s28, s22
        ''')
        o(stage_n(0)[0])
        for p in range(4):
            o(f's_add_u32 s22, s20, {p}\ns_and_b32 s22, s22, 3\ns_lshl_b32 s23, s22, 16\ns_add_u32 s{36+p}, s25, s23\ns_lshl_b32 s23, s22, 10\ns_add_u32 s{40+p}, s26, s23')
            o(stage_m(0)[p])
            if p == 1:
                o(stage_n(0)[1])
        LA = o.new('Larm')
        if not isB:
            o(f's_lshl_b32 s22, s2, 3\ns_add_u32 s22, s22, s16\ns_cmp_lg_u32 s22, {9*8}\ns_cbranch_scc1 {LA}')
            mem0_image(o, SC)
            o.label(LA)
        mrow(o, 6, 7)
        for beta in range(2):
            for ksp in range(2):
                d = 8 + 2 * beta + ksp
                o(f'''
                v_add_u32 v7, {2*beta}, v6
                v_add_u32 v{d}, {4*ksp}, v3
                v_xor_b32 v{d}, v{d}, v7
                v_and_b32 v{d}, 7, v{d}
                v_lshlrev_b32 v{d}, 4, v{d}
                v_lshl_add_u32 v{d}, v7, 7, v{d}
                v_add_u32 v{d}, s26, v{d}
                ''')
        if isB:
            o(f'''
            v_lshrrev_b32 v14, 2, v2
            v_lshl_add_u32 v14, v3, 3, v14
            v_mul_u32_u24 v14, 224, v14
            v_and_b32 v7, 3, v0
            v_lshl_add_u32 v14, v7, 3, v14
            s_mul_i32 s22, s20, 112
            s_and_b32 s30, s19, 3
            s_mul_i32 s30, s30, 28
            ''')
            for t in range(7):
                d = 20 + t
                o(f'''
                v_add_u32 v16, s22, v2
                v_add_u32 v16, {16*t}, v16                 ; c
                v_mul_u32_u24 v17, 2341, v16
                v_lshrrev_b32 v17, 16, v17                 ; b = c / 28
                v_mul_u32_u24 v18, 28, v17
                v_sub_u32 v16, v16, v18                    ; cl
                v_and_b32 v18, 1, v16
                v_mul_u32_u24 v18, 14, v18
                v_lshrrev_b32 v16, 1, v16
                v_add3_u32 v16, v16, v18, s30              ; p
                v_mul_u32_u24 v{d}, {HSZ}, v17
                v_lshrrev_b32 v18, 4, v16
                v_mul_u32_u24 v18, 14336, v18
                v_add_u32 v{d}, v{d}, v18
                v_and_b32 v16, 15, v16
                v_lshl_add_u32 v16, v3, 4, v16
                v_lshl_add_u32 v{d}, v16, 4, v{d}
                ''')
            o(f'''
            s_lshr_b32 s31, s19, 2
            s_mul_i32 s31, s31, {7*14336}
            s_add_u32 s31, s31, {OFF_BT}
            ''')
        else:
            for ksp in range(2):
                d = 14 + ksp
                o(f'''
                v_add_u32 v{d}, {4*ksp}, v3
                v_xor_b32 v{d}, v{d}, v2
                v_and_b32 v{d}, 7, v{d}
                v_lshlrev_b32 v{d}, 4, v{d}
                v_lshl_add_u32 v{d}, v2, 7, v{d}
                ''')
            o(f'''
            s_mov_b32 s30, {f32(LOG2E/16)}
            s_mul_i32 s31, s19, {HSZ}
            s_mul_i32 s22, s20, {7*14336}
            s_add_u32 s31, s31, s22
            s_add_u32 s31, s31, {OFF_AF}
            ''')
        o('s_lshl_b32 s22, s24, 10\ns_add_u32 s31, s31, s22')
        def reads(i):
            fa, fb = FA + 16 * (i & 1), FB + 56 * (i & 1)
            g = [[]]
            for ksp in range(2):
                for mt in range(2):
                    g[0].append(f'ds_read_b128 {vr(fa+8*ksp+4*mt,4)}, v{8+2*mt+ksp} offset:{(i % 3)*4096}')
            for ksp in range(2):
                for t in range(7):
                    d = fb + 28 * ksp + 4 * t
                    if isB:
                        g.append([f'ds_read_b64_tr_b16 {vr(d+2*rd,2)}, v14 offset:{i*14336 + (32*ksp+4*rd)*224 + 32*t}' for rd in range(2)])
                    else:
                        g.append([f'ds_read_b128 {vr(d,4)}, v{14+ksp} offset:{i*14336 + t*2048}'])
            return g
        o('s_waitcnt vmcnt(0)\ns_barrier')
        if DIAG: o('s_memrealtime s[76:77]\ns_memtime s[66:67]\ns_waitcnt lgkmcnt(0)')
        for g in reads(0):
            for r in g:
                o(r)
        for i in range(4):
            fa, fb = FA + 16 * (i & 1), FB + 56 * (i & 1)
            nxt, dma = [], []
            if i < 3:
                o('s_waitcnt lgkmcnt(0)\ns_barrier')
                nxt = reads(i + 1)
            else:
                o('s_waitcnt lgkmcnt(0)')
            if nxt:
                for r in nxt[0]:
                    o(r)
            for k in range(14):
                ksp, t = divmod(k, 7)
                for mt in range(2):
                    c = '0' if (i == 0 and ksp == 0) else vr(acc(mt, t), 4)
                    o(f'{MM} {vr(acc(mt,t),4)}, {vr(fa+8*ksp+4*mt,4)}, {vr(fb+28*ksp+4*t,4)}, {c}')
                    if mt == 0 and nxt:
                        for r in nxt[1 + k]:
                            o(r)
                if k % 2 == 1 and k // 2 < len(dma):
                    o(dma[k // 2])
        if DIAG: o('s_memrealtime s[78:79]\ns_memtime s[68:69]\ns_waitcnt lgkmcnt(0)' + ('\ns_sub_u32 s72, s68, s66' if CFG.get('clk') else ''))
        o('s_nop 7')
        for t in range(7):
            a, b = acc(0, t), acc(1, t)
            if not isB:
                for r in range(4):
                    o(f'v_mul_f32 v{a+r}, s30, v{a+r}')
                    o(f'v_mul_f32 v{b+r}, s30, v{b+r}')
            o(f'v_cvt_pk_bf16_f32 v{a}, v{a}, v{a+1}')
            o(f'v_cvt_pk_bf16_f32 v{a+1}, v{a+2}, v{a+3}')
            o(f'v_cvt_pk_bf16_f32 v{a+2}, v{b}, v{b+1}')
            o(f'v_cvt_pk_bf16_f32 v{a+3}, v{b+2}, v{b+3}')
            if isB:
                o(f'buffer_store_dwordx4 {vr(a,4)}, v{20+t}, s[4:7], s31 offen')
            else:
                o(f'buffer_store_dwordx4 {vr(a,4)}, v1, s[4:7], s31 offen{SC}')
                o(f's_add_u32 s31, s31, 14336')
        if DIAG:
            o(f's_cmp_eq_u32 s16, 6\ns_cbranch_scc1 {name}_end')
        fin(o)
    body(False)
    o.label(name + '_B')
    body(True)
    o.label(name + '_misc')
    if CFG.get('warm'):
        o(f'''
        s_getpc_b64 s[36:37]
        {name}_pc:
        s_sub_u32 s36, s36, {name}_pc-{name}
        s_subb_u32 s37, s37, 0
        v_lshlrev_b32 v250, 7, v0
        global_load_dword v251, v250, s[36:37]
        v_add_u32 v250, 8192, v250
        v_min_u32 v250, {name}_end-{name}, v250
        global_load_dword v252, v250, s[36:37]
        ''')
    o(f'''
    s_mov_b32 s54, {2048*896}
    s_mov_b32 s55, 0x20000
    s_mov_b32 s62, 896
    s_mov_b32 s63, 0x20000
    s_mul_i32 s35, s33, 14336
    s_waitcnt lgkmcnt(0)
    s_cmp_ge_u32 s17, 16
    s_cselect_b32 s8, s48, s44
    s_cselect_b32 s9, s49, s45
    s_cselect_b32 s12, s50, s46
    s_cselect_b32 s13, s51, s47
    s_cselect_b64 vcc, -1, 0
    s_bitcmp1_b32 s2, 3
    s_cbranch_scc1 {name}_nox
    s_mov_b32 exec_hi, 0x00ffffff
    ''')
    for i in range(16):
        o(f's_mov_b32 m0, {L_X + i*912}')
        o(f's_add_u32 s22, s35, {i*896}')
        o(f'buffer_load_dwordx4 v1, s[52:55], s22 offen lds')
    o(f's_mov_b32 m0, {L_X + 16*912}')
    o('s_nop 0')
    o('buffer_load_dwordx4 v1, s[60:63], 0 offen lds')
    o('s_mov_b64 exec, -1')
    o.label(name + '_nox')
    for w in range(7):
        o(f'''
        v_add_u32 v5, {64*w}, v0
        v_mul_u32_u24 v6, 4682, v5
        v_lshrrev_b32 v6, 16, v6
        v_mul_u32_u24 v7, 14, v6
        v_sub_u32 v5, v5, v7
        v_lshlrev_b32 v5, 4, v5
        v_mul_u32_u24 v6, 896, v6
        v_add_u32 v5, v5, v6
        v_add_u32 v6, {w*131072}, v4
        v_cndmask_b32 v{20+w}, v6, v5, vcc
        ''')
    o(f'''
    s_mul_i32 s27, s19, 229376
    s_mul_i32 s22, s20, 224
    s_add_u32 s27, s27, s22
    s_mul_i32 s22, s20, {7*131072}
    s_add_u32 s22, s22, s21
    s_mov_b32 s23, 65536
    s_mov_b32 s24, 1024
    s_mov_b32 s30, 2048
    s_mov_b32 s31, 128
    s_cmp_ge_u32 s17, 16
    s_cselect_b32 s27, s27, s22
    s_cselect_b32 s23, 28672, s23
    s_cselect_b32 s24, 7168, s24
    s_cselect_b32 s30, 1024, s30
    s_cselect_b32 s31, 57344, s31
    s_add_u32 s29, s27, s23
    s_cmp_eq_u32 s18, 1
    s_cselect_b32 s22, s29, s27
    s_cselect_b32 s29, s27, s29
    s_mov_b32 s27, s22
    s_cselect_b32 s28, s24, 0
    s_cselect_b32 s34, 0, s24
    s_mul_i32 s25, s18, {7*262144}
    s_add_u32 s25, s25, s21
    ''')
    for p in range(4):
        o(f's_add_u32 s22, s20, {p}\ns_and_b32 s22, s22, 3\ns_lshl_b32 s23, s22, 16\ns_add_u32 s{36+p}, s25, s23\ns_lshl_b32 s{40+p}, s22, 10')
    def ld_n(i, p):
        o(f's_add_u32 s{(27, 29)[p]}, s{(27, 29)[p]}, s31')
        o(f's_add_u32 s22, s{(28, 34)[p]}, {i*14336}')
        for w in range(7):
            o('s_mov_b32 m0, s22')
            o('s_add_u32 s22, s22, s30')
            o(f'buffer_load_dwordx4 v{20+w}, s[12:15], s{(27, 29)[p]} offen lds')
    def ld_m(i, p):
        for w in range(7):
            o(f's_add_u32 m0, s{40+p}, {L_M + w*12288 + (i % 3)*4096}')
            o(f's_add_u32 s23, s{36+p}, {w*262144 + i*128}')
            o('buffer_load_dwordx4 v4, s[8:11], s23 offen lds')
    def half(i, h):
        ld_n(i, h); ld_m(i, 2 * h); ld_m(i, 2 * h + 1)
    half(1, 0); half(1, 1)
    o('s_barrier\ns_waitcnt vmcnt(42)')
    half(2, 0)
    o('s_waitcnt vmcnt(21)\ns_barrier')
    half(2, 1); half(3, 0)
    o('s_waitcnt vmcnt(21)\ns_barrier')
    half(3, 1)
    o('s_waitcnt vmcnt(0)\ns_barrier')
    GW, XR = 32, 96
    o(f'''
    s_bitcmp1_b32 s2, 3
    s_cbranch_scc1 {name}_arm
    s_mov_b32 s17, s33
    s_mov_b32 s18, s35
    v_lshlrev_b32 v4, 4, v3
    v_add_u32 v4, {L_X + 16*912}, v4
    v_mul_u32_u24 v5, 912, v2
    v_lshl_add_u32 v5, v3, 4, v5
    v_add_u32 v5, {L_X}, v5
    v_and_b32 v6, 8, v0
    v_and_b32 v7, 1, v0
    v_lshl_add_u32 v6, v7, 2, v6
    v_bfe_u32 v7, v0, 2, 1
    v_lshl_add_u32 v6, v7, 1, v6
    v_bfe_u32 v7, v0, 1, 1
    v_add_u32 v6, v6, v7
    v_mul_u32_u24 v6, 912, v6
    v_lshrrev_b32 v7, 1, v3
    v_lshl_add_u32 v6, v7, 5, v6
    v_and_b32 v7, 1, v3
    v_lshl_add_u32 v6, v7, 3, v6
    v_add_u32 v6, {L_X}, v6
    s_lshr_b32 s20, s17, 1
    s_mul_i32 s20, s20, {SBS}
    s_and_b32 s21, s17, 1
    s_mul_i32 s21, s21, 14336
    s_add_u32 s20, s20, s21
    s_add_u32 s20, s20, {OFF_XN}
    s_add_u32 s21, s18, {OFF_XP}
    s_waitcnt vmcnt(0)
    ''')
    for ks in range(14):
        o(f'ds_read_b128 {vr(XR+4*ks,4)}, v5 offset:{ks*64}')
    XQ = XR + 56
    for ks in range(14):
        o(f'ds_read_b128 {vr(GW+4*ks,4)}, v4 offset:{ks*64}')
    o('s_waitcnt lgkmcnt(0)')
    for ks in range(14):
        o(f'ds_read2_b32 {vr(XQ+4*ks,2)}, v6 offset0:{16*ks} offset1:{16*ks+4}')
        o(f'ds_read2_b32 {vr(XQ+4*ks+2,2)}, v6 offset0:{16*ks+1} offset1:{16*ks+5}')
        o(f'buffer_store_dwordx4 {vr(XR+4*ks,4)}, v1, s[4:7], s20 offen offset:{(ks&3)*1024}{SC}')
        if ks & 3 == 3:
            o('s_add_u32 s20, s20, 4096')
    o('v_mov_b32 v8, 0\nv_mov_b32 v9, 0')
    for ks in range(14):
        for r in range(4):
            o(f'v_dot2_f32_bf16 v{8+(r&1)}, v{XR+4*ks+r}, v{GW+4*ks+r}, v{8+(r&1)}')
    o('s_waitcnt lgkmcnt(0)')
    for ks in range(14):
        o(f'buffer_store_dwordx4 {vr(XQ+4*ks,4)}, v1, s[4:7], s21 offen offset:{(ks&3)*1024}{SC}')
        if ks & 3 == 3:
            o('s_add_u32 s21, s21, 4096')
    o(f'''
    v_add_f32 v8, v8, v9
    v_xor_b32 v10, 16, v0
    v_lshlrev_b32 v10, 2, v10
    ds_bpermute_b32 v9, v10, v8
    v_xor_b32 v10, 32, v0
    v_lshlrev_b32 v10, 2, v10
    s_waitcnt lgkmcnt(0)
    v_add_f32 v8, v8, v9
    ds_bpermute_b32 v9, v10, v8
    s_waitcnt lgkmcnt(0)
    v_add_f32 v8, v8, v9
    v_mul_f32 v8, {f32(-LOG2E)}, v8
    v_exp_f32 v8, v8
    s_nop 0
    v_add_f32 v8, 1.0, v8
    v_rcp_f32 v8, v8
    v_lshlrev_b32 v10, 2, v2
    s_lshl_b32 s22, s17, 6
    s_add_u32 s22, s22, {OFF_G}
    buffer_store_dword v8, v10, s[4:7], s22 offen
    ''')
    fin(o)
    o.label(name + '_arm')
    arm(o, name, SC)
    fin(o)
    o.label(name + '_end')
    o('s_endpgm')

def arm(o, name, SC):
    o(f'''
    s_lshr_b32 s64, s33, 1                     ; step
    s_and_b32 s65, s33, 1
    s_lshl_b32 s65, s65, 5
    s_add_u32 s71, s65, 32
    s_mul_i32 s66, s64, {SBS}
    s_add_u32 s66, s66, {OFF_SB}
    s_mul_i32 s67, s64, {SCS}
    s_add_u32 s67, s67, {OFF_SC - 17*1024}
    v_mov_b32 v240, -1
    v_mov_b32 v241, -1
    v_mov_b32 v242, -1
    v_mov_b32 v243, -1
    {name}_a1:
    s_cmp_lt_u32 s65, 17
    s_cselect_b32 s69, s66, s67
    s_cselect_b32 s70, 0, 17
    s_sub_u32 s70, s65, s70
    s_lshl_b32 s68, s64, 3
    s_add_u32 s70, s70, s68
    s_cmp_lt_u32 s70, 7
    s_cbranch_scc1 {name}_a4
    s_lshl_b32 s68, s65, 10
    s_add_u32 s69, s69, s68
    buffer_store_dwordx4 v[240:243], v1, s[4:7], s69 offen{SC}
    {name}_a4:
    s_add_u32 s65, s65, 1
    s_cmp_lt_u32 s65, s71
    s_cbranch_scc1 {name}_a1
    s_cmp_eq_u32 s33, 127
    s_cbranch_scc0 {name}_a2
    v_mov_b32 v244, 0
    v_mov_b32 v245, 0
    v_mov_b32 v246, 0
    v_mov_b32 v247, 0
    s_mov_b32 s69, {OFF_FL}
    s_mov_b32 s70, {OFF_FL + 4096}
    ''')
    for i in range(8):
        o(f'buffer_store_dwordx4 v[244:247], v1, s[4:7], s{69+(i>>2)} offen offset:{(i&3)*1024}{SC}')
    o.label(name + '_a2')

def mem0_image(o, SC):
    o(f'''
    v_lshrrev_b32 v238, 2, v2
    v_lshlrev_b32 v238, 1, v238
    v_and_b32 v239, 1, v0
    v_add_u32 v238, v238, v239
    v_mul_u32_u24 v238, 896, v238
    v_lshl_add_u32 v238, v3, 5, v238
    v_bfe_u32 v239, v0, 1, 1
    v_lshl_add_u32 v238, v239, 4, v238
    ''')
    for kk in range(7):
        o(f'buffer_load_dwordx4 {vr(124+4*kk,4)}, v238, s[56:59], 0 offen offset:{kk*128}')
    o(f'''
    s_mov_b32 s66, {OFF_MEMI}
    s_mov_b32 s67, {OFF_MEMI + 4096}
    s_mov_b32 s68, {OFF_MEMG}
    s_mov_b32 s69, {OFF_MEMG + 4096}
    s_waitcnt vmcnt(0)
    ''')
    for r in range(28):
        o(f'v_min_u32 v{124+r}, 0xfffffffe, v{124+r}')
    for kk in range(7):
        o(f'buffer_store_dwordx4 {vr(124+4*kk,4)}, v1, s[4:7], s{66+(kk>>2)} offen offset:{(kk&3)*1024}{SC}')
        o(f'buffer_store_dwordx4 {vr(124+4*kk,4)}, v1, s[4:7], s{68+(kk>>2)} offen offset:{(kk&3)*1024}{SC}')

def gen_hf(o):
    LP = o.new('Lphi')
    mrow(o, 6, 7)
    o(f'''
    v_mul_u32_u24 v6, 2688, v6
    v_lshl_add_u32 v6, v3, 4, v6
    s_mul_i32 s22, s33, {224*2688}
    s_mul_i32 s23, s35, 896
    s_add_u32 s22, s22, s23
    s_mul_i32 s23, s34, 56
    s_add_u32 s22, s22, s23
    ''')
    AFR = 32
    for k7 in range(7):
        for beta in range(2):
            d = AFR + (k7 * 2 + beta) * 4
            o(f's_add_u32 s23, s22, {(32*k7 + 2*beta)*2688}')
            o(f'buffer_load_dwordx2 {vr(d,2)}, v6, s[52:55], s23 offen')
            o(f'buffer_load_dwordx2 {vr(d+2,2)}, v6, s[52:55], s23 offen offset:8')
    PH, PT = 96, 104
    o(f'''
    v_mul_u32_u24 v7, {8*56}, v3
    v_lshl_add_u32 v7, v2, 1, v7
    v_mov_b32 v9, {OOB}
    v_cmp_gt_u32 vcc, 12, v2
    s_mul_i32 s23, s34, 1568
    s_nop 0
    v_cndmask_b32 v8, v9, v7, vcc
    v_cmp_gt_u32 vcc, 3, v3
    s_nop 1
    v_cndmask_b32 v10, v9, v7, vcc             ; e >= 4: q < 3
    v_cndmask_b32 v11, v9, v8, vcc
    ''')
    for nt in range(2):
        for e in range(8):
            va = (7, 8, 10, 11)[nt + 2 * (e >= 4)]
            o(f'buffer_load_ushort v{PT+8*nt+e}, v{va}, s[56:59], s23 offen offset:{e*56 + nt*32}')
    o(f'''
    s_waitcnt vmcnt(0)
    s_mov_b32 s30, {f32(LOG2E)}
    s_cmp_lg_u32 s35, 2
    s_cbranch_scc1 {LP}
    s_mov_b32 s30, 1.0
    v_lshlrev_b32 v7, 3, v3
    v_sub_u32 v7, v2, v7                       ; n - 8q
    v_mov_b32 v8, 0x3f80
    v_cmp_gt_u32 vcc, 12, v2
    s_nop 1
    v_cndmask_b32 v9, 0, v8, vcc
    ''')
    for nt in range(2):
        for e in range(8):
            o(f'v_cmp_eq_u32 vcc, {e - 16*nt}, v7')
            o('s_nop 1')
            o(f'v_cndmask_b32 v{PT+8*nt+e}, 0, v{8+nt}, vcc')
    o.label(LP)
    for nt in range(2):
        for r in range(4):
            o(f'v_lshl_or_b32 v{PH+4*nt+r}, v{PT+8*nt+2*r+1}, 16, v{PT+8*nt+2*r}')
    o(f'''
    s_mul_i32 s31, s34, {HFH}
    s_mul_i32 s23, s35, {2*14336}
    s_add_u32 s31, s31, s23
    s_mul_i32 s23, s33, 7168
    s_add_u32 s31, s31, s23
    s_add_u32 s31, s31, {OFF_HF}
    s_add_u32 s32, s31, 14336
    ''')
    D = 124
    for k7 in range(7):
        for nt in range(2):
            for beta in range(2):
                o(f'{MM} {vr(D+16*k7+8*nt+4*beta,4)}, {vr(AFR+(k7*2+beta)*4,4)}, {vr(PH+4*nt,4)}, 0')
    o('s_nop 7')
    for k7 in range(7):
        for nt in range(2):
            a = D + 16 * k7 + 8 * nt
            for r in range(8):
                o(f'v_mul_f32 v{a+r}, s30, v{a+r}')
            for r in range(4):
                o(f'v_cvt_pk_bf16_f32 v{a+r}, v{a+2*r}, v{a+2*r+1}')
            o(f'buffer_store_dwordx4 {vr(a,4)}, v1, s[4:7], s{31+nt} offen offset:{(k7&3)*1024} sc1')
        if k7 == 3:
            o('s_add_u32 s31, s31, 4096\ns_add_u32 s32, s32, 4096')
```

```python
from common import *

S_WS, S_DBG = 4, 12
S_W, S_ROLE, S_STEP, S_BUD = 16, 17, 18, 19
S_M0, S_M1 = 20, 21
S_T0, S_T1, S_T2, S_T3 = 22, 23, 24, 25
S_PB = 26
S_X0, S_X1 = 27, 28
S_Z = 30
S_MO = 35
S_MG = 36
S_MODE = 37
S_TOUCH = 38
S_ZP = 39
S_FM = 82
S_FA = 84
S_ST = 40

V_L16, V_IDX = 1, 2
V_TW, V_TR = 3, 4
V_A0, V_A1, V_A2, V_A3, V_A4, V_A5, V_A6, V_A7 = 5, 6, 7, 8, 9, 10, 11, 12
V_TMP = 13
V_MEMF = 16
V_ACC = 44
V_XK = 72
V_MK = 104
V_WT = 120

L_MEMS = 0
L_TIMG = 7424
L_SP = L_TIMG + 8192
L_ZERO = L_SP + 8192
L_END = L_ZERO + 1024

CFG = dict(ne=5, lg0=12, lgs=6, dP=2, spP=8, spec=1, specB=1, mask=0, dA=2, dBm=1, flags=0, diag=1, gapA=47, gapB=16, gapB2=20, sp=6, ahead=1, f1=3, f2=4, tw=1, tl=56, xg=(2, 6, 10, 14, 18))

def wreg(t, j):
    u = t * 7 + j
    return ar(8 * u, 8) if u < 32 else vr(V_WT + 8 * (u - 32), 8)
def wreg_half(t, j, hf):
    u = t * 7 + j
    return ar(8 * u + 4 * hf, 4) if u < 32 else vr(V_WT + 8 * (u - 32) + 4 * hf, 4)
def acc(t): return V_ACC + 4 * t
def memf(j): return V_MEMF + 4 * j
def SM(d, a, b): return f'v_smfmac_f32_16x16x64_bf16 {vr(d,4)}, {vr(a,4)}, {b}, v{V_IDX}'
def M(t, j): return SM(acc(t), memf(j), wreg(t, j))
def zero(r): return f'v_mov_b32 v{r}, 0'
def zero4(a): return [zero(a + i) for i in range(4)]

def zero_ds(a): return f'ds_read_b128 {vr(a,4)}, v{V_L16} offset:{L_ZERO}'
def pause(o, n):
    if CFG.get('nops'):
        for _ in range(n // 4):
            o('s_nop 15')
    elif n >= 4:
        o(f's_sleep {n // 4}')
    if n % 4:
        o(f's_nop {4 * (n % 4) - 1}')

def post(t):
    a = acc(t)
    return [f'v_add_f32 v{a}, v{a}, v{a+2}', f'v_add_f32 v{a+1}, v{a+1}, v{a+3}',
            f'v_cvt_pk_bf16_f32 v{a}, v{a}, v{a+1}', f'ds_write_b32 v{V_TW}, v{a} offset:{t*256}']

def merge(o, main, fill):
    for i, m in enumerate(main):
        o(m)
        for f in fill.get(i, []):
            o(f)

LIGHT = None
MARK = False
VERIFY = None
def stamp(o, k, on):
    if MARK:
        o(f'; MARK {k}')
    if on or (LIGHT and k in LIGHT):
        o(f's_memtime {sr(S_ST+2*k,2)}')

def trace(o, reset=False):
    if CFG.get('trace'):
        if reset:
            o('s_mov_b32 s76, 0')
        o('s_memtime s[78:79]\ns_waitcnt lgkmcnt(0)\ns_mov_b32 m0, s76\ns_nop 0\nv_writelane_b32 v0, s78, m0\ns_add_u32 s76, s76, 1\ns_and_b32 s76, s76, 63')

def flags_reload(o):
    o(f'''
    v_lshrrev_b32 v{V_TMP+1}, 2, v{V_L16}
    buffer_load_dword v{V_TMP}, v{V_TMP+1}, {sr(S_WS,4)}, s{S_FA} offen sc1
    s_waitcnt vmcnt(0)
    v_cmp_ne_u32 {sr(S_FM,2)}, 0, v{V_TMP}
    s_nop 0
    ''')

def mem_issue(o):
    o(f'buffer_load_dwordx4 {vr(memf(0),4)}, v{V_L16}, {sr(S_WS,4)}, s{S_M0} offen sc1')
    o(f'buffer_load_dwordx4 {vr(memf(1),4)}, v{V_L16}, {sr(S_WS,4)}, s{S_M1} offen sc1')

def poll_and_head(o, w, exit_label, extra_reads, fill2, stamps, early=(), after_barrier=None, depth=2):
    kk = [(j + 2 * w) % 7 for j in range(7)]
    L, OK = o.new('Lpm'), o.new('Lok')
    m = memf(0)
    dp = depth
    o(f's_branch {OK}')
    o.label(L)
    if CFG['mask']:
        o('s_mov_b64 exec, vcc')
    mem_issue(o)
    if CFG['mask']:
        o('s_mov_b64 exec, -1')
    o(f's_sub_u32 s{S_BUD}, s{S_BUD}, 1')
    o(f's_cbranch_scc1 {exit_label}')
    if CFG['spec']:
        o('s_nop 2')
        for z in zero4(acc(0)) + zero4(acc(1)):
            o(z)
    o.label(OK)
    o(f's_waitcnt vmcnt({2*dp-1})')
    o(f'v_max3_u32 v{V_TMP}, v{m}, v{m+1}, v{m+2}')
    o(f's_waitcnt vmcnt({2*dp-2})')
    trace(o)
    stamp(o, 0, stamps)
    o(f'v_max3_u32 v{V_TMP+1}, v{m+4}, v{m+5}, v{m+6}')
    o(f'v_max3_u32 v{V_TMP}, v{m+3}, v{m+7}, v{V_TMP}')
    if CFG['spec']:
        o(M(0, 0))
    o(f'v_max_u32 v{V_TMP}, v{V_TMP}, v{V_TMP+1}')
    o(f'v_cmp_eq_u32 vcc, -1, v{V_TMP}')
    if CFG['spec']:
        o(M(1, 0))
        o(f'ds_write_b128 v{V_L16}, {vr(memf(0),4)} offset:{L_MEMS+kk[0]*1024}')
        o(f's_cbranch_vccnz {L}')
    else:
        o(f's_cbranch_vccnz {L}')
        o(M(0, 0))
        o(f'ds_write_b128 v{V_L16}, {vr(memf(0),4)} offset:{L_MEMS+kk[0]*1024}')
        o(M(1, 0))
    if w != 3:
        o(f'ds_write_b128 v{V_L16}, {vr(memf(1),4)} offset:{L_MEMS+kk[1]*1024}')
    for t in range(2, 7):
        o(M(t, 0))
        if t - 2 < len(early):
            o(early[t - 2])
    o('s_waitcnt lgkmcnt(0)')
    stamp(o, 4, stamps)
    o('s_barrier')
    stamp(o, 5, stamps)
    rd = [f'ds_read_b128 {vr(memf(j),4)}, v{V_L16} offset:{L_MEMS+kk[j]*1024}' for j in range(2, 7)]
    o(rd[0])
    o(rd[1])
    if after_barrier:
        after_barrier()
    rest = rd[2:] + extra_reads
    main = [M(t, 1) for t in range(7)]
    fill = {i: [r] for i, r in enumerate(rest)}
    for k, v in fill2.items():
        fill.setdefault(k, []).extend(v)
    merge(o, main, fill)
    stamp(o, 6, stamps)

def load_weights(o, w, isA):
    kk = [(j + 2 * w) % 7 for j in range(7)]
    n = 0
    for t in range(7):
        voff = V_L16
        base = (7 * w + t) * 14336
        for j in range(7):
            o(f's_add_u32 s{S_T1}, s{S_T0}, {base + kk[j]*2048}')
            for hf in range(2):
                o(f'buffer_load_dwordx4 {wreg_half(t,j,hf)}, v{voff}, {sr(S_WS,4)}, s{S_T1} offen offset:{hf*1024}')
                n += 1
            if n % 14 == 0 and n >= 42:
                o('s_waitcnt vmcnt(40)')

def xkey_loads(w):
    r = []
    for kt in range(2):
        for ks in range(2):
            for hf in range(2):
                d = V_XK + kt * 16 + ks * 8 + hf * 4
                va = V_A1 if (ks == 1 and hf == 1) else V_L16
                r.append(f'buffer_load_dwordx4 {vr(d,4)}, v{va}, {sr(S_WS,4)}, s{S_X0+kt} offen offset:{(8*ks+4*hf)*256}')
    return r

def tile_phase(extra):
    main, fill = [], {}
    for t in range(7):
        for j in range(2, 7):
            main.append(M(t, j))
    for t in range(6):
        p = post(t)
        b = 5 * (t + 1)
        fill.setdefault(b + 2, []).append(p[0])
        fill.setdefault(b + 3, []).append(p[1])
        fill.setdefault(b + 4, []).append(p[2])
        fill.setdefault(min(b + 5, 34), []).append(p[3])
    for k, v in extra.items():
        fill.setdefault(k, []).extend(v)
    return main, fill

def gen_A(o, w, nsteps, stamps, exit_label):
    o(f'''
    v_and_b32 v{V_TMP}, 15, v0                 ; n
    v_lshrrev_b32 v{V_TMP+1}, 4, v0            ; q
    v_and_b32 v{V_TMP+2}, 1, v{V_TMP+1}        ; q&1
    v_and_b32 v{V_A1}, 0x1f0, v{V_L16}         ; (l&31)*16
    v_lshrrev_b32 v{V_TW}, 2, v{V_TMP}
    v_lshlrev_b32 v{V_TW}, 6, v{V_TW}
    v_and_b32 v{V_A0}, 1, v0
    v_lshl_add_u32 v{V_TW}, v{V_A0}, 5, v{V_TW}
    v_lshl_add_u32 v{V_TW}, v{V_TMP+1}, 3, v{V_TW}
    v_bfe_u32 v{V_A0}, v0, 1, 1
    v_lshl_add_u32 v{V_TW}, v{V_A0}, 2, v{V_TW}
    v_add_u32 v{V_TW}, {L_TIMG + w*2048}, v{V_TW}
    v_lshlrev_b32 v{V_TR}, 8, v{V_TMP+1}
    v_lshl_add_u32 v{V_TR}, v{V_TMP}, 3, v{V_TR}
    v_add_u32 v{V_TR}, {L_TIMG + w*2048}, v{V_TR}
    ; (q>>1)*256 + (4*(j>>1) + 2*(q&1) + (j&1))*16
    v_bfe_u32 v{V_A2}, v0, 1, 1
    v_lshlrev_b32 v{V_A2}, 7, v{V_A2}
    v_bfe_u32 v{V_A0}, v0, 2, 1
    v_lshl_add_u32 v{V_A2}, v{V_A0}, 6, v{V_A2}
    v_lshl_add_u32 v{V_A2}, v{V_TMP+2}, 5, v{V_A2}
    v_and_b32 v{V_A0}, 1, v0
    v_lshl_add_u32 v{V_A2}, v{V_A0}, 4, v{V_A2}
    v_lshrrev_b32 v{V_A0}, 5, v0
    v_lshl_add_u32 v{V_A2}, v{V_A0}, 8, v{V_A2}
    v_lshlrev_b32 v{V_A0}, 6, v{V_TMP+1}
    v_bfe_u32 v{V_A3}, v0, 2, 1
    v_lshl_add_u32 v{V_A0}, v{V_A3}, 5, v{V_A0}
    v_add_u32 v{V_A0}, {(w&1)*16}, v{V_A0}
    v_lshrrev_b32 v{V_A3}, 3, v{V_TMP}
    v_lshl_add_u32 v{V_A6}, v{V_A3}, 8, v{V_A0}
    v_and_b32 v{V_A3}, 3, v0
    v_lshl_add_u32 v{V_A6}, v{V_A3}, 2, v{V_A6}
    v_lshl_add_u32 v{V_A7}, v{V_A3}, 1, v{V_A0}
    s_and_b32 s{S_T2}, s{S_ROLE}, 3
    s_lshl_b32 s{S_T3}, s{S_T2}, 9
    v_add_u32 v{V_A6}, s{S_T3}, v{V_A6}
    s_lshr_b32 s{S_T3}, s{S_T2}, 1
    s_lshl_b32 s{S_T3}, s{S_T3}, 8
    s_and_b32 s{S_T2}, s{S_T2}, 1
    s_lshl_b32 s{S_T2}, s{S_T2}, 3
    s_add_u32 s{S_T3}, s{S_T3}, s{S_T2}
    v_add_u32 v{V_A7}, s{S_T3}, v{V_A7}
    s_lshr_b32 s{S_PB}, s{S_ROLE}, 2
    s_mul_i32 s{S_PB}, s{S_PB}, 2560
    s_add_u32 s{S_PB}, s{S_PB}, {OFF_PB}
    v_add_u32 v{V_A4}, {L_SP + 8}, v{V_L16}
    v_mov_b32 v{V_A5}, 0
    v_mov_b32 v{V_TMP}, 0
    v_lshlrev_b32 v{V_TMP+1}, 2, v0
    ds_write_b32 v{V_TMP+1}, v{V_TMP} offset:{L_TIMG + w*2048 + 1792}
    ds_write_b32 v{V_TMP+1}, v{V_TMP} offset:{L_MEMS + 7168}
    s_mul_i32 s{S_T0}, s{S_ROLE}, {HSZ}
    s_add_u32 s{S_T0}, s{S_T0}, {OFF_AF}
    v_lshlrev_b32 v{V_A3}, 7, v0
    v_min_u32 v{V_A0}, {22*128}, v{V_A3}
    s_mul_i32 s{S_Z}, s{S_ROLE}, {23*128}
    s_add_u32 s{S_Z}, s{S_Z}, {OFF_SB + SBS}
    s_mul_i32 s{S_TOUCH}, s{S_ROLE}, {WBB}
    s_add_u32 s{S_TOUCH}, s{S_TOUCH}, {OFF_WB + w*128}
    v_min_u32 v{V_A3}, {(CFG['tl']-1)*128}, v{V_A3}
    v_lshlrev_b32 v{V_A3}, 2, v{V_A3}
    s_mov_b32 s{S_X0}, {OFF_XN + 14*w*256}
    s_mov_b32 s{S_X1}, {OFF_XN + 14*w*256 + 14336}
    ''')
    load_weights(o, w, True)
    if VERIFY: VERIFY(o, V_ACC)
    for t in range(7):
        for z in zero4(acc(t)):
            o(z)
    o('s_waitcnt vmcnt(0) lgkmcnt(0)')
    if CFG['diag']: o('s_memrealtime s[70:71]\ns_memtime s[80:81]\ns_mov_b32 s76, 0')
    for _ in range(CFG['dA']):
        mem_issue(o)
    LOOP = o.new('LA')
    o.label(LOOP)
    mkr = []
    for ks in range(2):
        for hf in range(2):
            mkr.append(f'ds_read_b128 {vr(V_MK+ks*8+hf*4,4)}, v{V_A2} offset:{L_MEMS+(7*w+4*ks+2*hf)*256}')
    xl = xkey_loads(w)
    xl = [xl[0], xl[1], xl[4], xl[5], xl[2], xl[3], xl[6], xl[7]]
    if CFG.get('nox'): xl = ['s_nop 0'] * 8
    early = ['s_nop 0'] * 5
    early[w & 1] = xl[0]
    early[3 + (w & 1)] = xl[1]
    early = [e if e != 's_nop 0' else '' for e in early]
    poll_and_head(o, w, exit_label, mkr, {}, stamps, early, None, CFG['dA'])
    o('s_waitcnt lgkmcnt(%d)' % (0 if stamps else 4))
    TF0, TF1 = acc(1), acc(2)
    SA = [memf(0), memf(1), acc(0)]
    extra = {0: [xl[2]], 2: [xl[3]], 4: [xl[4]], 6: [xl[5]], 11: [xl[6]], 16: [xl[7]],
             1: ['s_waitcnt vmcnt(3)'],
             3: [zero_ds(SA[0])], 5: [zero_ds(SA[1])], 21: [zero_ds(SA[2])],
             26: [f'ds_read_b64_tr_b16 {vr(TF0,2)}, v{V_TR}'], 31: [f'ds_read_b64_tr_b16 {vr(TF0+2,2)}, v{V_TR} offset:128']}
    main, fill = tile_phase(extra)
    merge(o, main, fill)
    stamp(o, 12, stamps)
    keys = lambda kt, ks: vr(V_XK + kt * 16 + ks * 8, 8) if kt < 2 else vr(V_MK + ks * 8, 8)
    o('s_waitcnt vmcnt(4) lgkmcnt(%d)' % (0 if stamps else 1))
    o(SM(SA[0], TF0, keys(0, 0)))
    o(SM(SA[1], TF0, keys(1, 0)))
    p6 = post(6)
    o(p6[0]); o(p6[1]); o(p6[2]); o(p6[3])
    o(f'ds_read_b64_tr_b16 {vr(TF1,2)}, v{V_TR} offset:1024')
    o(f'ds_read_b64_tr_b16 {vr(TF1+2,2)}, v{V_TR} offset:1152')
    o(SM(SA[2], TF0, keys(2, 0)))
    stamp(o, 7, stamps)
    for z in zero4(acc(5))[:CFG['f1']]:
        o('s_nop 1')
        o(z)
    o('s_waitcnt vmcnt(0) lgkmcnt(0)')
    stamp(o, 8, stamps)
    Y = [acc(3), acc(4)]
    for kt in range(3):
        o(SM(SA[kt], TF1, keys(kt, 1)))
    first = 1 - (w & 1)
    plane = lambda par: L_SP + (par * 4 + w) * 1024
    add = lambda par, kt: o(f'v_add_f32 v{Y[par]+kt}, v{SA[kt]+par}, v{SA[kt]+2+par}')
    o(f's_cmp_eq_u32 s{S_MODE}, 1')
    add(first, 0); add(1 - first, 0)
    o('s_nop 1')
    add(first, 1)
    o(f'ds_write_b64 v{V_L16}, {vr(Y[first],2)} offset:{plane(first)}')
    add(1 - first, 1)
    if w >= 2:
        o(f'ds_write_b64 v{V_L16}, {vr(Y[1-first],2)} offset:{plane(1-first)}')
        add(0, 2); add(1, 2)
        o(f'ds_write2st64_b32 v{V_A4}, v{Y[0]+2}, v{Y[1]+2} offset0:{4*w} offset1:{16+4*w}')
    else:
        add(first, 2)
        o(f'ds_write_b32 v{V_L16}, v{Y[first]+2} offset:{plane(first)+8}')
        add(1 - first, 2)
    for z in zero4(acc(6))[:CFG['f2']]:
        o('s_nop 2')
        o(z)
    o('s_waitcnt lgkmcnt(0)')
    stamp(o, 13, stamps)
    o('s_barrier')
    stamp(o, 9, stamps)
    L1, L2 = o.new('Ls'), o.new('Ls')
    SLOW, BACK = o.new('Lslow'), o.new('Lback')
    R = memf(2)
    E = memf(5)
    s0, s1, s2 = Y[w & 1], Y[w & 1] + 1, Y[w & 1] + 2
    if w < 2:
        srcs = [x for x in range(4) if x != w]
        for i, sw in enumerate(srcs):
            o(f'ds_read_b128 {vr(R+4*i,4)}, v{V_L16} offset:{L_SP + (w*4 + sw)*1024}')
        for i in range(3):
            o('s_waitcnt lgkmcnt(%d)' % (0 if stamps else 2 - i))
            if i < 2:
                o(f'v_pk_add_f32 {vr(s0,2)}, {vr(s0,2)}, {vr(R+4*i,2)}')
                o(f'v_add_f32 v{s2}, v{s2}, v{R+4*i+2}')
            else:
                for kt in range(3):
                    o(f'v_add_f32 v{s0+kt}, v{s0+kt}, v{R+4*i+kt}')
                for kt in range(3):
                    o(f'v_exp_f32 v{E+kt}, v{s0+kt}')
        stamp(o, 10, stamps)
        dpp = lambda op, r, sh: f'{op}_dpp v{r}, v{r}, v{r} row_ror:{sh} row_mask:0xf bank_mask:0xf'
        o(f'v_add_f32 v{E+3}, v{E}, v{E+1}')
        o(f'v_fma_f32 v{E+3}, v{E+2}, 0.5, v{E+3}')
        o(f'v_max3_f32 v{V_TMP}, |v{s0}|, |v{s1}|, |v{s2}|')
        o(f'v_cmp_nge_f32 vcc, 0x42800000, v{V_TMP}')
        o(dpp('v_add_f32', E + 3, 8))
        for sh in (4, 2, 1):
            o('s_nop 1')
            o(dpp('v_add_f32', E + 3, sh))
        stamp(o, 11, stamps)
        o(f'v_rcp_f32 v{E+3}, v{E+3}')
        o(f's_cbranch_vccnz {SLOW}')
        o.label(BACK)
        o(f'v_mul_f32 v{E}, v{E}, v{E+3}')
        o(f'v_mul_f32 v{E+1}, v{E+1}, v{E+3}')
        o(f'v_mul_f32 v{E+2}, v{E+2}, v{E+3}')
        o(f'v_cvt_pk_bf16_f32 v{E}, |v{E}|, |v{E+1}|')
        o(f'v_cvt_pk_bf16_f32 v{E+2}, |v{E+2}|, |v{E+2}|')
        o(f's_cbranch_scc1 {L1}')
        o(f'buffer_store_dword v{E}, v{V_A6}, {sr(S_WS,4)}, s{S_PB} offen')
        o(f'buffer_store_short v{E+2}, v{V_A7}, {sr(S_WS,4)}, s{S_PB} offen offset:2048')
        o.label(L2)
        o(f's_add_u32 s{S_PB}, s{S_PB}, {SBS}')
    else:
        for t in range(7):
            for z in zero4(acc(t)):
                o(z)
                o('s_nop 0')
    stamp(o, 3, stamps)
    o('s_barrier')
    for r, v in ((S_X0, SBS), (S_X1, SBS), (S_TOUCH, WBS), (S_Z, SBS), (S_M0, SBS), (S_M1, SBS), (S_STEP, 1)):
        o(f's_add_u32 s{r}, s{r}, {v}')
    if CFG.get('steplog'):
        o(f's_memtime s[78:79]\ns_waitcnt lgkmcnt(0)\ns_mov_b32 m0, s{S_STEP}\ns_nop 0\nv_writelane_b32 v0, s78, m0')
    if CFG['diag']:
        for st, sg in ((1, 88), (24, 90)):
            Lq = o.new('Lq')
            o(f's_cmp_lg_u32 s{S_STEP}, {st}\ns_cbranch_scc1 {Lq}\ns_memrealtime s[{sg}:{sg+1}]\ns_waitcnt lgkmcnt(0)\n{Lq}:')
    o(f's_cmp_ge_u32 s{S_STEP}, {nsteps}')
    o(f's_cbranch_scc1 {exit_label}')
    trace(o, True)
    if w == 3:
        o(f'buffer_load_dword v{V_TMP+2}, v{V_A0}, {sr(S_WS,4)}, s{S_Z} offen')
    if w < CFG['tw']:
        LT2 = o.new('Lt')
        if CFG['flags']:
            o(f'v_cmp_ne_u32 {sr(S_FM,2)}, 0, v{V_A5}')
            o(f'v_lshrrev_b32 v{V_TMP+1}, 2, v{V_L16}')
            o(f'buffer_load_dword v{V_A5}, v{V_TMP+1}, {sr(S_WS,4)}, s{S_FA} offen sc1')
            o(f's_bitcmp1_b64 {sr(S_FM,2)}, s{S_STEP}')
            o(f's_cbranch_scc0 {LT2}')
        o(f'buffer_load_dword v{V_TMP+2}, v{V_A3}, {sr(S_WS,4)}, s{S_TOUCH} offen sc1')
        o.label(LT2)
    trace(o)
    if w < 2:
        for t in range(7):
            for z in zero4(acc(t)):
                o(z)
    pause(o, CFG['gapA'] + (0 if w < 2 else 7))
    mem_issue(o)
    for _ in range(CFG['dA'] - 1):
        pause(o, CFG['sp'])
        mem_issue(o)
    o(f's_branch {LOOP}')
    if w < 2:
        o.label(L1)
        o(f'buffer_store_dword v{E}, v{V_A6}, {sr(S_WS,4)}, s{S_PB} offen sc1')
        o(f'buffer_store_short v{E+2}, v{V_A7}, {sr(S_WS,4)}, s{S_PB} offen offset:2048 sc1')
        o(f's_branch {L2}')
        o.label(SLOW)
        o(f'v_max3_f32 v{V_TMP}, v{s0}, v{s1}, v{s2}')
        for sh in (8, 4, 2, 1):
            o('s_nop 1')
            o(f'v_max_f32_dpp v{V_TMP}, v{V_TMP}, v{V_TMP} row_ror:{sh} row_mask:0xf bank_mask:0xf')
        for kt in range(3):
            o(f'v_sub_f32 v{s0+kt}, v{s0+kt}, v{V_TMP}')
            o(f'v_exp_f32 v{E+kt}, v{s0+kt}')
        o('s_nop 0')
        o(f'v_add_f32 v{E+3}, v{E}, v{E+1}')
        o(f'v_fma_f32 v{E+3}, v{E+2}, 0.5, v{E+3}')
        for sh in (8, 4, 2, 1):
            o('s_nop 1')
            o(dpp('v_add_f32', E + 3, sh))
        o(f'v_rcp_f32 v{E+3}, v{E+3}')
        o(f's_branch {BACK}')

def gen_B(o, w, nsteps, stamps, exit_label):
    o(f's_sub_u32 s{S_T2}, s{S_ROLE}, 16')
    o(f's_mul_i32 s{S_T3}, s{S_T2}, 28')
    o(f'''
    v_and_b32 v{V_TMP}, 15, v0                 ; n
    v_lshrrev_b32 v{V_TMP+1}, 4, v0            ; q
    ''')
    o(f's_mul_i32 s{S_T0}, s{S_T2}, {HSZ}')
    o(f's_add_u32 s{S_T0}, s{S_T0}, {OFF_BT}')
    load_weights(o, w, False)
    if VERIFY: VERIFY(o, V_ACC)
    V_KEEP, V_JUNK = V_A6, V_TMP + 2
    o(f'''
    v_lshlrev_b32 v{V_TW}, 4, v{V_TMP}
    v_lshl_add_u32 v{V_TW}, v{V_TMP+1}, 2, v{V_TW}
    v_add_u32 v{V_TW}, {L_TIMG + w*2048}, v{V_TW}
    v_mul_u32_u24 v{V_TR}, 28, v{V_TMP+1}
    v_add_u32 v{V_TR}, v{V_TR}, v{V_TMP}
    v_lshlrev_b32 v{V_TR}, 4, v{V_TR}
    v_add_u32 v{V_TR}, {L_TIMG + w*2048}, v{V_TR}
    v_lshlrev_b32 v{V_A7}, 1, v{V_TMP}
    v_add_u32 v{V_A7}, s{S_T3}, v{V_A7}
    v_lshrrev_b32 v{V_A5}, 4, v{V_A7}
    v_lshlrev_b32 v{V_A5}, 8, v{V_A5}
    v_lshl_add_u32 v{V_A5}, v{V_TMP+1}, 6, v{V_A5}
    v_bfe_u32 v{V_A6}, v{V_A7}, 3, 1
    v_lshl_add_u32 v{V_A5}, v{V_A6}, 5, v{V_A5}
    v_bfe_u32 v{V_A6}, v{V_A7}, 1, 2
    v_lshl_add_u32 v{V_A5}, v{V_A6}, 2, v{V_A5}
    v_add_u32 v{V_A5}, {16*(w&1)}, v{V_A5}
    v_mov_b32 v{V_A7}, 0x80000000
    v_cmp_gt_u32 vcc, 14, v{V_TMP}
    s_nop 1
    v_cndmask_b32 v{V_A5}, v{V_A7}, v{V_A5}, vcc
    v_cmp_gt_u32 vcc, 32, v0
    s_nop 1
    v_cndmask_b32 v{V_A2}, v{V_A7}, v{V_L16}, vcc
    v_lshlrev_b32 v{V_A3}, 3, v0               ; l*8
    v_mov_b32 v{V_A4}, 0x80008000
    v_min_u32 v{V_A0}, 13, v{V_TMP}
    v_mul_u32_u24 v{V_A1}, 14, v{V_TMP+1}
    v_add_lshl_u32 v{V_A0}, v{V_A0}, v{V_A1}, 4    ; (14q + min(n,13))*16
    s_mul_i32 s{S_T3}, s{S_T2}, {WBB}
    s_add_u32 s{S_Z}, s{S_T3}, {OFF_WB + w*7168}
    s_add_u32 s{S_Z+1}, s{S_Z}, 3584
    s_mov_b32 s{S_PB}, {OFF_PB + w*2560}
    s_mov_b32 s{S_MO}, {OFF_MEMI + SBS}
    s_mov_b32 s{S_ZP}, {OFF_MEMG + nsteps*SCS}
    s_mov_b32 s{S_MG}, {OFF_MEMG + 2048*w}
    s_cmp_eq_u32 s{S_T2}, 0
    s_cselect_b32 s{S_T0}, 0, {OOB}
    s_cmp_eq_u32 s{S_T2}, {1 if w != 3 else 99}
    s_cselect_b32 s{S_T1}, 0, {OOB}
    v_or_b32 v{V_A1}, s{S_T0}, v{V_L16}
    v_or_b32 v{V_A7}, s{S_T1}, v{V_L16}
    ''')
    o('s_waitcnt vmcnt(0)')
    for t in range(7):
        for z in zero4(acc(t)):
            o(z)
    ZM = [V_MK, V_MK + 8]
    if CFG.get('now'):
        for r in range(32): o(zero(V_XK + r))
    for z in zero4(V_MK + 4) + zero4(V_MK + 12):
        o(z)
    if CFG['diag']: o('s_memrealtime s[70:71]\ns_memtime s[80:81]\ns_mov_b32 s76, 0')
    for _ in range(CFG['dBm']):
        mem_issue(o)
    LOOP = o.new('LB')
    o.label(LOOP)
    Wr = lambda u, ct: V_XK + 16 * u + 8 * ct
    wl = []
    for hl in range(4):
        for ct in range(2):
            wl.append(f'buffer_load_dwordx4 {vr(Wr(hl>>1,ct)+4*(hl&1),4)}, v{V_A0}, {sr(S_WS,4)}, s{S_Z+(hl>>1)} offen offset:{(hl&1)*1792+ct*896} sc1')
    if CFG.get('now'): wl = ['s_nop 0'] * 8
    pub = f'buffer_store_dword v{V_KEEP}, v{V_A5}, {sr(S_WS,4)}, s{S_ZP} offen sc1'
    early = []
    ne = CFG['ne']
    f2 = {i: [wl[i]] for i in range(min(ne, 6))}
    LFW, LFB = o.new('Lfw'), o.new('Lfb')
    def chk():
        o(f'buffer_store_dwordx4 {vr(memf(0),4)}, v{V_A1}, {sr(S_WS,4)}, s{S_MG} offen sc1')
        o(f'buffer_store_dwordx4 {vr(memf(1),4)}, v{V_A7}, {sr(S_WS,4)}, s{S_MG} offen offset:1024 sc1')
        if CFG['flags']:
            o(f's_bitcmp1_b64 {sr(S_FM,2)}, s{S_STEP}')
            o(f's_cbranch_scc0 {LFW}')
            o.label(LFB)
    poll_and_head(o, w, exit_label, [], f2, stamps, early, chk, CFG['dBm'])
    o('s_waitcnt lgkmcnt(0)')
    D = [memf(0), memf(1)]
    ex = {5 * t + 11: [zero_ds(acc(t))] for t in range(5)}
    ex[4] = ['s_waitcnt vmcnt(%d)' % min(ne, 6)] if CFG['dBm'] > 1 else []
    ex[5] = [zero_ds(D[0])]
    ex[6] = [zero_ds(D[1])]
    late = wl[min(ne, 6):]
    if CFG['flags']:
        ex[3] = [f'v_lshrrev_b32 v{V_TMP+1}, 2, v{V_L16}', f'buffer_load_dword v{V_JUNK}, v{V_TMP+1}, {sr(S_WS,4)}, s{S_FA} offen sc1']
    for i, v in enumerate(late):
        g = CFG['lg0'] + i * CFG['lgs']
        ex.setdefault(g, []).append(v)
    sal = [f's_add_u32 s{S_M0}, s{S_M0}, {SBS}', f's_add_u32 s{S_M1}, s{S_M1}, {SBS}', f's_add_u32 s{S_STEP}, s{S_STEP}, 1', f's_add_u32 s{S_MG}, s{S_MG}, {SCS}']
    for i, v in enumerate(sal):
        ex.setdefault(i, []).append(v)
    main, fill = tile_phase(ex)
    merge(o, main, fill)
    o('s_nop 7')
    for p in post(6):
        o(p)
    o(f'ds_read_b128 {vr(ZM[0],4)}, v{V_TR}')
    o(f'ds_read_b128 {vr(ZM[1],4)}, v{V_TR} offset:224')
    P = memf(2)
    def p_issue():
        o(f'buffer_load_dwordx4 {vr(P,4)}, v{V_L16}, {sr(S_WS,4)}, s{S_PB} offen sc1')
        o(f'buffer_load_dwordx4 {vr(P+4,4)}, v{V_L16}, {sr(S_WS,4)}, s{S_PB} offen offset:1024 sc1')
        o(f'buffer_load_dwordx4 {vr(P+8,4)}, v{V_A2}, {sr(S_WS,4)}, s{S_PB} offen offset:2048 sc1')
    o(zero_ds(acc(5)))
    o(zero_ds(acc(6)))
    o(f's_add_u32 s{S_Z}, s{S_Z}, {WBS}')
    o(f's_add_u32 s{S_Z+1}, s{S_Z+1}, {WBS}')
    o('s_waitcnt lgkmcnt(0)')
    stamp(o, 1, stamps)
    if CFG.get('steplog'):
        o(f's_memtime s[78:79]\ns_waitcnt vmcnt(0)\ns_memtime s[76:77]\ns_waitcnt lgkmcnt(0)\ns_sub_u32 s78, s76, s78\ns_mov_b32 m0, s{S_STEP}\ns_nop 0\nv_writelane_b32 v0, s78, m0')
    pause(o, CFG['gapB'])
    trace(o, True)
    p_issue()
    for _ in range(CFG['dP'] - 1):
        pause(o, CFG['spP'])
        p_issue()
    LP, OK = o.new('Lpp'), o.new('Lok')
    T0, T1 = V_TMP, V_TMP + 1
    o(f's_branch {OK}')
    o.label(LP)
    if CFG['mask']:
        o('s_mov_b64 exec, vcc')
    p_issue()
    if CFG['mask']:
        o('s_mov_b64 exec, -1')
    o(f's_sub_u32 s{S_BUD}, s{S_BUD}, 1')
    o(f's_cbranch_scc1 {exit_label}')
    sp = CFG['specB']
    if sp:
        o('s_nop 2')
        for z in zero4(D[0]):
            o(z)
    o.label(OK)
    dq = 3 * (CFG['dP'] - 1)
    o(f's_waitcnt vmcnt({dq+2})')
    o(f'v_or3_b32 v{T0}, v{P}, v{P+1}, v{P+2}')
    o(f's_waitcnt vmcnt({dq+1})')
    o(f'v_or3_b32 v{T1}, v{P+4}, v{P+5}, v{P+6}')
    o(f'v_or3_b32 v{T0}, v{T0}, v{P+3}, v{P+7}')
    if sp: o(SM(D[0], P, vr(Wr(0, 0), 8)))
    o(f's_waitcnt vmcnt({dq})')
    trace(o)
    stamp(o, 2, stamps)
    o(f'v_or3_b32 v{T1}, v{T1}, v{P+8}, v{P+9}')
    o(f'v_or3_b32 v{T0}, v{T0}, v{P+10}, v{P+11}')
    if sp: o(SM(D[0], P + 4, vr(Wr(1, 0), 8)))
    o(f'v_bitop3_b32 v{T0}, v{T0}, v{T1}, v{V_A4} bitop3:0xa8')
    o(f'v_cmp_ne_u32 vcc, 0, v{T0}')
    if sp: o(SM(D[0], P + 8, vr(ZM[0], 8)))
    o(f's_cbranch_vccnz {LP}')
    if not sp:
        o(SM(D[0], P, vr(Wr(0, 0), 8)))
        o(SM(D[0], P + 4, vr(Wr(1, 0), 8)))
        o(SM(D[0], P + 8, vr(ZM[0], 8)))
    o(SM(D[1], P, vr(Wr(0, 1), 8)))
    o(SM(D[1], P + 4, vr(Wr(1, 1), 8)))
    o(SM(D[1], P + 8, vr(ZM[1], 8)))
    stamp(o, 7, stamps)
    Y = V_XK if not CFG.get('now') else memf(2)
    o(f'v_add_f32 v{Y}, v{D[0]}, v{D[0]+2}')
    o(f'v_add_f32 v{Y+2}, v{D[0]+1}, v{D[0]+3}')
    o(f's_cmp_eq_u32 s{S_MODE}, 1')
    o('s_nop 4')
    o(f'v_add_f32 v{Y+1}, v{D[1]}, v{D[1]+2}')
    o(f'v_add_f32 v{Y+3}, v{D[1]+1}, v{D[1]+3}')
    if w == 0:
        o(f'ds_write_b64 v{V_A3}, {vr(Y+2,2)} offset:{L_SP + 2048}')
    elif w == 1:
        o(f'ds_write_b64 v{V_A3}, {vr(Y,2)} offset:{L_SP + 512}')
    else:
        o(f'ds_write_b64 v{V_A3}, {vr(Y,2)} offset:{L_SP + 512*w}')
        o(f'ds_write_b64 v{V_A3}, {vr(Y+2,2)} offset:{L_SP + 2048 + 512*w}')
    o('s_waitcnt lgkmcnt(0)')
    stamp(o, 8, stamps)
    o('s_barrier')
    stamp(o, 9, stamps)
    L1, L2 = o.new('Ls'), o.new('Ls')
    if w < 2:
        R = Y + 4
        own = Y + 2 * w
        srcs = [x for x in range(4) if x != w]
        for i, sw in enumerate(srcs):
            o(f'ds_read_b64 {vr(R+2*i,2)}, v{V_A3} offset:{L_SP + 2048*w + 512*sw}')
        for i in range(3):
            o('s_waitcnt lgkmcnt(%d)' % (0 if stamps else 2 - i))
            o(f'v_pk_add_f32 {vr(own,2)}, {vr(own,2)}, {vr(R+2*i,2)}')
        o(f'v_cvt_pk_bf16_f32 v{V_KEEP}, v{own}, v{own+1}')
        o(f'v_min_u32 v{V_KEEP}, 0xfffffffe, v{V_KEEP}')
        o(f's_cbranch_scc1 {L1}')
        o(f'buffer_store_dword v{V_KEEP}, v{V_A5}, {sr(S_WS,4)}, s{S_MO} offen')
        o.label(L2)
    else:
        pause(o, 6)
    stamp(o, 3, stamps)
    LAST = o.new('Llast')
    if CFG['flags']:
        o(f'v_cmp_ne_u32 {sr(S_FM,2)}, 0, v{V_JUNK}')
    o(f's_cmp_ge_u32 s{S_STEP}, {nsteps}')
    o(f's_cbranch_scc1 {LAST}')
    o(f's_add_u32 s{S_MO}, s{S_MO}, {SBS}')
    o(f's_add_u32 s{S_PB}, s{S_PB}, {SBS}')
    pause(o, CFG['gapB2'])
    mem_issue(o)
    for _ in range(CFG['dBm'] - 1):
        pause(o, CFG['sp'])
        mem_issue(o)
    o(f's_branch {LOOP}')
    if w < 2:
        o.label(L1)
        o(f'buffer_store_dword v{V_KEEP}, v{V_A5}, {sr(S_WS,4)}, s{S_MO} offen sc1')
        o(f's_branch {L2}')
    if CFG['flags']:
        o.label(LFW)
        flags_reload(o)
        o(f's_bitcmp1_b64 {sr(S_FM,2)}, s{S_STEP}')
        o(f's_cbranch_scc1 {LFB}')
        o(f's_sub_u32 s{S_BUD}, s{S_BUD}, 1')
        o(f's_cbranch_scc1 {exit_label}')
        o('s_sleep 2')
        o(f's_branch {LFW}')
    o.label(LAST)
    if w < 2:
        o(pub)
    o(f's_branch {exit_label}')

def team_common_setup(o, w):
    kk = [(j + 2 * w) % 7 for j in range(7)]
    o(f'''
    v_lshlrev_b32 v{V_L16}, 4, v0
    v_mov_b32 v{V_IDX}, 0x44444444
    v_mov_b32 v{V_TMP}, 0xeeeeeeee
    v_and_b32 v{V_TMP+1}, 2, v0
    v_cmp_ne_u32 vcc, 0, v{V_TMP+1}
    s_nop 1
    v_cndmask_b32 v{V_IDX}, v{V_IDX}, v{V_TMP}, vcc
    v_mov_b32 v{V_TMP}, 0
    v_lshlrev_b32 v{V_TMP+1}, 2, v0
    ds_write_b32 v{V_TMP+1}, v{V_TMP} offset:{L_ZERO + 256*w}
    s_mov_b32 s{S_STEP}, 0
    s_mov_b64 {sr(S_FM,2)}, 0
    s_and_b32 s{S_FA}, s{S_ROLE}, 15
    s_lshl_b32 s{S_FA}, s{S_FA}, 8
    s_add_u32 s{S_FA}, s{S_FA}, {OFF_FL}
    s_mov_b32 s{S_M0}, {OFF_MEMI + kk[0]*1024}
    s_mov_b32 s{S_M1}, {OFF_MEMI + kk[1]*1024}
    ''')

def gen_team_body(o, exit_label, nsteps=63, stamps=False):
    labs = {}
    for role in 'AB':
        for w in range(4):
            labs[role, w] = o.new(f'Lteam{role}{w}')
    LB = o.new('LteamB')
    o(f's_cmp_ge_u32 s{S_ROLE}, 16')
    o(f's_cbranch_scc1 {LB}')
    for role in 'AB':
        if role == 'B':
            o.label(LB)
        for w in range(1, 4):
            o(f's_cmp_eq_u32 s{S_W}, {w}')
            o(f's_cbranch_scc1 {labs[role,w]}')
        o(f's_branch {labs[role,0]}')
    for role in 'AB':
        for w in range(4):
            o.raw('.p2align 6')
            o.label(labs[role, w])
            team_common_setup(o, w)
            if role == 'A':
                gen_A(o, w, nsteps, stamps, exit_label)
            else:
                gen_B(o, w, nsteps, stamps, exit_label)
```

```python
from common import *
import team as T
import prep
from team import S_WS, S_W, S_BUD, wreg_half, wreg, V_L16, V_IDX

MM = 'v_mfma_f32_16x16x32_bf16'
M16 = 'v_mfma_f32_16x16x16_bf16'
NCOPY = 6
S_OUT, S_WO = 8, 44
S_ID, S_J, S_SEG = 17, 18, 20
WSR = sr(S_WS, 4)
V_N, V_Q = 3, 4

DIAG = False
def mark(o, s):
    if DIAG:
        o(f's_memrealtime s[{s}:{s+1}]\ns_waitcnt lgkmcnt(0)')

def lane_consts(o):
    o(f'''
    v_lshlrev_b32 v{V_L16}, 4, v0
    v_and_b32 v{V_N}, 15, v0
    v_lshrrev_b32 v{V_Q}, 4, v0
    ''')

def jninv(o, d, t):
    o(f'''
    v_and_b32 v{d}, 8, v0
    v_and_b32 v{t}, 1, v0
    v_lshl_add_u32 v{d}, v{t}, 2, v{d}
    v_bfe_u32 v{t}, v0, 2, 1
    v_lshl_add_u32 v{d}, v{t}, 1, v{d}
    v_bfe_u32 v{t}, v0, 1, 1
    v_add_u32 v{d}, v{d}, v{t}
    ''')

def load_w448(o, base_off):
    o(f'''
    s_mul_i32 s22, s{S_ID}, {HSZ}
    s_mul_i32 s23, s{S_W}, {7*14336}
    s_add_u32 s22, s22, s23
    s_add_u32 s22, s22, {base_off}
    ''')
    n = 0
    for t in range(7):
        for j in range(7):
            for hf in range(2):
                o(f'buffer_load_dwordx4 {wreg_half(t,j,hf)}, v{V_L16}, {WSR}, s22 offen offset:{hf*1024}')
                n += 1
            o('s_add_u32 s22, s22, 2048')
            if n % 14 == 0 and n >= 42:
                o('s_waitcnt vmcnt(40)')

def x_issue(o, XR, ks):
    for tt in range(2):
        d = XR + (ks % 4) * 8 + tt * 4
        if ks < 4:
            o(f'buffer_load_dwordx4 {vr(d,4)}, v{V_L16}, {WSR}, s{24+tt} offen offset:{ks*1024}')
        else:
            o(f's_add_u32 s26, s{24+tt}, {(ks>>2)*4096}')
            o(f'buffer_load_dwordx4 {vr(d,4)}, v{V_L16}, {WSR}, s26 offen offset:{(ks&3)*1024}')

def x_start(o, XR, seg_sgpr):
    o(f's_mul_i32 s24, s{seg_sgpr}, 28672')
    o(f's_add_u32 s24, s24, {OFF_XP}')
    o('s_add_u32 s25, s24, 14336')
    for ks in range(3):
        x_issue(o, XR, ks)

def gemm_seg(o, XR, ntile, mf, younger, at3=None):
    for ks in range(14):
        if ks + 3 < 14:
            x_issue(o, XR, ks + 3)
        left = min(ks + 3, 13) - ks
        o(f's_waitcnt vmcnt({2*left + (younger if ks < 3 else 0)})')
        if ks == 3 and at3:
            at3()
        for t in range(ntile):
            for tt in range(2):
                o(mf(tt, t, ks, XR + (ks % 4) * 8 + tt * 4))

def poll_counter(o, off, target, exit_label, tmp):
    L = o.new('Lpc')
    o(f'v_mov_b32 v{tmp+1}, 0')
    o.label(L)
    o(f'''
    buffer_load_dword v{tmp}, v{tmp+1}, {WSR}, s{off} offen sc1
    s_sub_u32 s{S_BUD}, s{S_BUD}, 1
    s_cbranch_scc1 {exit_label}
    s_waitcnt vmcnt(0)
    v_cmp_le_u32 vcc, {target}, v{tmp}
    s_sleep 8
    s_cbranch_vccz {L}
    ''')

def wait_written(o, soff, imm, exit_label, tmp, sleep):
    L, L2 = o.new('Lww'), o.new('Lww')
    o(f'v_mov_b32 v{tmp+1}, 0')
    o('s_mov_b64 exec, 1')
    o.label(L)
    o(f'''
    buffer_load_dword v{tmp}, v{tmp+1}, {WSR}, s{soff} offen offset:{imm} sc1
    s_sub_u32 s{S_BUD}, s{S_BUD}, 1
    s_cbranch_scc1 {exit_label}
    s_waitcnt vmcnt(0)
    v_cmp_eq_u32 vcc, -1, v{tmp}
    s_cbranch_vccz {L2}
    s_sleep {sleep}
    s_branch {L}
    ''')
    o.label(L2)
    o('s_mov_b64 exec, -1')

def xq(o, op, r, t):
    for sw in ('v_permlane16_swap_b32', 'v_permlane32_swap_b32'):
        o(f'v_mov_b32 v{t}, v{r}')
        o('s_nop 1')
        o(f'{sw} v{r}, v{t}')
        o(f'{op} v{r}, v{r}, v{t}')

def gen_WB(o, exit_label):
    ACC, XR, SO = 16, 72, 104
    L_WO, L_RT, L_RED = 0, 32768, 65536
    acc = lambda tt, t: ACC + (tt * 7 + t) * 4
    lane_consts(o)
    o(f's_mov_b32 s{S_SEG}, s{S_J}')
    x_start(o, XR, S_SEG)
    load_w448(o, OFF_BT)
    T.VERIFY(o, 16)
    o(f's_lshl_b32 s26, s{S_W}, 13')
    o(f'v_add_u32 v{SO+7}, s26, v{V_L16}')
    for t in range(7):
        o(f'''
        v_add_u32 v5, {16*t}, v{V_N}                 ; p
        v_mul_u32_u24 v6, 4682, v5
        v_lshrrev_b32 v6, 16, v6                   ; p / 14
        v_mul_u32_u24 v7, 14, v6
        v_sub_u32 v5, v5, v7
        v_mul_u32_u24 v7, 14, v{V_Q}
        v_add_lshl_u32 v5, v5, v7, 4
        v_mul_u32_u24 v6, 896, v6
        v_add3_u32 v{SO+t}, v5, v6, s26
        ''')
    o(f'''
    s_mul_i32 s27, s{S_ID}, {WBB}
    s_mul_i32 s23, s{S_W}, 7168
    s_add_u32 s27, s27, s23
    s_add_u32 s27, s27, {OFF_WB}
    s_mov_b32 s28, {OFF_DUMMY}
    s_lshl_b32 s29, s{S_ID}, 8
    s_add_u32 s29, s29, {OFF_FL}
    v_add_u32 v5, s{S_W}, v0
    v_cmp_eq_u32 vcc, 0, v5
    v_mov_b32 v7, {OOB}
    v_mov_b32 v6, 1
    v_cndmask_b32 v5, v7, v5, vcc
    s_waitcnt vmcnt(0)
    ''')
    mark(o, 70)
    LW = o.new('LW')
    o.label(LW)
    def at3():
        o('s_barrier')
        o(f'buffer_store_dword v6, v5, {WSR}, s28 offen sc1')
    gemm_seg(o, XR, 7, lambda tt, t, ks, x: f'{MM} {vr(acc(tt,t),4)}, {vr(x,4)}, {wreg_half(t,ks>>1,ks&1)}, ' + ('0' if ks == 0 else vr(acc(tt, t), 4)), 7, at3)
    o(f'''
    s_mul_i32 s30, s{S_SEG}, {WBS}
    s_add_u32 s30, s30, s27
    s_lshl_b32 s28, s{S_SEG}, 2
    s_add_u32 s28, s28, s29
    s_add_u32 s{S_SEG}, s{S_SEG}, {NCOPY}
    s_min_u32 s31, s{S_SEG}, 63
    ''')
    x_start(o, XR, 31)
    for t in range(7):
        a, b = acc(0, t), acc(1, t)
        for r in range(4):
            o(f'v_cvt_pk_bf16_f32 v{a+r}, v{a+r}, v{b+r}')
        o(f'ds_write_b128 v{SO+t}, {vr(a,4)}')
    for t in range(7):
        o(f'ds_read_b128 {vr(acc(1,t),4)}, v{SO+7} offset:{t*1024}')
    o('s_add_u32 s31, s30, 4096')
    for t in range(7):
        o(f's_waitcnt lgkmcnt({6-t})')
        o(f'buffer_store_dwordx4 {vr(acc(1,t),4)}, v{V_L16}, {WSR}, s{30+(t>>2)} offen offset:{(t&3)*1024} sc1')
    o(f'''
    s_cmp_lt_u32 s{S_SEG}, 64
    s_cbranch_scc1 {LW}
    s_waitcnt vmcnt(0)
    s_barrier
    buffer_store_dword v6, v5, {WSR}, s28 offen sc1
    ''')
    mark(o, 88)
    if T.CFG.get('nota'): o(f's_branch {exit_label}')
    V_TW, V_TR, V_WO, V_OO, V_RW, V_RR, TMP = 5, 6, 7, 8, 9, 10, 11
    D, WF, MF, RA, ZM = 16, 32, 64, 92, 104
    Dr = lambda tt, ct: D + (tt * 2 + ct) * 4
    o(f'''
    v_mul_u32_u24 v{TMP}, {4*896}, v{V_Q}
    v_lshl_add_u32 v{TMP}, v{V_N}, 2, v{TMP}
    v_mov_b32 v{TMP+2}, {OOB}
    v_cmp_gt_u32 vcc, 3, v{V_Q}
    s_mul_i32 s22, s{S_W}, {112*896}
    s_mul_i32 s23, s{S_ID}, 56
    v_cndmask_b32 v{TMP+1}, v{TMP+2}, v{TMP}, vcc
    s_add_u32 s22, s22, s23
    ''')
    for hl in range(4):
        for hf in range(2):
            o(f's_add_u32 s23, s22, {(28*hl + 16*hf)*896}')
            for e in range(4):
                o(f'buffer_load_dword v{32+8*hl+4*hf+e}, v{TMP+hf}, {sr(S_WO,4)}, s23 offen offset:{e*896}')
    o(f'''
    s_mov_b32 s22, 0x05040100
    s_mov_b32 s23, 0x07060302
    s_lshl_b32 s26, s{S_W}, 13
    v_add_u32 v{V_WO}, s26, v{V_L16}
    s_waitcnt vmcnt(0)
    ''')
    for hl in range(4):
        for ct in range(2):
            for r in range(4):
                o(f'v_perm_b32 v{64+4*ct+r}, v{32+8*hl+2*r+1}, v{32+8*hl+2*r}, s{22+ct}')
            o(f'ds_write_b128 v{V_WO}, {vr(64+4*ct,4)} offset:{L_WO + (hl*2+ct)*1024}')
    o(f'''
    v_mov_b32 v{V_IDX}, 0x44444444
    v_mov_b32 v{TMP}, 0xeeeeeeee
    v_and_b32 v{TMP+1}, 2, v0
    v_cmp_ne_u32 vcc, 0, v{TMP+1}
    s_lshl_b32 s26, s{S_W}, 11
    s_add_u32 s26, s26, {L_RT}
    v_cndmask_b32 v{V_IDX}, v{V_IDX}, v{TMP}, vcc
    v_lshlrev_b32 v{V_TW}, 4, v{V_N}
    v_lshl_add_u32 v{V_TW}, v{V_Q}, 2, v{V_TW}
    v_add_u32 v{V_TW}, s26, v{V_TW}
    v_mul_u32_u24 v{V_TR}, 28, v{V_Q}
    v_add_lshl_u32 v{V_TR}, v{V_TR}, v{V_N}, 4
    v_add_u32 v{V_TR}, s26, v{V_TR}
    v_min_u32 v14, 13, v{V_N}
    v_mul_u32_u24 v{TMP}, 14, v{V_Q}
    v_add_lshl_u32 v14, v14, v{TMP}, 4
    s_lshl_b32 s26, s{S_W}, 10
    s_add_u32 s26, s26, {L_RED}
    v_add_u32 v{V_RW}, s26, v{V_L16}
    s_lshl_b32 s26, s{S_W}, 12
    s_add_u32 s26, s26, {L_RED}
    v_add_u32 v{V_RR}, s26, v{V_L16}
    v_lshrrev_b32 v{TMP}, 1, v{V_Q}
    v_lshlrev_b32 v{TMP}, 3, v{TMP}
    v_and_b32 v{TMP+1}, 1, v{V_Q}
    v_lshl_add_u32 v{TMP}, v{TMP+1}, 1, v{TMP}
    s_lshr_b32 s22, s{S_W}, 1
    s_lshl_b32 s22, s22, 4
    s_and_b32 s23, s{S_W}, 1
    s_add_u32 s22, s22, s23
    v_add_u32 v{TMP}, s22, v{TMP}
    v_mul_u32_u24 v{TMP}, 896, v{TMP}
    v_lshl_add_u32 v{TMP}, v{V_N}, 2, v{TMP}
    s_mul_i32 s22, s{S_ID}, 56
    v_add_u32 v{TMP}, s22, v{TMP}
    v_cmp_gt_u32 vcc, 14, v{V_N}
    v_mov_b32 v15, 0x80008000
    s_mov_b32 s{S_SEG}, s{S_J}
    v_cndmask_b32 v{V_OO}, v{TMP+2}, v{TMP}, vcc
    ''')
    LF = o.new('LF')
    o.label(LF)
    o(f'''
    s_lshr_b32 s22, s{S_SEG}, 3
    s_lshl_b32 s22, s22, 7
    s_add_u32 s22, s22, {OFF_FL + FL_O}
    ''')
    poll_counter(o, 22, 4, exit_label, TMP)
    o(f'''
    s_lshl_b32 s22, s{S_SEG}, 15
    s_lshl_b32 s23, s{S_W}, 13
    s_add_u32 s22, s22, s23
    s_add_u32 s22, s22, {OFF_OB}
    s_add_u32 s23, s22, 4096
    s_mul_i32 s30, s{S_SEG}, {WBS}
    s_add_u32 s30, s30, s27
    s_add_u32 s31, s30, 3584
    s_mul_i32 s32, s{S_SEG}, {SCS}
    s_add_u32 s32, s32, {OFF_SC}
    s_add_u32 s33, s32, 4096
    ''')
    OF = MF
    for hl in range(4):
        for tt in range(2):
            o(f'buffer_load_dwordx4 {vr(OF+8*hl+4*tt,4)}, v{V_L16}, {WSR}, s{22+(hl>>1)} offen offset:{(hl&1)*2048+tt*1024} sc1')
    for i in range(8):
        o(f'ds_read_b128 {vr(WF+4*i,4)}, v{V_WO} offset:{L_WO + i*1024}')
    o('s_waitcnt vmcnt(0) lgkmcnt(0)')
    for hl in range(4):
        for tt in range(2):
            for ct in range(2):
                o(f'{MM} {vr(Dr(tt,ct),4)}, {vr(OF+8*hl+4*tt,4)}, {vr(WF+8*hl+4*ct,4)}, ' + ('0' if hl == 0 else vr(Dr(tt, ct), 4)))
    for hl in range(4):
        for ct in range(2):
            o(f'buffer_load_dwordx4 {vr(WF+8*hl+4*ct,4)}, v14, {WSR}, s{30+(hl>>1)} offen offset:{(hl&1)*1792+ct*896} sc1')
    LS = o.new('LS')
    o(f's_cmp_eq_u32 s{S_SEG}, 63')
    o(f's_cbranch_scc1 {LS}')
    wait_written(o, 33, 3072, exit_label, TMP, 8)
    o.label(LS)
    LM = o.new('LM')
    o.label(LM)
    for j in range(7):
        o(f'buffer_load_dwordx4 {vr(MF+4*j,4)}, v{V_L16}, {WSR}, s{32+(j>>2)} offen offset:{(j&3)*1024} sc1')
    o(f's_sub_u32 s{S_BUD}, s{S_BUD}, 1')
    o(f's_cbranch_scc1 {exit_label}')
    o('s_waitcnt vmcnt(0)')
    o(f'v_max_u32 v{TMP}, v{MF}, v{MF+1}')
    for r in range(2, 28, 2):
        o(f'v_max3_u32 v{TMP}, v{TMP}, v{MF+r}, v{MF+r+1}')
    LM2 = o.new('LM')
    o(f'v_cmp_eq_u32 vcc, -1, v{TMP}')
    o(f's_cbranch_vccz {LM2}')
    o('s_sleep 6')
    o(f's_branch {LM}')
    o.label(LM2)
    ra = lambda t: RA + (t % 3) * 4
    def post(t):
        a = ra(t)
        return [f'v_add_f32 v{a}, v{a}, v{a+2}', f'v_add_f32 v{a+1}, v{a+1}, v{a+3}',
                f'v_cvt_pk_bf16_f32 v{a}, v{a}, v{a+1}', f'ds_write_b32 v{V_TW}, v{a} offset:{t*256}']
    for r in range(8):
        o(f'v_mov_b32 v{RA+r}, 0')
    o('s_nop 0')
    for t in range(7):
        fill = {}
        if t >= 1:
            p = post(t - 1)
            fill = {2: [p[0]], 3: [p[1]], 4: [p[2]], 5: [p[3]]}
        if t + 1 < 7 and t >= 1:
            z = [f'v_mov_b32 v{ra(t+1)+r}, 0' for r in range(4)]
            fill[0] = z[0:2]
            fill[1] = z[2:4]
        T.merge(o, [T.SM(ra(t), MF + 4 * j, wreg(t, j)) for j in range(7)], fill)
    o('s_nop 7')
    for p in post(6):
        o(p)
    o(f'ds_read_b128 {vr(ZM,4)}, v{V_TR}')
    o(f'ds_read_b128 {vr(ZM+4,4)}, v{V_TR} offset:224')
    PX = MF
    o(f'''
    s_lshl_b32 s22, s{S_W}, 13
    s_add_u32 s22, s22, s32
    s_add_u32 s22, s22, 7168
    s_add_u32 s23, s22, 4096
    s_lshl_b32 s26, s{S_W}, 11
    s_add_u32 s26, s26, s32
    s_add_u32 s26, s26, {7168 + 32768}
    s_waitcnt lgkmcnt(0)
    ''')
    LP, LP2 = o.new('LP'), o.new('LP')
    o.label(LP)
    for hl in range(4):
        for tt in range(2):
            o(f'buffer_load_dwordx4 {vr(PX+8*hl+4*tt,4)}, v{V_L16}, {WSR}, s{22+(hl>>1)} offen offset:{(hl&1)*2048+tt*1024} sc1')
    for tt in range(2):
        o(f'buffer_load_dwordx4 {vr(PX+32+4*tt,4)}, v{V_L16}, {WSR}, s26 offen offset:{tt*1024} sc1')
    o(f's_sub_u32 s{S_BUD}, s{S_BUD}, 1')
    o(f's_cbranch_scc1 {exit_label}')
    o('s_waitcnt vmcnt(0)')
    o(f'v_or_b32 v{TMP}, v{PX}, v{PX+1}')
    for r in range(2, 40, 2):
        o(f'v_or3_b32 v{TMP}, v{TMP}, v{PX+r}, v{PX+r+1}')
    o(f'v_and_b32 v{TMP}, v{TMP}, v15')
    o(f'v_cmp_ne_u32 vcc, 0, v{TMP}')
    o(f's_cbranch_vccz {LP2}')
    o('s_sleep 2')
    o(f's_branch {LP}')
    o.label(LP2)
    for hl in range(5):
        for tt in range(2):
            for ct in range(2):
                b = WF + 8 * hl + 4 * ct if hl < 4 else ZM + 4 * ct
                o(f'{MM} {vr(Dr(tt,ct),4)}, {vr(PX+8*hl+4*tt,4)}, {vr(b,4)}, {vr(Dr(tt,ct),4)}')
    o('s_nop 7')
    for tt in range(2):
        for rp in range(2):
            for ct in range(2):
                o(f'ds_write_b64 v{V_RW}, {vr(Dr(tt,ct)+2*rp,2)} offset:{(tt*2+rp)*4096 + ct*8}')
    o('s_waitcnt lgkmcnt(0)')
    o('s_barrier')
    for sw in range(4):
        o(f'ds_read_b128 {vr(WF+4*sw,4)}, v{V_RR} offset:{sw*1024}')
    o(f'''
    s_mul_i32 s22, s{S_SEG}, 28672
    v_xor_b32 v{V_RW}, 0x4000, v{V_RW}
    v_xor_b32 v{V_RR}, 0x4000, v{V_RR}
    s_add_u32 s{S_SEG}, s{S_SEG}, {NCOPY}
    s_waitcnt lgkmcnt(0)
    ''')
    for r in range(4):
        o(f'v_add_f32 v{WF+r}, v{WF+r}, v{WF+4+r}')
        o(f'v_add_f32 v{WF+8+r}, v{WF+8+r}, v{WF+12+r}')
    for r in range(4):
        o(f'v_add_f32 v{WF+r}, v{WF+r}, v{WF+8+r}')
    o(f'''
    v_cvt_pk_bf16_f32 v{TMP}, v{WF}, v{WF+2}
    v_cvt_pk_bf16_f32 v112, v{WF+1}, v{WF+3}
    buffer_store_dword v{TMP}, v{V_OO}, {sr(S_OUT,4)}, s22 offen
    buffer_store_dword v112, v{V_OO}, {sr(S_OUT,4)}, s22 offen offset:3584
    s_cmp_lt_u32 s{S_SEG}, 64
    s_cbranch_scc1 {LF}
    s_branch {exit_label}
    ''')
LDS_WB = 65536 + 32768

def gen_TA(o, exit_label):
    ACC, XR = 16, 72
    acc = lambda tt, t: ACC + (tt * 7 + t) * 4
    V_XK, V_MK, V_LW, V_G, V_PM, TMP = 5, 6, 7, 8, 9, 10
    S = 104
    lane_consts(o)
    o(f's_mov_b32 s{S_SEG}, s{S_J}')
    x_start(o, XR, S_SEG)
    load_w448(o, OFF_AF)
    T.VERIFY(o, 16)
    jninv(o, V_G, TMP)
    o(f'''
    v_lshrrev_b32 v{TMP}, 1, v{V_Q}
    v_and_b32 v{TMP+1}, 1, v{V_Q}
    v_lshlrev_b32 v{V_XK}, 4, v{V_G}
    v_lshl_add_u32 v{V_XK}, v{TMP}, 8, v{V_XK}
    v_lshl_add_u32 v{V_XK}, v{TMP+1}, 3, v{V_XK}
    v_and_b32 v{V_MK}, 13, v0
    v_lshlrev_b32 v{V_MK}, 4, v{V_MK}
    v_lshl_add_u32 v{V_MK}, v{TMP}, 5, v{V_MK}
    v_lshl_add_u32 v{V_MK}, v{TMP+1}, 3, v{V_MK}
    v_lshlrev_b32 v{TMP}, 3, v{TMP}
    v_lshl_add_u32 v{TMP}, v{TMP+1}, 1, v{TMP}
    v_sub_u32 v{TMP}, v{V_G}, v{TMP}
    v_cmp_le_i32 s[48:49], 0, v{TMP}
    v_cmp_le_i32 s[50:51], 4, v{TMP}
    v_cmp_le_i32 s[52:53], 1, v{TMP}
    v_cmp_le_i32 s[54:55], 5, v{TMP}
    v_lshlrev_b32 v{V_G}, 2, v{V_G}
    s_mul_i32 s26, s{S_W}, 6144
    v_add_u32 v{V_LW}, s26, v{V_L16}
    v_lshlrev_b32 v2, 4, v{V_N}
    v_lshl_add_u32 v{V_PM}, v{V_Q}, 2, v2
    v_mov_b32 v14, v{V_L16}
    s_waitcnt vmcnt(0)
    ''')
    mark(o, 70)
    LT = o.new('LT')
    o.label(LT)
    gemm_seg(o, XR, 7, lambda tt, t, ks, x: f'{MM} {vr(acc(tt,t),4)}, {wreg_half(t,ks>>1,ks&1)}, {vr(x,4)}, ' + ('0' if ks == 0 else vr(acc(tt, t), 4)), 0)
    o(f'''
    s_mul_i32 s30, s{S_SEG}, {SBS}
    s_mul_i32 s22, s{S_W}, {14*256}
    s_add_u32 s30, s30, s22
    s_add_u32 s30, s30, {OFF_XN}
    s_add_u32 s31, s30, 14336
    s_mul_i32 s32, s{S_SEG}, {SCS}
    s_add_u32 s32, s32, {OFF_SC}
    s_mul_i32 s22, s{S_W}, {7*256}
    s_add_u32 s33, s32, s22
    s_lshl_b32 s34, s{S_SEG}, 7
    s_lshl_b32 s22, s{S_W}, 6
    s_add_u32 s34, s34, s22
    s_add_u32 s34, s34, {OFF_G}
    ''')
    for t in range(7):
        for tt in range(2):
            a = acc(tt, t)
            o(f'v_cvt_pk_bf16_f32 v{a}, v{a}, v{a+1}')
            o(f'v_cvt_pk_bf16_f32 v{a+1}, v{a+2}, v{a+3}')
            o(f'buffer_load_dwordx2 {vr(a+2,2)}, v{V_XK}, {WSR}, s{30+tt} offen offset:{t*512}')
    o(f'buffer_load_dword v15, v{V_G}, {WSR}, s34 offen')
    SX = {(0, 0): XR, (1, 0): XR + 4, (1, 1): XR + 8}
    SMm = [XR + 12, XR + 16]
    o('s_waitcnt vmcnt(0)')
    for t in range(7):
        for (tt, kt), d in SX.items():
            o(f'{M16} {vr(d,4)}, {vr(acc(kt,t)+2,2)}, {vr(acc(tt,t),2)}, ' + ('0' if t == 0 else vr(d, 4)))
    if T.CFG.get('tal', 1):
        LS = o.new('LS')
        o(f's_cmp_eq_u32 s{S_SEG}, 63')
        o(f's_cbranch_scc1 {LS}')
        wait_written(o, 32, 0, exit_label, TMP, T.CFG.get('tas', 8))
        o.label(LS)
    LM, LM2 = o.new('LM'), o.new('LM')
    o.label(LM)
    for t in range(7):
        o(f'buffer_load_dwordx2 {vr(acc(0,t)+2,2)}, v{V_MK}, {WSR}, s33 offen offset:{t*256} sc1')
    o(f's_sub_u32 s{S_BUD}, s{S_BUD}, 1')
    o(f's_cbranch_scc1 {exit_label}')
    o(f'ds_write_b128 v{V_LW}, {vr(SX[0,0],4)}')
    o(f'ds_write_b128 v{V_LW}, {vr(SX[1,0],4)} offset:3072')
    o(f'ds_write_b128 v{V_LW}, {vr(SX[1,1],4)} offset:4096')
    o('s_waitcnt vmcnt(0)')
    o(f'v_max_u32 v{TMP}, v{acc(0,0)+2}, v{acc(0,0)+3}')
    for t in range(1, 7):
        o(f'v_max3_u32 v{TMP}, v{TMP}, v{acc(0,t)+2}, v{acc(0,t)+3}')
    o(f'v_cmp_eq_u32 vcc, -1, v{TMP}')
    o(f's_cbranch_vccz {LM2}')
    o('s_sleep 4')
    o(f's_branch {LM}')
    o.label(LM2)
    for t in range(7):
        for tt in range(2):
            o(f'{M16} {vr(SMm[tt],4)}, {vr(acc(0,t)+2,2)}, {vr(acc(tt,t),2)}, ' + ('0' if t == 0 else vr(SMm[tt], 4)))
    o('s_nop 7')
    o(f'ds_write_b64 v{V_LW}, {vr(SMm[0],2)} offset:2048')
    o(f'ds_write_b64 v{V_LW}, {vr(SMm[1],2)} offset:5120')
    o(f'''
    s_mov_b32 s35, s{S_SEG}
    s_add_u32 s{S_SEG}, s{S_SEG}, {NCOPY}
    s_min_u32 s31, s{S_SEG}, 63
    s_waitcnt lgkmcnt(0)
    s_barrier
    ''')
    LN, L1 = o.new('LN'), o.new('L1')
    o(f's_cmp_ge_u32 s{S_W}, 2')
    o(f's_cbranch_scc1 {LN}')
    o(f's_cmp_eq_u32 s{S_W}, 1')
    o(f's_cbranch_scc1 {L1}')
    R = ACC
    for tt in range(2):
        if tt == 1:
            o.label(L1)
        kts = [0] if tt == 0 else [0, 1]
        for sw in range(4):
            for kt in kts:
                o(f'ds_read_b128 {vr(R+12*sw+4*kt,4)}, v14 offset:{sw*6144 + tt*3072 + kt*1024}')
            o(f'ds_read_b64 {vr(R+12*sw+8,2)}, v14 offset:{sw*6144 + tt*3072 + 2048}')
        regs = [4 * kt + r for kt in kts for r in range(4)] + [8, 9]
        o(f'v_mov_b32 v{TMP+1}, 0xff800000')
        o(f'v_sub_f32 v15, 1.0, v15')
        o('s_waitcnt lgkmcnt(0)')
        for r in regs:
            o(f'v_add_f32 v{R+r}, v{R+r}, v{R+12+r}')
            o(f'v_add_f32 v{R+24+r}, v{R+24+r}, v{R+36+r}')
        for r in regs:
            o(f'v_add_f32 v{R+r}, v{R+r}, v{R+24+r}')
        for r in range(4):
            o(f'v_cndmask_b32 v{R+4*tt+r}, v{TMP+1}, v{R+4*tt+r}, s[{48+2*r}:{49+2*r}]')
        o(f'v_max_f32 v{TMP}, v{R+8}, v{R+9}')
        for i in range(0, len(regs) - 2, 2):
            o(f'v_max3_f32 v{TMP}, v{TMP}, v{R+regs[i]}, v{R+regs[i+1]}')
        xq(o, 'v_max_f32', TMP, TMP + 2)
        for r in regs:
            o(f'v_sub_f32 v{R+r}, v{R+r}, v{TMP}')
        for r in regs:
            o(f'v_exp_f32 v{R+r}, v{R+r}')
        o('s_nop 0')
        o(f'v_add_f32 v{TMP}, v{R+8}, v{R+9}')
        for r in regs[:-2]:
            o(f'v_add_f32 v{TMP}, v{TMP}, v{R+r}')
        xq(o, 'v_add_f32', TMP, TMP + 2)
        o(f'v_rcp_f32 v{TMP}, v{TMP}')
        o('s_nop 0')
        o(f'v_mul_f32 v{TMP}, v{TMP}, v15')
        for r in regs:
            o(f'v_mul_f32 v{R+r}, v{R+r}, v{TMP}')
        o(f'v_cvt_pk_bf16_f32 v{S+4}, |v{R+8}|, |v{R+9}|')
        o(f'ds_write_b32 v{V_PM}, v{S+4} offset:{24576 + tt*256}')
        o(f'ds_read_b128 {vr(S+8,4)}, v2 offset:{24576 + tt*256}')
        for r in range(4):
            hi = f'|v{R+4+r}|' if tt == 1 else '0'
            o(f'v_cvt_pk_bf16_f32 v{S+r}, |v{R+r}|, {hi}')
        o(f'''
        s_lshl_b32 s22, s{S_ID}, 11
        s_add_u32 s22, s22, s32
        s_add_u32 s22, s22, {7168 + tt*1024}
        s_lshr_b32 s23, s{S_ID}, 2
        s_lshl_b32 s23, s23, 11
        s_add_u32 s23, s23, s32
        s_add_u32 s23, s23, {7168 + 32768 + tt*1024}
        s_and_b32 s26, s{S_ID}, 3
        s_lshl_b32 s26, s26, 8
        s_add_u32 s23, s23, s26
        buffer_store_dwordx4 {vr(S,4)}, v{V_L16}, {WSR}, s22 offen sc1
        s_mov_b64 exec, 0xffff
        s_waitcnt lgkmcnt(0)
        buffer_store_dwordx4 {vr(S+8,4)}, v2, {WSR}, s23 offen sc1
        s_mov_b64 exec, -1
        ''')
        if tt == 0:
            o(f's_branch {LN}')
    o.label(LN)
    o(f'v_xor_b32 v{V_LW}, 0x8000, v{V_LW}')
    o(f'v_xor_b32 v14, 0x8000, v14')
    x_start(o, XR, 31)
    o(f's_cmp_lt_u32 s{S_SEG}, 64')
    o(f's_cbranch_scc1 {LT}')
    o(f's_branch {exit_label}')
LDS_TA = 65536

def gen_HG(o, exit_label):
    def hw(t, ks):
        u = t * 14 + ks
        return ar(4 * u, 4) if u < 64 else vr(176 + 4 * (u - 64), 4)
    ACC, XR, KV, W = 16, 64, 96, 128
    acc = lambda tt, t: ACC + (tt * 6 + t) * 4
    kv = lambda sg, ft, dt: KV + ((sg * 2 + ft) * 2 + dt) * 4
    V_ONE, V_PH, V_G, TMP = 8, 5, 6, 12
    def signal(off_sgpr):
        L = o.new('Lsg')
        o(f'''
        s_waitcnt vmcnt(0)
        s_barrier
        s_cmp_lg_u32 s{S_W}, 0
        s_cbranch_scc1 {L}
        v_mov_b32 v{TMP}, 1
        v_mov_b32 v{TMP+1}, 0
        s_mov_b64 exec, 1
        buffer_atomic_add v{TMP}, v{TMP+1}, {WSR}, s{off_sgpr} offen
        s_mov_b64 exec, -1
        {L}:
        ''')
    T.VERIFY(o, 16)
    LH0 = o.new('LH')
    o(f'''
    s_lshl_b32 s{S_SEG}, s{S_J}, 3
    s_lshl_b32 s27, s{S_ID}, 2
    s_add_u32 s27, s27, s{S_W}                 ; head
    s_load_dwordx2 s[52:53], s[0:1], {KA_WQKV}
    s_load_dwordx2 s[56:57], s[0:1], {KA_WPHI}
    s_mov_b32 s54, {448*2688}
    s_mov_b32 s55, 0x20000
    s_mov_b32 s58, {16*28*28*2}
    s_mov_b32 s59, 0x20000
    s_and_b32 s33, s{S_J}, 1
    s_mov_b32 s34, s27
    s_lshr_b32 s35, s{S_J}, 1
    v_lshlrev_b32 v1, 4, v0
    v_and_b32 v2, 15, v0
    v_lshrrev_b32 v3, 4, v0
    s_waitcnt lgkmcnt(0)
    s_cmp_ge_u32 s{S_J}, 6
    s_cbranch_scc1 {LH0}
    ''')
    prep.gen_hf(o)
    o.label(LH0)
    o(f's_lshl_b32 s30, s{S_ID}, 7')
    o(f's_add_u32 s30, s30, {OFF_FL + FL_KV + 512}')
    signal(30)
    poll_counter(o, 30, 8, exit_label, TMP)
    lane_consts(o)
    x_start(o, XR, S_SEG)
    o(f's_mul_i32 s22, s27, {HFH}')
    o(f's_add_u32 s22, s22, {OFF_HF}')
    for u in range(84):
        o(f'buffer_load_dwordx4 {hw(u // 14, u % 14)}, v{V_L16}, {WSR}, s22 offen offset:{(u&3)*1024} sc1')
        if u & 3 == 3:
            o('s_add_u32 s22, s22, 4096')
        if u % 12 == 11 and u > 40:
            o('s_waitcnt vmcnt(40)')
    jninv(o, V_G, TMP)
    o(f'''
    v_lshlrev_b32 v{V_G}, 2, v{V_G}
    v_cmp_eq_u32 vcc, 12, v{V_N}
    v_cmp_gt_u32 s[48:49], 3, v{V_Q}
    v_cmp_gt_u32 s[50:51], 12, v{V_N}
    v_cndmask_b32 v{V_ONE}, 0, 1.0, vcc
    v_mov_b32 v{V_ONE+1}, v{V_ONE}
    v_mov_b32 v{V_ONE+2}, v{V_ONE}
    v_mov_b32 v{V_ONE+3}, v{V_ONE}
    s_lshl_b32 s26, s{S_W}, 15
    v_add_u32 v{V_PH}, s26, v{V_L16}
    s_mov_b32 s28, 0
    ''')
    for r in range(32):
        o(f'v_mov_b32 v{KV+r}, 0')
    o('s_waitcnt vmcnt(0)')
    mark(o, 70)
    LH = o.new('LH')
    o.label(LH)
    def mf(tt, t, ks, x):
        c = vr(acc(tt, t), 4) if ks else (vr(V_ONE, 4) if t == 5 else '0')
        a, b = (hw(t, ks), vr(x, 4)) if t < 2 else (vr(x, 4), hw(t, ks))
        return f'{MM} {vr(acc(tt,t),4)}, {a}, {b}, {c}'
    gemm_seg(o, XR, 6, mf, 0)
    o(f's_add_u32 s{S_SEG}, s{S_SEG}, 1')
    o(f's_min_u32 s31, s{S_SEG}, 63')
    x_start(o, XR, 31)
    for tt in range(2):
        y = acc(tt, 0)
        mx, mn, t2, EP, EM = W, W + 1, W + 2, W + 8, W + 16
        for r in range(4):
            o(f'v_cndmask_b32 v{y+4+r}, v{y}, v{y+4+r}, s[48:49]')
        o(f'v_max3_f32 v{mx}, v{y}, v{y+1}, v{y+2}')
        o(f'v_min3_f32 v{mn}, v{y}, v{y+1}, v{y+2}')
        o(f'v_max3_f32 v{mx}, v{mx}, v{y+3}, v{y+4}')
        o(f'v_min3_f32 v{mn}, v{mn}, v{y+3}, v{y+4}')
        o(f'v_max3_f32 v{mx}, v{mx}, v{y+5}, v{y+6}')
        o(f'v_min3_f32 v{mn}, v{mn}, v{y+5}, v{y+6}')
        o(f'v_max_f32 v{mx}, v{mx}, v{y+7}')
        o(f'v_min_f32 v{mn}, v{mn}, v{y+7}')
        xq(o, 'v_max_f32', mx, t2)
        xq(o, 'v_min_f32', mn, t2)
        for r in range(8):
            o(f'v_sub_f32 v{EP+r}, v{y+r}, v{mx}')
            o(f'v_sub_f32 v{EM+r}, v{mn}, v{y+r}')
        for r in range(8):
            o(f'v_exp_f32 v{EP+r}, v{EP+r}')
            o(f'v_exp_f32 v{EM+r}, v{EM+r}')
        o('s_nop 0')
        for r in range(4, 8):
            o(f'v_cndmask_b32 v{EP+r}, 0, v{EP+r}, s[48:49]')
            o(f'v_cndmask_b32 v{EM+r}, 0, v{EM+r}, s[48:49]')
        o(f'v_add_f32 v{mx}, v{EP}, v{EP+1}')
        o(f'v_add_f32 v{mn}, v{EM}, v{EM+1}')
        for r in range(2, 8):
            o(f'v_add_f32 v{mx}, v{mx}, v{EP+r}')
            o(f'v_add_f32 v{mn}, v{mn}, v{EM+r}')
        xq(o, 'v_add_f32', mx, t2)
        xq(o, 'v_add_f32', mn, t2)
        o(f'v_rcp_f32 v{mx}, v{mx}')
        o(f'v_rcp_f32 v{mn}, v{mn}')
        o('s_nop 0')
        for r in range(8):
            o(f'v_mul_f32 v{EP+r}, v{EP+r}, v{mx}')
            o(f'v_mul_f32 v{EM+r}, v{EM+r}, v{mn}')
        for r in range(4):
            o(f'v_cvt_pk_bf16_f32 v{EP+r}, v{EP+2*r}, v{EP+2*r+1}')
        for r in range(4):
            o(f'v_cvt_pk_bf16_f32 v{EM+r}, v{EM+2*r}, v{EM+2*r+1}')
        o(f'ds_write_b128 v{V_PH}, {vr(EP,4)} offset:{tt*2048}')
        o(f'ds_write_b128 v{V_PH}, {vr(EM,4)} offset:{tt*2048+1024}')
    o(f'v_add_u32 v{V_PH}, 4096, v{V_PH}')
    items = [(tt, r) for tt in range(2) for r in range(4)]
    y0 = lambda i: acc(items[i][0], 2) + items[i][1]
    y1 = lambda i: acc(items[i][0], 3) + items[i][1]
    MX, MN, N0, N1 = W, W + 8, W + 16, W + 24
    dpp = lambda op, r, sh: f'{op}_dpp v{r}, v{r}, v{r} row_ror:{sh} row_mask:0xf bank_mask:0xf'
    for i in range(8):
        o(f'v_cndmask_b32 v{y1(i)}, v{y0(i)}, v{y1(i)}, s[50:51]')
    for i in range(8):
        o(f'v_max_f32 v{MX+i}, v{y0(i)}, v{y1(i)}')
        o(f'v_min_f32 v{MN+i}, v{y0(i)}, v{y1(i)}')
    for sh in (8, 4, 2, 1):
        for i in range(8):
            o(dpp('v_max_f32', MX + i, sh))
        for i in range(8):
            o(dpp('v_min_f32', MN + i, sh))
    for i in range(8):
        o(f'v_sub_f32 v{N0+i}, v{MN+i}, v{y0(i)}')
        o(f'v_sub_f32 v{N1+i}, v{MN+i}, v{y1(i)}')
        o(f'v_sub_f32 v{y0(i)}, v{y0(i)}, v{MX+i}')
        o(f'v_sub_f32 v{y1(i)}, v{y1(i)}, v{MX+i}')
    for i in range(8):
        for r in (N0 + i, N1 + i, y0(i), y1(i)):
            o(f'v_exp_f32 v{r}, v{r}')
    o('s_nop 0')
    for i in range(8):
        o(f'v_cndmask_b32 v{y1(i)}, 0, v{y1(i)}, s[50:51]')
        o(f'v_cndmask_b32 v{N1+i}, 0, v{N1+i}, s[50:51]')
    for i in range(8):
        o(f'v_add_f32 v{MX+i}, v{y0(i)}, v{y1(i)}')
        o(f'v_add_f32 v{MN+i}, v{N0+i}, v{N1+i}')
    for sh in (8, 4, 2, 1):
        for i in range(8):
            o(dpp('v_add_f32', MX + i, sh))
        for i in range(8):
            o(dpp('v_add_f32', MN + i, sh))
    for i in range(16):
        o(f'v_rcp_f32 v{MX+i}, v{MX+i}')
    o('s_nop 0')
    for i in range(8):
        o(f'v_mul_f32 v{y0(i)}, v{y0(i)}, v{MX+i}')
        o(f'v_mul_f32 v{y1(i)}, v{y1(i)}, v{MX+i}')
        o(f'v_mul_f32 v{N0+i}, v{N0+i}, v{MN+i}')
        o(f'v_mul_f32 v{N1+i}, v{N1+i}, v{MN+i}')
    PK = W + 32
    for i in range(0, 8, 2):
        o(f'v_cvt_pk_bf16_f32 v{PK+i//2}, v{y0(i)}, v{y0(i+1)}')
        o(f'v_cvt_pk_bf16_f32 v{PK+4+i//2}, v{y1(i)}, v{y1(i+1)}')
        o(f'v_cvt_pk_bf16_f32 v{PK+8+i//2}, v{N0+i}, v{N0+i+1}')
        o(f'v_cvt_pk_bf16_f32 v{PK+12+i//2}, v{N1+i}, v{N1+i+1}')
    for dt in range(2):
        for i in range(0, 8, 2):
            a = acc(items[i][0], 4 + dt) + items[i][1]
            o(f'v_cvt_pk_bf16_f32 v{W+4*dt+i//2}, v{a}, v{a+1}')
    o('s_nop 1')
    for sg in range(2):
        for ft in range(2):
            for dt in range(2):
                o(f'{MM} {vr(kv(sg,ft,dt),4)}, {vr(PK+8*sg+4*ft,4)}, {vr(W+4*dt,4)}, {vr(kv(sg,ft,dt),4)}')
    o(f'''
    s_add_u32 s28, s28, 1
    s_cmp_lt_u32 s28, 8
    s_cbranch_scc1 {LH}
    s_lshl_b32 s29, s27, 16
    s_add_u32 s29, s29, {OFF_KVP}
    s_lshl_b32 s22, s{S_J}, 13
    s_add_u32 s22, s22, s29
    s_add_u32 s23, s22, 4096
    s_nop 7
    ''')
    for i in range(8):
        o(f'buffer_store_dwordx4 {vr(KV+4*i,4)}, v{V_L16}, {WSR}, s{22+(i>>2)} offen offset:{(i&3)*1024} sc1')
    o(f's_lshl_b32 s30, s{S_ID}, 7')
    o(f's_add_u32 s30, s30, {OFF_FL + FL_KV}')
    mark(o, 88)
    signal(30)
    poll_counter(o, 30, 8, exit_label, TMP)
    for tb in range(8):
        dst = KV if tb == 0 else (16 if tb & 1 else 48)
        o(f's_add_u32 s23, s29, 4096')
        for i in range(8):
            o(f'buffer_load_dwordx4 {vr(dst+4*i,4)}, v{V_L16}, {WSR}, s{29 if i < 4 else 23} offen offset:{(i&3)*1024} sc1')
        o(f's_add_u32 s29, s29, 8192')
        if tb >= 2:
            o('s_waitcnt vmcnt(8)')
            p = 16 if (tb - 1) & 1 else 48
            for r in range(32):
                o(f'v_add_f32 v{KV+r}, v{KV+r}, v{p+r}')
    o('s_waitcnt vmcnt(0)')
    for r in range(32):
        o(f'v_add_f32 v{KV+r}, v{KV+r}, v{16+r}')
    KT = W
    for sg in range(2):
        for dt in range(2):
            for ft in range(2):
                for rp in range(2):
                    a = kv(sg, ft, dt) + 2 * rp
                    o(f'v_cvt_pk_bf16_f32 v{KT+(sg*2+dt)*4+2*ft+rp}, v{a}, v{a+1}')
    o(f'''
    s_lshl_b32 s26, s{S_W}, 15
    v_add_u32 v{V_PH}, s26, v{V_L16}
    v_add_u32 v7, 48, v{V_N}
    v_lshlrev_b32 v7, 2, v7
    s_lshl_b32 s22, s{S_J}, 18
    s_lshl_b32 s23, s27, 11
    s_add_u32 s22, s22, s23
    s_add_u32 s22, s22, {OFF_OB}
    s_lshl_b32 s23, s{S_J}, 10
    s_add_u32 s23, s23, {OFF_G}
    s_mov_b32 s28, 0
    ''')
    L2 = o.new('LH')
    o.label(L2)
    PQ, DD = 16, 32
    for i in range(4):
        o(f'ds_read_b128 {vr(PQ+4*i,4)}, v{V_PH} offset:{i*1024}')
    for tt in range(2):
        o(f'buffer_load_dword v{48+tt}, v{V_G}, {WSR}, s23 offen offset:{tt*64}')
    o('s_waitcnt lgkmcnt(0)')
    for sg in range(2):
        for tt in range(2):
            for dt in range(2):
                d = DD + (tt * 2 + dt) * 4
                o(f'{MM} {vr(d,4)}, {vr(KT+(sg*2+dt)*4,4)}, {vr(PQ+8*tt+4*sg,4)}, ' + ('0' if sg == 0 else vr(d, 4)))
    o('s_nop 7')
    for tt in range(2):
        o(f'ds_bpermute_b32 v{50+tt}, v7, v{DD+8*tt+4}')
    o('s_waitcnt vmcnt(0) lgkmcnt(0)')
    for tt in range(2):
        o(f'v_add_f32 v{50+tt}, {f32(1e-6)}, v{50+tt}')
        o(f'v_rcp_f32 v{50+tt}, v{50+tt}')
    o('s_nop 0')
    for tt in range(2):
        d = DD + 8 * tt
        o(f'v_mul_f32 v{50+tt}, v{50+tt}, v{48+tt}')
        for r in range(8):
            o(f'v_mul_f32 v{d+r}, v{d+r}, v{50+tt}')
        for r in range(4):
            o(f'v_cvt_pk_bf16_f32 v{56+4*tt+r}, v{d+2*r}, v{d+2*r+1}')
        o(f'v_cndmask_b32 v{58+4*tt}, 0, v{58+4*tt}, s[48:49]')
        o(f'v_cndmask_b32 v{59+4*tt}, 0, v{59+4*tt}, s[48:49]')
        o(f'buffer_store_dwordx4 {vr(56+4*tt,4)}, v{V_L16}, {WSR}, s22 offen offset:{tt*1024} sc1')
    o(f'''
    v_add_u32 v{V_PH}, 4096, v{V_PH}
    s_add_u32 s22, s22, 32768
    s_add_u32 s23, s23, 128
    s_add_u32 s28, s28, 1
    s_cmp_lt_u32 s28, 8
    s_cbranch_scc1 {L2}
    s_lshl_b32 s30, s{S_J}, 7
    s_add_u32 s30, s30, {OFF_FL + FL_O}
    ''')
    signal(30)
    o(f's_branch {exit_label}')
LDS_HG = 131072
```

```python
import sys
from common import *
import prep, team as T, workers as W

LDS_K2 = 131072
HEAD = open('gated_mix__linear_kernel_hedgehog__memory_aug_recurrent_mem_tr__prompt.s.ref').read().split('; Override launch')[0]

def gen_main(o, name, diag=False, force_slow=False):
    def verify(o, t):
        L1, L2 = o.new('Lvf'), o.new('Lvf')
        o(f'''
        s_cmp_lg_u32 s94, 0
        s_cbranch_scc1 {L2}
        v_and_b32 v{t+1}, 31, v0
        v_lshlrev_b32 v{t+1}, 2, v{t+1}
        {L1}:
        buffer_load_dword v{t}, v{t+1}, s[12:15], 0 offen offset:128 sc1
        s_sub_u32 s{T.S_BUD}, s{T.S_BUD}, 1
        s_cbranch_scc1 {name}_exit
        s_waitcnt vmcnt(0)
        v_cmp_eq_u32 vcc, 0, v{t}
        s_cbranch_vccnz {L1}
        v_readfirstlane_b32 s94, v{t}
        s_nop 1
        v_cmp_ne_u32 vcc, {'s94' if not force_slow else '0'}, v{t}
        s_cbranch_vccnz {name}_census
        {L2}:
        ''')
    T.VERIFY = verify
    X = name + '_exit'
    o.label(name)
    o(f'''
    s_cmp_ge_u32 s2, 256
    s_cbranch_scc1 {name}_end
    s_load_dwordx2 s[4:5], s[0:1], {KA_WS}
    s_load_dwordx2 s[8:9], s[0:1], {KA_OUT}
    s_load_dwordx2 s[12:13], s[0:1], {KA_DBG}
    s_load_dwordx2 s[44:45], s[0:1], {KA_WO}
    ''')
    if diag:
        o('s_memrealtime s[68:69]')
    o(f'''
    s_getreg_b32 s3, hwreg(HW_REG_XCC_ID)
    s_and_b32 s3, s3, 15
    s_mov_b32 s6, {WS_BYTES}
    s_mov_b32 s7, 0x20000
    s_mov_b32 s10, {2048*896}
    s_mov_b32 s11, 0x20000
    s_mov_b32 s14, 256
    s_mov_b32 s15, 0x20000
    s_mov_b32 s46, {448*896}
    s_mov_b32 s47, 0x20000
    s_mov_b32 s{T.S_BUD}, 400000
    v_lshrrev_b32 v1, 6, v0
    v_and_b32 v0, 63, v0
    v_readfirstlane_b32 s{T.S_W}, v1
    s_waitcnt lgkmcnt(0)
    s_and_b32 s22, s2, 7
    s_lshl_b32 s22, s22, 5
    s_lshr_b32 s23, s2, 3
    s_add_u32 s22, s22, s23
    s_mov_b32 s94, 0
    s_cmp_ge_u32 s22, 32
    s_cbranch_scc1 {name}_go
    s_cmp_lg_u32 s{T.S_W}, 0
    s_cbranch_scc1 {name}_go
    s_add_u32 s23, s3, 1
    v_mov_b32 v2, s23
    s_lshl_b32 s23, s22, 2
    v_mov_b32 v3, s23
    s_mov_b64 exec, 1
    buffer_store_dword v2, v3, s[12:15], 0 offen offset:128 sc1
    s_mov_b64 exec, -1
    s_branch {name}_go
    {name}_census:
    s_mov_b32 s94, 1
    s_waitcnt vmcnt(0) lgkmcnt(0)
    s_barrier
    v_mbcnt_lo_u32_b32 v0, -1, 0
    v_mbcnt_hi_u32_b32 v0, -1, v0
    s_cmp_lg_u32 s{T.S_W}, 0
    s_cbranch_scc1 {name}_c2
    v_mov_b32 v2, 1
    v_mov_b32 v3, 0
    s_lshl_b32 s20, s3, 2
    s_mov_b64 exec, 1
    buffer_atomic_add v2, v3, s[12:15], s20 offen sc0
    s_mov_b64 exec, -1
    v_and_b32 v3, 15, v0
    v_lshlrev_b32 v3, 2, v3
    s_waitcnt vmcnt(0)
    v_readfirstlane_b32 s21, v2                ; ticket
    {name}_c1:
    buffer_load_dword v4, v3, s[12:15], 0 offen sc1
    s_sub_u32 s{T.S_BUD}, s{T.S_BUD}, 1
    s_cbranch_scc1 {name}_end
    s_waitcnt vmcnt(0)
    v_mov_b32 v5, v4
    s_nop 1
    v_add_u32_dpp v5, v5, v5 row_ror:8 row_mask:0xf bank_mask:0xf
    s_nop 1
    v_add_u32_dpp v5, v5, v5 row_ror:4 row_mask:0xf bank_mask:0xf
    s_nop 1
    v_add_u32_dpp v5, v5, v5 row_ror:2 row_mask:0xf bank_mask:0xf
    s_nop 1
    v_add_u32_dpp v5, v5, v5 row_ror:1 row_mask:0xf bank_mask:0xf
    v_cmp_gt_u32 vcc, 256, v5
    s_cbranch_vccnz {name}_c1
    v_and_b32 v6, 15, v0
    v_cmp_gt_u32 vcc, s3, v6
    s_nop 1
    v_cndmask_b32 v5, 0, v4, vcc
    s_nop 1
    v_add_u32_dpp v5, v5, v5 row_ror:8 row_mask:0xf bank_mask:0xf
    s_nop 1
    v_add_u32_dpp v5, v5, v5 row_ror:4 row_mask:0xf bank_mask:0xf
    s_nop 1
    v_add_u32_dpp v5, v5, v5 row_ror:2 row_mask:0xf bank_mask:0xf
    s_nop 1
    v_add_u32_dpp v5, v5, v5 row_ror:1 row_mask:0xf bank_mask:0xf
    v_cmp_le_u32 vcc, {32 if not force_slow else 1000}, v4
    s_nop 0
    v_readfirstlane_b32 s22, v5
    s_ff1_i32_b32 s23, vcc_lo
    s_add_u32 s22, s22, s21
    s_cmp_lt_i32 s23, 0
    s_cbranch_scc1 {name}_c3
    s_add_u32 s24, s22, 32
    s_cmp_ge_u32 s3, s23
    s_cselect_b32 s22, s22, s24
    s_cmp_lt_u32 s21, 32
    s_cselect_b32 s24, s21, s22
    s_cmp_eq_u32 s3, s23
    s_cselect_b32 s22, s24, s22
    s_branch {name}_c4
    {name}_c3:
    s_or_b32 s22, s22, 0x10000
    {name}_c4:
    v_mov_b32 v2, s22
    v_mov_b32 v3, 0
    ds_write_b32 v3, v2
    s_waitcnt lgkmcnt(0)
    {name}_c2:
    s_barrier
    v_mov_b32 v3, 0
    ds_read_b32 v2, v3
    s_waitcnt lgkmcnt(0)
    v_readfirstlane_b32 s22, v2
    s_barrier
    {name}_go:
    s_lshr_b32 s{T.S_MODE}, s22, 16
    s_and_b32 s{T.S_MODE}, s{T.S_MODE}, 1
    s_and_b32 s22, s22, 255
    s_mov_b32 s85, s22
    {'s_memrealtime s[86:87]' if diag else ''}
    s_cmp_ge_u32 s22, 32
    s_cbranch_scc1 {name}_w
    s_mov_b32 s{T.S_ROLE}, s22
    ''')
    T.gen_team_body(o, X)
    o.raw('.p2align 6')
    o.label(name + '_w')
    o(f'''
    s_sub_u32 s22, s22, 32
    s_cmp_ge_u32 s22, 192
    s_cbranch_scc1 {name}_hg
    s_mul_i32 s23, s22, 10923
    s_lshr_b32 s23, s23, 16
    s_mul_i32 s24, s23, 6
    s_sub_u32 s{W.S_J}, s22, s24
    s_and_b32 s{W.S_ID}, s23, 15
    s_cmp_ge_u32 s23, 16
    s_cbranch_scc1 {name}_ta
    ''')
    if T.CFG.get('now'): o(f's_branch {X}')
    if T.CFG.get('dlyw'): o('s_sleep 127\n' * T.CFG['dlyw'])
    W.gen_WB(o, X)
    o.label(name + '_ta')
    if T.CFG.get('nota'): o(f's_branch {X}')
    if T.CFG.get('dly'): o('s_sleep 127\n' * T.CFG['dly'])
    W.gen_TA(o, X)
    o.label(name + '_hg')
    o(f'''
    s_sub_u32 s22, s22, 192
    s_lshr_b32 s{W.S_ID}, s22, 3
    s_and_b32 s{W.S_J}, s22, 7
    ''')
    if T.CFG.get('nohg'): o(f's_branch {X}')
    if T.CFG.get('dly'): o('s_sleep 127\n' * T.CFG['dly'])
    W.gen_HG(o, X)
    o.label(X)
    if diag:
        o(f'''
        s_memrealtime s[72:73]
        s_memtime s[92:93]
        s_waitcnt lgkmcnt(0)
        s_sub_u32 s92, s92, s80
        s_lshl_b32 s3, s85, 2
        s_add_u32 s3, s3, s{T.S_W}
        s_lshl_b32 s3, s3, 5
        s_add_u32 s3, s3, {OFF_END1}
        v_mbcnt_lo_u32_b32 v1, -1, 0
        v_mbcnt_hi_u32_b32 v1, -1, v1
        v_lshlrev_b32 v1, 2, v1
        s_sub_u32 s77, s3, {OFF_END1}
        s_lshl_b32 s77, s77, 3
        s_add_u32 s77, s77, {OFF_END1 + 131072}
        s_mov_b64 exec, -1
        buffer_store_dword v0, v1, s[4:7], s77 offen
        v_mov_b32 v1, 0
        s_mov_b64 exec, 1
        ''')
        for i, s in enumerate([68, 70, 72, T.S_BUD, 92, 86, 88, 90]):
            o(f'v_mov_b32 v2, s{s}')
            o(f'buffer_store_dword v2, v1, s[4:7], s3 offen offset:{4*i}')
        o('s_waitcnt vmcnt(0)')
    o.label(name + '_end')
    o('s_endpgm')

def build(diag=False, force_slow=False):
    T.CFG['flags'] = 0 if T.CFG.get('now') else 1
    T.CFG['diag'] = int(diag)
    prep.DIAG = diag
    prep.CFG['warm'] = T.CFG.get('warm', 0)
    prep.CFG['clk'] = T.CFG.get('clk', 0)
    prep.CFG['rot'] = T.CFG.get('rot', 1)
    prep.CFG['sc1'] = T.CFG.get('k1sc1', 1)
    W.DIAG = diag
    o = Asm()
    hdr = HEAD + f'; @launch kernel=prep_kernel grid=(256,1,1) block=(512,1,1) lds={prep.LDS_K1}\n' \
               + f'; @launch kernel=main_kernel grid=(256,1,1) block=(256,1,1) lds={LDS_K2}\n'
    o.raw('.amdgcn_target "amdgcn-amd-amdhsa--gfx950"\n.text\n.globl prep_kernel\n.p2align 8\n.type prep_kernel,@function')
    prep.gen_prep(o, 'prep_kernel')
    o.raw('.globl main_kernel\n.p2align 8\n.type main_kernel,@function')
    gen_main(o, 'main_kernel', diag, force_slow)
    o.raw('.section .rodata,"a"\n.p2align 6')
    o.raw(kd('prep_kernel', 256, 256, 80))
    o.raw('.p2align 6')
    o.raw(kd('main_kernel', 512, 256, 96))
    return hdr + o.text()

if __name__ == '__main__':
    for a in sys.argv[2:]:
        if '=' in a:
            k, v = a.split('='); T.CFG[k] = int(v)
    open(sys.argv[1], 'w').write(build('diag' in sys.argv, 'slow' in sys.argv))
```

```python
import sys
from common import *
import prep, team as T, workers as W

LDS_K2 = 131072
HEAD = open('gated_mix__linear_kernel_hedgehog__memory_aug_recurrent_mem_tr__prompt.s.ref').read().split('; Override launch')[0]

def gen_main(o, name, diag=False, force_slow=False):
    def verify(o, t):
        L1, L2 = o.new('Lvf'), o.new('Lvf')
        o(f'''
        s_cmp_lg_u32 s94, 0
        s_cbranch_scc1 {L2}
        v_and_b32 v{t+1}, 31, v0
        v_lshlrev_b32 v{t+1}, 2, v{t+1}
        {L1}:
        buffer_load_dword v{t}, v{t+1}, s[12:15], 0 offen offset:128 sc1
        s_sub_u32 s{T.S_BUD}, s{T.S_BUD}, 1
        s_cbranch_scc1 {name}_exit
        s_waitcnt vmcnt(0)
        v_cmp_eq_u32 vcc, 0, v{t}
        s_cbranch_vccnz {L1}
        v_readfirstlane_b32 s94, v{t}
        s_nop 1
        v_cmp_ne_u32 vcc, {'s94' if not force_slow else '0'}, v{t}
        s_cbranch_vccnz {name}_census
        {L2}:
        ''')
    T.VERIFY = verify
    X = name + '_exit'
    o.label(name)
    o(f'''
    s_cmp_ge_u32 s2, 256
    s_cbranch_scc1 {name}_end
    s_load_dwordx2 s[4:5], s[0:1], {KA_WS}
    s_load_dwordx2 s[8:9], s[0:1], {KA_OUT}
    s_load_dwordx2 s[12:13], s[0:1], {KA_DBG}
    s_load_dwordx2 s[44:45], s[0:1], {KA_WO}
    ''')
    if diag:
        o('s_memrealtime s[68:69]')
    o(f'''
    s_getreg_b32 s3, hwreg(HW_REG_XCC_ID)
    s_and_b32 s3, s3, 15
    s_mov_b32 s6, {WS_BYTES}
    s_mov_b32 s7, 0x20000
    s_mov_b32 s10, {2048*896}
    s_mov_b32 s11, 0x20000
    s_mov_b32 s14, 256
    s_mov_b32 s15, 0x20000
    s_mov_b32 s46, {448*896}
    s_mov_b32 s47, 0x20000
    s_mov_b32 s{T.S_BUD}, 400000
    v_lshrrev_b32 v1, 6, v0
    v_and_b32 v0, 63, v0
    v_readfirstlane_b32 s{T.S_W}, v1
    s_waitcnt lgkmcnt(0)
    s_and_b32 s22, s2, 7
    s_lshl_b32 s22, s22, 5
    s_lshr_b32 s23, s2, 3
    s_add_u32 s22, s22, s23
    s_mov_b32 s94, 0
    s_cmp_ge_u32 s22, 32
    s_cbranch_scc1 {name}_go
    s_cmp_lg_u32 s{T.S_W}, 0
    s_cbranch_scc1 {name}_go
    s_add_u32 s23, s3, 1
    v_mov_b32 v2, s23
    s_lshl_b32 s23, s22, 2
    v_mov_b32 v3, s23
    s_mov_b64 exec, 1
    buffer_store_dword v2, v3, s[12:15], 0 offen offset:128 sc1
    s_mov_b64 exec, -1
    s_branch {name}_go
    {name}_census:
    s_mov_b32 s94, 1
    s_waitcnt vmcnt(0) lgkmcnt(0)
    s_barrier
    v_mbcnt_lo_u32_b32 v0, -1, 0
    v_mbcnt_hi_u32_b32 v0, -1, v0
    s_cmp_lg_u32 s{T.S_W}, 0
    s_cbranch_scc1 {name}_c2
    v_mov_b32 v2, 1
    v_mov_b32 v3, 0
    s_lshl_b32 s20, s3, 2
    s_mov_b64 exec, 1
    buffer_atomic_add v2, v3, s[12:15], s20 offen sc0
    s_mov_b64 exec, -1
    v_and_b32 v3, 15, v0
    v_lshlrev_b32 v3, 2, v3
    s_waitcnt vmcnt(0)
    v_readfirstlane_b32 s21, v2                ; ticket
    {name}_c1:
    buffer_load_dword v4, v3, s[12:15], 0 offen sc1
    s_sub_u32 s{T.S_BUD}, s{T.S_BUD}, 1
    s_cbranch_scc1 {name}_end
    s_waitcnt vmcnt(0)
    v_mov_b32 v5, v4
    s_nop 1
    v_add_u32_dpp v5, v5, v5 row_ror:8 row_mask:0xf bank_mask:0xf
    s_nop 1
    v_add_u32_dpp v5, v5, v5 row_ror:4 row_mask:0xf bank_mask:0xf
    s_nop 1
    v_add_u32_dpp v5, v5, v5 row_ror:2 row_mask:0xf bank_mask:0xf
    s_nop 1
    v_add_u32_dpp v5, v5, v5 row_ror:1 row_mask:0xf bank_mask:0xf
    v_cmp_gt_u32 vcc, 256, v5
    s_cbranch_vccnz {name}_c1
    v_and_b32 v6, 15, v0
    v_cmp_gt_u32 vcc, s3, v6
    s_nop 1
    v_cndmask_b32 v5, 0, v4, vcc
    s_nop 1
    v_add_u32_dpp v5, v5, v5 row_ror:8 row_mask:0xf bank_mask:0xf
    s_nop 1
    v_add_u32_dpp v5, v5, v5 row_ror:4 row_mask:0xf bank_mask:0xf
    s_nop 1
    v_add_u32_dpp v5, v5, v5 row_ror:2 row_mask:0xf bank_mask:0xf
    s_nop 1
    v_add_u32_dpp v5, v5, v5 row_ror:1 row_mask:0xf bank_mask:0xf
    v_cmp_le_u32 vcc, {32 if not force_slow else 1000}, v4
    s_nop 0
    v_readfirstlane_b32 s22, v5
    s_ff1_i32_b32 s23, vcc_lo
    s_add_u32 s22, s22, s21
    s_cmp_lt_i32 s23, 0
    s_cbranch_scc1 {name}_c3
    s_add_u32 s24, s22, 32
    s_cmp_ge_u32 s3, s23
    s_cselect_b32 s22, s22, s24
    s_cmp_lt_u32 s21, 32
    s_cselect_b32 s24, s21, s22
    s_cmp_eq_u32 s3, s23
    s_cselect_b32 s22, s24, s22
    s_branch {name}_c4
    {name}_c3:
    s_or_b32 s22, s22, 0x10000
    {name}_c4:
    v_mov_b32 v2, s22
    v_mov_b32 v3, 0
    ds_write_b32 v3, v2
    s_waitcnt lgkmcnt(0)
    {name}_c2:
    s_barrier
    v_mov_b32 v3, 0
    ds_read_b32 v2, v3
    s_waitcnt lgkmcnt(0)
    v_readfirstlane_b32 s22, v2
    s_barrier
    {name}_go:
    s_lshr_b32 s{T.S_MODE}, s22, 16
    s_and_b32 s{T.S_MODE}, s{T.S_MODE}, 1
    s_and_b32 s22, s22, 255
    s_mov_b32 s85, s22
    {'s_memrealtime s[86:87]' if diag else ''}
    s_cmp_ge_u32 s22, 32
    s_cbranch_scc1 {name}_w
    s_mov_b32 s{T.S_ROLE}, s22
    ''')
    T.gen_team_body(o, X)
    o.raw('.p2align 6')
    o.label(name + '_w')
    o(f'''
    s_sub_u32 s22, s22, 32
    s_cmp_ge_u32 s22, 192
    s_cbranch_scc1 {name}_hg
    s_mul_i32 s23, s22, 10923
    s_lshr_b32 s23, s23, 16
    s_mul_i32 s24, s23, 6
    s_sub_u32 s{W.S_J}, s22, s24
    s_and_b32 s{W.S_ID}, s23, 15
    s_cmp_ge_u32 s23, 16
    s_cbranch_scc1 {name}_ta
    ''')
    if T.CFG.get('now'): o(f's_branch {X}')
    if T.CFG.get('dlyw'): o('s_sleep 127\n' * T.CFG['dlyw'])
    W.gen_WB(o, X)
    o.label(name + '_ta')
    if T.CFG.get('nota'): o(f's_branch {X}')
    if T.CFG.get('dly'): o('s_sleep 127\n' * T.CFG['dly'])
    W.gen_TA(o, X)
    o.label(name + '_hg')
    o(f'''
    s_sub_u32 s22, s22, 192
    s_lshr_b32 s{W.S_ID}, s22, 3
    s_and_b32 s{W.S_J}, s22, 7
    ''')
    if T.CFG.get('nohg'): o(f's_branch {X}')
    if T.CFG.get('dly'): o('s_sleep 127\n' * T.CFG['dly'])
    W.gen_HG(o, X)
    o.label(X)
    if diag:
        o(f'''
        s_memrealtime s[72:73]
        s_memtime s[92:93]
        s_waitcnt lgkmcnt(0)
        s_sub_u32 s92, s92, s80
        s_lshl_b32 s3, s85, 2
        s_add_u32 s3, s3, s{T.S_W}
        s_lshl_b32 s3, s3, 5
        s_add_u32 s3, s3, {OFF_END1}
        v_mbcnt_lo_u32_b32 v1, -1, 0
        v_mbcnt_hi_u32_b32 v1, -1, v1
        v_lshlrev_b32 v1, 2, v1
        s_sub_u32 s77, s3, {OFF_END1}
        s_lshl_b32 s77, s77, 3
        s_add_u32 s77, s77, {OFF_END1 + 131072}
        s_mov_b64 exec, -1
        buffer_store_dword v0, v1, s[4:7], s77 offen
        v_mov_b32 v1, 0
        s_mov_b64 exec, 1
        ''')
        for i, s in enumerate([68, 70, 72, T.S_BUD, 92, 86, 88, 90]):
            o(f'v_mov_b32 v2, s{s}')
            o(f'buffer_store_dword v2, v1, s[4:7], s3 offen offset:{4*i}')
        o('s_waitcnt vmcnt(0)')
        if T.CFG.get('dbg'):
            o(f'''
            s_cmp_lg_u32 s{T.S_W}, 0
            s_cbranch_scc1 {name}_end
            s_mov_b32 s77, {OFF_END1 + 65536}
            buffer_load_dwordx4 v[8:11], v1, s[4:7], s77 offen
            s_waitcnt vmcnt(0)
            s_cmp_eq_u32 s85, 35
            s_cbranch_scc1 {name}_d2
            s_cmp_lg_u32 s85, 0
            s_cbranch_scc1 {name}_end
            v_sub_u32 v2, v10, v8
            buffer_store_dword v2, v1, s[12:15], 0 offen offset:0
            v_sub_u32 v2, v11, v8
            buffer_store_dword v2, v1, s[12:15], 0 offen offset:4
            v_sub_u32 v2, v9, v8
            buffer_store_dword v2, v1, s[12:15], 0 offen offset:8
            ''')
            for i, s in enumerate([68, 70, 88, 90, 72]):
                o(f'v_sub_u32 v2, s{s}, v8')
                o(f'buffer_store_dword v2, v1, s[12:15], 0 offen offset:{12+4*i}')
            o(f's_branch {name}_end')
            o.label(name + '_d2')
            for i, s in enumerate([70, 88, 72]):
                o(f'v_sub_u32 v2, s{s}, v8')
                o(f'buffer_store_dword v2, v1, s[12:15], 0 offen offset:{40+4*i}')
    o.label(name + '_end')
    o('s_endpgm')

def build(diag=False, force_slow=False):
    T.CFG['flags'] = 0 if T.CFG.get('now') else 1
    T.CFG['diag'] = int(diag)
    prep.DIAG = diag
    prep.CFG['asc1'] = T.CFG.get('asc1', 1)
    prep.CFG['slp'] = T.CFG.get('slp', 0)
    prep.CFG['warm'] = T.CFG.get('warm', 0)
    prep.CFG['clk'] = T.CFG.get('clk', 0)
    prep.CFG['rot'] = T.CFG.get('rot', 1)
    prep.CFG['sc1'] = T.CFG.get('k1sc1', 1)
    W.DIAG = diag
    o = Asm()
    hdr = HEAD + f'; @launch kernel=prep_kernel grid=(256,1,1) block=(512,1,1) lds={prep.LDS_K1}\n' \
               + f'; @launch kernel=main_kernel grid=(256,1,1) block=(256,1,1) lds={LDS_K2}\n'
    o.raw('.amdgcn_target "amdgcn-amd-amdhsa--gfx950"\n.text\n.globl prep_kernel\n.p2align 8\n.type prep_kernel,@function')
    prep.gen_prep(o, 'prep_kernel')
    o.raw('.globl main_kernel\n.p2align 8\n.type main_kernel,@function')
    gen_main(o, 'main_kernel', diag, force_slow)
    o.raw('.section .rodata,"a"\n.p2align 6')
    o.raw(kd('prep_kernel', 256, 256, 80))
    o.raw('.p2align 6')
    o.raw(kd('main_kernel', 512, 256, 96))
    return hdr + o.text()

if __name__ == '__main__':
    for a in sys.argv[2:]:
        if '=' in a:
            k, v = a.split('='); T.CFG[k] = int(v)
    open(sys.argv[1], 'w').write(build('diag' in sys.argv, 'slow' in sys.argv))
```

```python
from common import *

L_M, L_X = 57344, 143360
LDS_K1 = L_X + 17 * 912 + 128
MM = 'v_mfma_f32_16x16x32_bf16'
DIAG = False
CFG = dict(sc1=1, rot=1)

def fin(o):
    if CFG.get('slp'): o(f"s_sleep {CFG['slp']}")
    if DIAG:
        o(f'''
        s_waitcnt vmcnt(0)
        s_memrealtime s[74:75]
        s_lshl_b32 s3, s2, 2
        s_lshr_b32 s16, s16, 1
        s_add_u32 s3, s3, s16
        s_lshl_b32 s3, s3, 4
        s_add_u32 s3, s3, {OFF_END1 + 65536}
        v_mov_b32 v1, 0
        s_waitcnt lgkmcnt(0)
        v_mov_b32 v2, s72
        v_mov_b32 v3, s74
        v_mov_b32 v4, s76
        v_mov_b32 v5, s78
        buffer_store_dwordx4 v[2:5], v1, s[4:7], s3 offen
        ''')
    o('s_endpgm')

def mrow(o, d, t):
    o(f'''
    v_bfe_u32 v{d}, v0, 3, 1
    v_lshlrev_b32 v{d}, 4, v{d}
    v_bfe_u32 v{t}, v0, 1, 1
    v_lshl_add_u32 v{d}, v{t}, 3, v{d}
    v_bfe_u32 v{t}, v0, 2, 1
    v_lshl_add_u32 v{d}, v{t}, 2, v{d}
    v_and_b32 v{t}, 1, v0
    v_add_u32 v{d}, v{d}, v{t}
    ''')

def gen_prep(o, name):
    SC = ' sc1' if CFG['sc1'] else ''
    o.label(name)
    o(f'''
    s_cmp_ge_u32 s2, 256
    s_cbranch_scc1 {name}_end
    {'s_memrealtime s[72:73]' if DIAG else ''}
    s_load_dwordx2 s[4:5], s[0:1], {KA_WS}
    s_load_dwordx4 s[44:47], s[0:1], {KA_WQ}
    s_load_dwordx4 s[48:51], s[0:1], {KA_WV}
    s_load_dwordx2 s[56:57], s[0:1], {KA_MEM0}
    s_mov_b32 s58, 7168
    s_mov_b32 s59, 0x20000
    s_load_dwordx2 s[52:53], s[0:1], {KA_AX}
    s_load_dwordx2 s[60:61], s[0:1], {KA_GATE}
    v_lshrrev_b32 v1, 6, v0
    v_and_b32 v0, 63, v0
    v_readfirstlane_b32 s16, v1
    v_lshlrev_b32 v1, 4, v0                    ; l*16
    v_and_b32 v2, 15, v0                       ; n
    v_lshrrev_b32 v3, 4, v0                    ; q
    s_mov_b32 s6, {WS_BYTES}
    s_mov_b32 s7, 0x20000
    s_mov_b32 s10, {448*8192}
    s_mov_b32 s11, 0x20000
    s_mov_b32 s14, {448*8192}
    s_mov_b32 s15, 0x20000
    ''')
    o(f'''
    s_and_b32 s17, s2, 31                      ; matrix
    s_bfe_u32 s18, s2, 0x10005
    s_lshr_b32 s20, s2, 6
    s_and_b32 s19, s2, 7
    s_lshl_b32 s19, s19, 1
    s_lshr_b32 s21, s17, 3
    s_add_u32 s19, s19, s21
    s_and_b32 s19, s19, 15
    s_lshl_b32 s21, s19, 9
    v_lshrrev_b32 v4, 3, v0
    v_and_b32 v5, 7, v0
    v_xor_b32 v5, v5, v4
    v_lshlrev_b32 v5, 4, v5
    v_lshl_add_u32 v4, v4, 13, v5
    s_lshr_b32 s33, s2, 5
    s_lshl_b32 s33, s33, 4
    s_and_b32 s22, s2, 15
    s_add_u32 s33, s33, s22
    s_cmp_eq_u32 s16, 7
    s_cbranch_scc1 {name}_misc
    s_lshl_b32 s22, s16, 6
    v_add_u32 v5, s22, v0
    v_mul_u32_u24 v6, 4682, v5
    v_lshrrev_b32 v6, 16, v6
    v_mul_u32_u24 v7, 14, v6
    v_sub_u32 v5, v5, v7
    v_lshlrev_b32 v5, 4, v5
    v_mul_u32_u24 v6, 896, v6
    v_add_u32 v5, v5, v6
    s_mul_i32 s24, s18, 7
    s_add_u32 s24, s24, s16
    s_lshl_b32 s25, s24, 18
    s_add_u32 s25, s25, s21
    s_mul_i32 s26, s16, 12288
    s_add_u32 s26, s26, {L_M}
    s_waitcnt lgkmcnt(0)
    s_cmp_ge_u32 s17, 16
    s_cbranch_scc1 {name}_B
    ''')
    ACC, FA, FB = 32, 88, 128
    acc = lambda mt, t: ACC + (mt * 7 + t) * 4
    def stage_m(i):
        return ['\n'.join([f's_add_u32 m0, s{40+p}, {(i % 3)*4096}', f's_add_u32 s23, s{36+p}, {i*128}',
                           'buffer_load_dwordx4 v4, s[8:11], s23 offen lds']) for p in range(4)]
    def body(isB):
        def stage_n(i):
            return ['\n'.join([f's_add_u32 m0, s{(28, 34)[p]}, {i*14336}', f's_add_u32 s23, s{(27, 29)[p]}, {i*(57344 if isB else 128)}',
                               f'buffer_load_dwordx4 v{5 if isB else 4}, s[12:15], s23 offen lds']) for p in range(2)]
        if isB:
            o('s_mov_b32 s8, s48\ns_mov_b32 s9, s49\ns_mov_b32 s12, s50\ns_mov_b32 s13, s51')
            o(f'''
            s_mul_i32 s27, s19, 229376
            s_mul_i32 s22, s20, 224
            s_add_u32 s27, s27, s22
            s_lshl_b32 s28, s16, 10
            ''')
        else:
            o('s_mov_b32 s8, s44\ns_mov_b32 s9, s45\ns_mov_b32 s12, s46\ns_mov_b32 s13, s47')
            o(f'''
            s_mul_i32 s27, s20, 7
            s_add_u32 s27, s27, s16
            s_lshl_b32 s27, s27, 17
            s_add_u32 s27, s27, s21
            s_lshl_b32 s28, s16, 11
            ''')
        ds, dl = (28672, 7168) if isB else (65536, 1024)
        o(f'''
        s_add_u32 s29, s27, {ds}
        s_add_u32 s34, s28, {dl}
        s_cmp_eq_u32 s18, 1
        s_cselect_b32 s22, s29, s27
        s_cselect_b32 s29, s27, s29
        s_mov_b32 s27, s22
        s_cselect_b32 s22, s34, s28
        s_cselect_b32 s34, s28, s34
        s_mov_b32 s28, s22
        ''')
        o(stage_n(0)[0])
        for p in range(4):
            o(f's_add_u32 s22, s20, {p}\ns_and_b32 s22, s22, 3\ns_lshl_b32 s23, s22, 16\ns_add_u32 s{36+p}, s25, s23\ns_lshl_b32 s23, s22, 10\ns_add_u32 s{40+p}, s26, s23')
            o(stage_m(0)[p])
            if p == 1:
                o(stage_n(0)[1])
        LA = o.new('Larm')
        if not isB:
            o(f's_lshl_b32 s22, s2, 3\ns_add_u32 s22, s22, s16\ns_cmp_lg_u32 s22, {9*8}\ns_cbranch_scc1 {LA}')
            mem0_image(o, SC)
            o.label(LA)
        mrow(o, 6, 7)
        for beta in range(2):
            for ksp in range(2):
                d = 8 + 2 * beta + ksp
                o(f'''
                v_add_u32 v7, {2*beta}, v6
                v_add_u32 v{d}, {4*ksp}, v3
                v_xor_b32 v{d}, v{d}, v7
                v_and_b32 v{d}, 7, v{d}
                v_lshlrev_b32 v{d}, 4, v{d}
                v_lshl_add_u32 v{d}, v7, 7, v{d}
                v_add_u32 v{d}, s26, v{d}
                ''')
        if isB:
            o(f'''
            v_lshrrev_b32 v14, 2, v2
            v_lshl_add_u32 v14, v3, 3, v14
            v_mul_u32_u24 v14, 224, v14
            v_and_b32 v7, 3, v0
            v_lshl_add_u32 v14, v7, 3, v14
            s_mul_i32 s22, s20, 112
            s_and_b32 s30, s19, 3
            s_mul_i32 s30, s30, 28
            ''')
            for t in range(7):
                d = 20 + t
                o(f'''
                v_add_u32 v16, s22, v2
                v_add_u32 v16, {16*t}, v16                 ; c
                v_mul_u32_u24 v17, 2341, v16
                v_lshrrev_b32 v17, 16, v17                 ; b = c / 28
                v_mul_u32_u24 v18, 28, v17
                v_sub_u32 v16, v16, v18                    ; cl
                v_and_b32 v18, 1, v16
                v_mul_u32_u24 v18, 14, v18
                v_lshrrev_b32 v16, 1, v16
                v_add3_u32 v16, v16, v18, s30              ; p
                v_mul_u32_u24 v{d}, {HSZ}, v17
                v_lshrrev_b32 v18, 4, v16
                v_mul_u32_u24 v18, 14336, v18
                v_add_u32 v{d}, v{d}, v18
                v_and_b32 v16, 15, v16
                v_lshl_add_u32 v16, v3, 4, v16
                v_lshl_add_u32 v{d}, v16, 4, v{d}
                ''')
            o(f'''
            s_lshr_b32 s31, s19, 2
            s_mul_i32 s31, s31, {7*14336}
            s_add_u32 s31, s31, {OFF_BT}
            ''')
        else:
            for ksp in range(2):
                d = 14 + ksp
                o(f'''
                v_add_u32 v{d}, {4*ksp}, v3
                v_xor_b32 v{d}, v{d}, v2
                v_and_b32 v{d}, 7, v{d}
                v_lshlrev_b32 v{d}, 4, v{d}
                v_lshl_add_u32 v{d}, v2, 7, v{d}
                ''')
            o(f'''
            s_mov_b32 s30, {f32(LOG2E/16)}
            s_mul_i32 s31, s19, {HSZ}
            s_mul_i32 s22, s20, {7*14336}
            s_add_u32 s31, s31, s22
            s_add_u32 s31, s31, {OFF_AF}
            ''')
        o('s_lshl_b32 s22, s24, 10\ns_add_u32 s31, s31, s22')
        def reads(i):
            fa, fb = FA + 16 * (i & 1), FB + 56 * (i & 1)
            g = [[]]
            for ksp in range(2):
                for mt in range(2):
                    g[0].append(f'ds_read_b128 {vr(fa+8*ksp+4*mt,4)}, v{8+2*mt+ksp} offset:{(i % 3)*4096}')
            for ksp in range(2):
                for t in range(7):
                    d = fb + 28 * ksp + 4 * t
                    if isB:
                        g.append([f'ds_read_b64_tr_b16 {vr(d+2*rd,2)}, v14 offset:{i*14336 + (32*ksp+4*rd)*224 + 32*t}' for rd in range(2)])
                    else:
                        g.append([f'ds_read_b128 {vr(d,4)}, v{14+ksp} offset:{i*14336 + t*2048}'])
            return g
        o('s_waitcnt vmcnt(0)\ns_barrier')
        if DIAG: o('s_memrealtime s[76:77]\ns_memtime s[66:67]\ns_waitcnt lgkmcnt(0)')
        for g in reads(0):
            for r in g:
                o(r)
        for i in range(4):
            fa, fb = FA + 16 * (i & 1), FB + 56 * (i & 1)
            nxt, dma = [], []
            if i < 3:
                o('s_waitcnt lgkmcnt(0)\ns_barrier')
                nxt = reads(i + 1)
            else:
                o('s_waitcnt lgkmcnt(0)')
            if nxt:
                for r in nxt[0]:
                    o(r)
            for k in range(14):
                ksp, t = divmod(k, 7)
                for mt in range(2):
                    c = '0' if (i == 0 and ksp == 0) else vr(acc(mt, t), 4)
                    o(f'{MM} {vr(acc(mt,t),4)}, {vr(fa+8*ksp+4*mt,4)}, {vr(fb+28*ksp+4*t,4)}, {c}')
                    if mt == 0 and nxt:
                        for r in nxt[1 + k]:
                            o(r)
                if k % 2 == 1 and k // 2 < len(dma):
                    o(dma[k // 2])
        if DIAG: o('s_memrealtime s[78:79]\ns_memtime s[68:69]\ns_waitcnt lgkmcnt(0)' + ('\ns_sub_u32 s72, s68, s66' if CFG.get('clk') else ''))
        o('s_nop 7')
        for t in range(7):
            a, b = acc(0, t), acc(1, t)
            if not isB:
                for r in range(4):
                    o(f'v_mul_f32 v{a+r}, s30, v{a+r}')
                    o(f'v_mul_f32 v{b+r}, s30, v{b+r}')
            o(f'v_cvt_pk_bf16_f32 v{a}, v{a}, v{a+1}')
            o(f'v_cvt_pk_bf16_f32 v{a+1}, v{a+2}, v{a+3}')
            o(f'v_cvt_pk_bf16_f32 v{a+2}, v{b}, v{b+1}')
            o(f'v_cvt_pk_bf16_f32 v{a+3}, v{b+2}, v{b+3}')
            if isB:
                o(f'buffer_store_dwordx4 {vr(a,4)}, v{20+t}, s[4:7], s31 offen')
            else:
                o(f'buffer_store_dwordx4 {vr(a,4)}, v1, s[4:7], s31 offen' + (SC if CFG.get('asc1', 1) else ''))
                o(f's_add_u32 s31, s31, 14336')
        if DIAG:
            o(f's_cmp_eq_u32 s16, 6\ns_cbranch_scc1 {name}_end')
        fin(o)
    body(False)
    o.label(name + '_B')
    body(True)
    o.label(name + '_misc')
    if CFG.get('warm'):
        o(f'''
        s_getpc_b64 s[36:37]
        {name}_pc:
        s_sub_u32 s36, s36, {name}_pc-{name}
        s_subb_u32 s37, s37, 0
        v_lshlrev_b32 v250, 7, v0
        global_load_dword v251, v250, s[36:37]
        v_add_u32 v250, 8192, v250
        v_min_u32 v250, {name}_end-{name}, v250
        global_load_dword v252, v250, s[36:37]
        ''')
    o(f'''
    s_mov_b32 s54, {2048*896}
    s_mov_b32 s55, 0x20000
    s_mov_b32 s62, 896
    s_mov_b32 s63, 0x20000
    s_mul_i32 s35, s33, 14336
    s_waitcnt lgkmcnt(0)
    s_cmp_ge_u32 s17, 16
    s_cselect_b32 s8, s48, s44
    s_cselect_b32 s9, s49, s45
    s_cselect_b32 s12, s50, s46
    s_cselect_b32 s13, s51, s47
    s_cselect_b64 vcc, -1, 0
    s_bitcmp1_b32 s2, 4
    s_cbranch_scc1 {name}_nox
    s_mov_b32 exec_hi, 0x00ffffff
    ''')
    for i in range(16):
        o(f's_mov_b32 m0, {L_X + i*912}')
        o(f's_add_u32 s22, s35, {i*896}')
        o(f'buffer_load_dwordx4 v1, s[52:55], s22 offen lds')
    o(f's_mov_b32 m0, {L_X + 16*912}')
    o('s_nop 0')
    o('buffer_load_dwordx4 v1, s[60:63], 0 offen lds')
    o('s_mov_b64 exec, -1')
    o.label(name + '_nox')
    for w in range(7):
        o(f'''
        v_add_u32 v5, {64*w}, v0
        v_mul_u32_u24 v6, 4682, v5
        v_lshrrev_b32 v6, 16, v6
        v_mul_u32_u24 v7, 14, v6
        v_sub_u32 v5, v5, v7
        v_lshlrev_b32 v5, 4, v5
        v_mul_u32_u24 v6, 896, v6
        v_add_u32 v5, v5, v6
        v_add_u32 v6, {w*131072}, v4
        v_cndmask_b32 v{20+w}, v6, v5, vcc
        ''')
    o(f'''
    s_mul_i32 s27, s19, 229376
    s_mul_i32 s22, s20, 224
    s_add_u32 s27, s27, s22
    s_mul_i32 s22, s20, {7*131072}
    s_add_u32 s22, s22, s21
    s_mov_b32 s23, 65536
    s_mov_b32 s24, 1024
    s_mov_b32 s30, 2048
    s_mov_b32 s31, 128
    s_cmp_ge_u32 s17, 16
    s_cselect_b32 s27, s27, s22
    s_cselect_b32 s23, 28672, s23
    s_cselect_b32 s24, 7168, s24
    s_cselect_b32 s30, 1024, s30
    s_cselect_b32 s31, 57344, s31
    s_add_u32 s29, s27, s23
    s_cmp_eq_u32 s18, 1
    s_cselect_b32 s22, s29, s27
    s_cselect_b32 s29, s27, s29
    s_mov_b32 s27, s22
    s_cselect_b32 s28, s24, 0
    s_cselect_b32 s34, 0, s24
    s_mul_i32 s25, s18, {7*262144}
    s_add_u32 s25, s25, s21
    ''')
    for p in range(4):
        o(f's_add_u32 s22, s20, {p}\ns_and_b32 s22, s22, 3\ns_lshl_b32 s23, s22, 16\ns_add_u32 s{36+p}, s25, s23\ns_lshl_b32 s{40+p}, s22, 10')
    def ld_n(i, p):
        o(f's_add_u32 s{(27, 29)[p]}, s{(27, 29)[p]}, s31')
        o(f's_add_u32 s22, s{(28, 34)[p]}, {i*14336}')
        for w in range(7):
            o('s_mov_b32 m0, s22')
            o('s_add_u32 s22, s22, s30')
            o(f'buffer_load_dwordx4 v{20+w}, s[12:15], s{(27, 29)[p]} offen lds')
    def ld_m(i, p):
        for w in range(7):
            o(f's_add_u32 m0, s{40+p}, {L_M + w*12288 + (i % 3)*4096}')
            o(f's_add_u32 s23, s{36+p}, {w*262144 + i*128}')
            o('buffer_load_dwordx4 v4, s[8:11], s23 offen lds')
    def half(i, h):
        ld_n(i, h); ld_m(i, 2 * h); ld_m(i, 2 * h + 1)
    half(1, 0); half(1, 1)
    o('s_barrier\ns_waitcnt vmcnt(42)')
    half(2, 0)
    o('s_waitcnt vmcnt(21)\ns_barrier')
    half(2, 1); half(3, 0)
    o('s_waitcnt vmcnt(21)\ns_barrier')
    half(3, 1)
    o('s_waitcnt vmcnt(0)\ns_barrier')
    GW, XR = 32, 96
    o(f'''
    s_bitcmp1_b32 s2, 4
    s_cbranch_scc1 {name}_arm
    s_mov_b32 s17, s33
    s_mov_b32 s18, s35
    v_lshlrev_b32 v4, 4, v3
    v_add_u32 v4, {L_X + 16*912}, v4
    v_mul_u32_u24 v5, 912, v2
    v_lshl_add_u32 v5, v3, 4, v5
    v_add_u32 v5, {L_X}, v5
    v_and_b32 v6, 8, v0
    v_and_b32 v7, 1, v0
    v_lshl_add_u32 v6, v7, 2, v6
    v_bfe_u32 v7, v0, 2, 1
    v_lshl_add_u32 v6, v7, 1, v6
    v_bfe_u32 v7, v0, 1, 1
    v_add_u32 v6, v6, v7
    v_mul_u32_u24 v6, 912, v6
    v_lshrrev_b32 v7, 1, v3
    v_lshl_add_u32 v6, v7, 5, v6
    v_and_b32 v7, 1, v3
    v_lshl_add_u32 v6, v7, 3, v6
    v_add_u32 v6, {L_X}, v6
    s_lshr_b32 s20, s17, 1
    s_mul_i32 s20, s20, {SBS}
    s_and_b32 s21, s17, 1
    s_mul_i32 s21, s21, 14336
    s_add_u32 s20, s20, s21
    s_add_u32 s20, s20, {OFF_XN}
    s_add_u32 s21, s18, {OFF_XP}
    s_waitcnt vmcnt(0)
    ''')
    for ks in range(14):
        o(f'ds_read_b128 {vr(XR+4*ks,4)}, v5 offset:{ks*64}')
    XQ = XR + 56
    for ks in range(14):
        o(f'ds_read_b128 {vr(GW+4*ks,4)}, v4 offset:{ks*64}')
    o('s_waitcnt lgkmcnt(0)')
    for ks in range(14):
        o(f'ds_read2_b32 {vr(XQ+4*ks,2)}, v6 offset0:{16*ks} offset1:{16*ks+4}')
        o(f'ds_read2_b32 {vr(XQ+4*ks+2,2)}, v6 offset0:{16*ks+1} offset1:{16*ks+5}')
        o(f'buffer_store_dwordx4 {vr(XR+4*ks,4)}, v1, s[4:7], s20 offen offset:{(ks&3)*1024}{SC}')
        if ks & 3 == 3:
            o('s_add_u32 s20, s20, 4096')
    o('v_mov_b32 v8, 0\nv_mov_b32 v9, 0')
    for ks in range(14):
        for r in range(4):
            o(f'v_dot2_f32_bf16 v{8+(r&1)}, v{XR+4*ks+r}, v{GW+4*ks+r}, v{8+(r&1)}')
    o('s_waitcnt lgkmcnt(0)')
    for ks in range(14):
        o(f'buffer_store_dwordx4 {vr(XQ+4*ks,4)}, v1, s[4:7], s21 offen offset:{(ks&3)*1024}{SC}')
        if ks & 3 == 3:
            o('s_add_u32 s21, s21, 4096')
    o(f'''
    v_add_f32 v8, v8, v9
    v_xor_b32 v10, 16, v0
    v_lshlrev_b32 v10, 2, v10
    ds_bpermute_b32 v9, v10, v8
    v_xor_b32 v10, 32, v0
    v_lshlrev_b32 v10, 2, v10
    s_waitcnt lgkmcnt(0)
    v_add_f32 v8, v8, v9
    ds_bpermute_b32 v9, v10, v8
    s_waitcnt lgkmcnt(0)
    v_add_f32 v8, v8, v9
    v_mul_f32 v8, {f32(-LOG2E)}, v8
    v_exp_f32 v8, v8
    s_nop 0
    v_add_f32 v8, 1.0, v8
    v_rcp_f32 v8, v8
    v_lshlrev_b32 v10, 2, v2
    s_lshl_b32 s22, s17, 6
    s_add_u32 s22, s22, {OFF_G}
    buffer_store_dword v8, v10, s[4:7], s22 offen
    ''')
    fin(o)
    o.label(name + '_arm')
    arm(o, name, SC)
    fin(o)
    o.label(name + '_end')
    o('s_endpgm')

def arm(o, name, SC):
    o(f'''
    s_lshr_b32 s64, s33, 1                     ; step
    s_and_b32 s65, s33, 1
    s_lshl_b32 s65, s65, 5
    s_add_u32 s71, s65, 32
    s_mul_i32 s66, s64, {SBS}
    s_add_u32 s66, s66, {OFF_SB}
    s_mul_i32 s67, s64, {SCS}
    s_add_u32 s67, s67, {OFF_SC - 17*1024}
    v_mov_b32 v240, -1
    v_mov_b32 v241, -1
    v_mov_b32 v242, -1
    v_mov_b32 v243, -1
    {name}_a1:
    s_cmp_lt_u32 s65, 17
    s_cselect_b32 s69, s66, s67
    s_cselect_b32 s70, 0, 17
    s_sub_u32 s70, s65, s70
    s_lshl_b32 s68, s64, 3
    s_add_u32 s70, s70, s68
    s_cmp_lt_u32 s70, 7
    s_cbranch_scc1 {name}_a4
    s_lshl_b32 s68, s65, 10
    s_add_u32 s69, s69, s68
    buffer_store_dwordx4 v[240:243], v1, s[4:7], s69 offen{SC}
    {name}_a4:
    s_add_u32 s65, s65, 1
    s_cmp_lt_u32 s65, s71
    s_cbranch_scc1 {name}_a1
    s_cmp_eq_u32 s33, 127
    s_cbranch_scc0 {name}_a2
    v_mov_b32 v244, 0
    v_mov_b32 v245, 0
    v_mov_b32 v246, 0
    v_mov_b32 v247, 0
    s_mov_b32 s69, {OFF_FL}
    s_mov_b32 s70, {OFF_FL + 4096}
    ''')
    for i in range(8):
        o(f'buffer_store_dwordx4 v[244:247], v1, s[4:7], s{69+(i>>2)} offen offset:{(i&3)*1024}{SC}')
    o.label(name + '_a2')

def mem0_image(o, SC):
    o(f'''
    v_lshrrev_b32 v238, 2, v2
    v_lshlrev_b32 v238, 1, v238
    v_and_b32 v239, 1, v0
    v_add_u32 v238, v238, v239
    v_mul_u32_u24 v238, 896, v238
    v_lshl_add_u32 v238, v3, 5, v238
    v_bfe_u32 v239, v0, 1, 1
    v_lshl_add_u32 v238, v239, 4, v238
    ''')
    for kk in range(7):
        o(f'buffer_load_dwordx4 {vr(124+4*kk,4)}, v238, s[56:59], 0 offen offset:{kk*128}')
    o(f'''
    s_mov_b32 s66, {OFF_MEMI}
    s_mov_b32 s67, {OFF_MEMI + 4096}
    s_mov_b32 s68, {OFF_MEMG}
    s_mov_b32 s69, {OFF_MEMG + 4096}
    s_waitcnt vmcnt(0)
    ''')
    for r in range(28):
        o(f'v_min_u32 v{124+r}, 0xfffffffe, v{124+r}')
    for kk in range(7):
        o(f'buffer_store_dwordx4 {vr(124+4*kk,4)}, v1, s[4:7], s{66+(kk>>2)} offen offset:{(kk&3)*1024}{SC}')
        o(f'buffer_store_dwordx4 {vr(124+4*kk,4)}, v1, s[4:7], s{68+(kk>>2)} offen offset:{(kk&3)*1024}{SC}')

def gen_hf(o):
    LP = o.new('Lphi')
    mrow(o, 6, 7)
    o(f'''
    v_mul_u32_u24 v6, 2688, v6
    v_lshl_add_u32 v6, v3, 4, v6
    s_mul_i32 s22, s33, {224*2688}
    s_mul_i32 s23, s35, 896
    s_add_u32 s22, s22, s23
    s_mul_i32 s23, s34, 56
    s_add_u32 s22, s22, s23
    ''')
    AFR = 32
    for k7 in range(7):
        for beta in range(2):
            d = AFR + (k7 * 2 + beta) * 4
            o(f's_add_u32 s23, s22, {(32*k7 + 2*beta)*2688}')
            o(f'buffer_load_dwordx2 {vr(d,2)}, v6, s[52:55], s23 offen')
            o(f'buffer_load_dwordx2 {vr(d+2,2)}, v6, s[52:55], s23 offen offset:8')
    PH, PT = 96, 104
    o(f'''
    v_mul_u32_u24 v7, {8*56}, v3
    v_lshl_add_u32 v7, v2, 1, v7
    v_mov_b32 v9, {OOB}
    v_cmp_gt_u32 vcc, 12, v2
    s_mul_i32 s23, s34, 1568
    s_nop 0
    v_cndmask_b32 v8, v9, v7, vcc
    v_cmp_gt_u32 vcc, 3, v3
    s_nop 1
    v_cndmask_b32 v10, v9, v7, vcc             ; e >= 4: q < 3
    v_cndmask_b32 v11, v9, v8, vcc
    ''')
    for nt in range(2):
        for e in range(8):
            va = (7, 8, 10, 11)[nt + 2 * (e >= 4)]
            o(f'buffer_load_ushort v{PT+8*nt+e}, v{va}, s[56:59], s23 offen offset:{e*56 + nt*32}')
    o(f'''
    s_waitcnt vmcnt(0)
    s_mov_b32 s30, {f32(LOG2E)}
    s_cmp_lg_u32 s35, 2
    s_cbranch_scc1 {LP}
    s_mov_b32 s30, 1.0
    v_lshlrev_b32 v7, 3, v3
    v_sub_u32 v7, v2, v7                       ; n - 8q
    v_mov_b32 v8, 0x3f80
    v_cmp_gt_u32 vcc, 12, v2
    s_nop 1
    v_cndmask_b32 v9, 0, v8, vcc
    ''')
    for nt in range(2):
        for e in range(8):
            o(f'v_cmp_eq_u32 vcc, {e - 16*nt}, v7')
            o('s_nop 1')
            o(f'v_cndmask_b32 v{PT+8*nt+e}, 0, v{8+nt}, vcc')
    o.label(LP)
    for nt in range(2):
        for r in range(4):
            o(f'v_lshl_or_b32 v{PH+4*nt+r}, v{PT+8*nt+2*r+1}, 16, v{PT+8*nt+2*r}')
    o(f'''
    s_mul_i32 s31, s34, {HFH}
    s_mul_i32 s23, s35, {2*14336}
    s_add_u32 s31, s31, s23
    s_mul_i32 s23, s33, 7168
    s_add_u32 s31, s31, s23
    s_add_u32 s31, s31, {OFF_HF}
    s_add_u32 s32, s31, 14336
    ''')
    D = 124
    for k7 in range(7):
        for nt in range(2):
            for beta in range(2):
                o(f'{MM} {vr(D+16*k7+8*nt+4*beta,4)}, {vr(AFR+(k7*2+beta)*4,4)}, {vr(PH+4*nt,4)}, 0')
    o('s_nop 7')
    for k7 in range(7):
        for nt in range(2):
            a = D + 16 * k7 + 8 * nt
            for r in range(8):
                o(f'v_mul_f32 v{a+r}, s30, v{a+r}')
            for r in range(4):
                o(f'v_cvt_pk_bf16_f32 v{a+r}, v{a+2*r}, v{a+2*r+1}')
            o(f'buffer_store_dwordx4 {vr(a,4)}, v1, s[4:7], s{31+nt} offen offset:{(k7&3)*1024} sc1')
        if k7 == 3:
            o('s_add_u32 s31, s31, 4096\ns_add_u32 s32, s32, 4096')
```

```python
from common import *
import team as T
import prep
from team import S_WS, S_W, S_BUD, wreg_half, wreg, V_L16, V_IDX

MM = 'v_mfma_f32_16x16x32_bf16'
M16 = 'v_mfma_f32_16x16x16_bf16'
NCOPY = 6
S_OUT, S_WO = 8, 44
S_ID, S_J, S_SEG = 17, 18, 20
WSR = sr(S_WS, 4)
V_N, V_Q = 3, 4

DIAG = False
def mark(o, s):
    if DIAG:
        o(f's_memrealtime s[{s}:{s+1}]\ns_waitcnt lgkmcnt(0)')

def lane_consts(o):
    o(f'''
    v_lshlrev_b32 v{V_L16}, 4, v0
    v_and_b32 v{V_N}, 15, v0
    v_lshrrev_b32 v{V_Q}, 4, v0
    ''')

def jninv(o, d, t):
    o(f'''
    v_and_b32 v{d}, 8, v0
    v_and_b32 v{t}, 1, v0
    v_lshl_add_u32 v{d}, v{t}, 2, v{d}
    v_bfe_u32 v{t}, v0, 2, 1
    v_lshl_add_u32 v{d}, v{t}, 1, v{d}
    v_bfe_u32 v{t}, v0, 1, 1
    v_add_u32 v{d}, v{d}, v{t}
    ''')

def load_w448(o, base_off):
    o(f'''
    s_mul_i32 s22, s{S_ID}, {HSZ}
    s_mul_i32 s23, s{S_W}, {7*14336}
    s_add_u32 s22, s22, s23
    s_add_u32 s22, s22, {base_off}
    ''')
    n = 0
    for t in range(7):
        for j in range(7):
            for hf in range(2):
                o(f'buffer_load_dwordx4 {wreg_half(t,j,hf)}, v{V_L16}, {WSR}, s22 offen offset:{hf*1024}')
                n += 1
            o('s_add_u32 s22, s22, 2048')
            if n % 14 == 0 and n >= 42:
                o('s_waitcnt vmcnt(40)')

def x_issue(o, XR, ks):
    for tt in range(2):
        d = XR + (ks % 4) * 8 + tt * 4
        if ks < 4:
            o(f'buffer_load_dwordx4 {vr(d,4)}, v{V_L16}, {WSR}, s{24+tt} offen offset:{ks*1024}')
        else:
            o(f's_add_u32 s26, s{24+tt}, {(ks>>2)*4096}')
            o(f'buffer_load_dwordx4 {vr(d,4)}, v{V_L16}, {WSR}, s26 offen offset:{(ks&3)*1024}')

def x_start(o, XR, seg_sgpr):
    o(f's_mul_i32 s24, s{seg_sgpr}, 28672')
    o(f's_add_u32 s24, s24, {OFF_XP}')
    o('s_add_u32 s25, s24, 14336')
    for ks in range(3):
        x_issue(o, XR, ks)

def gemm_seg(o, XR, ntile, mf, younger, at3=None):
    for ks in range(14):
        if ks + 3 < 14:
            x_issue(o, XR, ks + 3)
        left = min(ks + 3, 13) - ks
        o(f's_waitcnt vmcnt({2*left + (younger if ks < 3 else 0)})')
        if ks == 3 and at3:
            at3()
        for t in range(ntile):
            for tt in range(2):
                o(mf(tt, t, ks, XR + (ks % 4) * 8 + tt * 4))

def poll_counter(o, off, target, exit_label, tmp):
    L = o.new('Lpc')
    o(f'v_mov_b32 v{tmp+1}, 0')
    o.label(L)
    o(f'''
    buffer_load_dword v{tmp}, v{tmp+1}, {WSR}, s{off} offen sc1
    s_sub_u32 s{S_BUD}, s{S_BUD}, 1
    s_cbranch_scc1 {exit_label}
    s_waitcnt vmcnt(0)
    v_cmp_le_u32 vcc, {target}, v{tmp}
    s_sleep 8
    s_cbranch_vccz {L}
    ''')

def wait_written(o, soff, imm, exit_label, tmp, sleep):
    L, L2 = o.new('Lww'), o.new('Lww')
    o(f'v_mov_b32 v{tmp+1}, 0')
    o('s_mov_b64 exec, 1')
    o.label(L)
    o(f'''
    buffer_load_dword v{tmp}, v{tmp+1}, {WSR}, s{soff} offen offset:{imm} sc1
    s_sub_u32 s{S_BUD}, s{S_BUD}, 1
    s_cbranch_scc1 {exit_label}
    s_waitcnt vmcnt(0)
    v_cmp_eq_u32 vcc, -1, v{tmp}
    s_cbranch_vccz {L2}
    s_sleep {sleep}
    s_branch {L}
    ''')
    o.label(L2)
    o('s_mov_b64 exec, -1')

def xq(o, op, r, t):
    for sw in ('v_permlane16_swap_b32', 'v_permlane32_swap_b32'):
        o(f'v_mov_b32 v{t}, v{r}')
        o('s_nop 1')
        o(f'{sw} v{r}, v{t}')
        o(f'{op} v{r}, v{r}, v{t}')

def gen_WB(o, exit_label):
    ACC, XR, SO = 16, 72, 104
    L_WO, L_RT, L_RED = 0, 32768, 65536
    acc = lambda tt, t: ACC + (tt * 7 + t) * 4
    lane_consts(o)
    o(f's_mov_b32 s{S_SEG}, s{S_J}')
    x_start(o, XR, S_SEG)
    load_w448(o, OFF_BT)
    T.VERIFY(o, 16)
    o(f's_lshl_b32 s26, s{S_W}, 13')
    o(f'v_add_u32 v{SO+7}, s26, v{V_L16}')
    for t in range(7):
        o(f'''
        v_add_u32 v5, {16*t}, v{V_N}                 ; p
        v_mul_u32_u24 v6, 4682, v5
        v_lshrrev_b32 v6, 16, v6                   ; p / 14
        v_mul_u32_u24 v7, 14, v6
        v_sub_u32 v5, v5, v7
        v_mul_u32_u24 v7, 14, v{V_Q}
        v_add_lshl_u32 v5, v5, v7, 4
        v_mul_u32_u24 v6, 896, v6
        v_add3_u32 v{SO+t}, v5, v6, s26
        ''')
    o(f'''
    s_mul_i32 s27, s{S_ID}, {WBB}
    s_mul_i32 s23, s{S_W}, 7168
    s_add_u32 s27, s27, s23
    s_add_u32 s27, s27, {OFF_WB}
    s_mov_b32 s28, {OFF_DUMMY}
    s_lshl_b32 s29, s{S_ID}, 8
    s_add_u32 s29, s29, {OFF_FL}
    v_add_u32 v5, s{S_W}, v0
    v_cmp_eq_u32 vcc, 0, v5
    v_mov_b32 v7, {OOB}
    v_mov_b32 v6, 1
    v_cndmask_b32 v5, v7, v5, vcc
    s_waitcnt vmcnt(0)
    ''')
    mark(o, 70)
    LW = o.new('LW')
    o.label(LW)
    def at3():
        o('s_barrier')
        o(f'buffer_store_dword v6, v5, {WSR}, s28 offen sc1')
    gemm_seg(o, XR, 7, lambda tt, t, ks, x: f'{MM} {vr(acc(tt,t),4)}, {vr(x,4)}, {wreg_half(t,ks>>1,ks&1)}, ' + ('0' if ks == 0 else vr(acc(tt, t), 4)), 7, at3)
    o(f'''
    s_mul_i32 s30, s{S_SEG}, {WBS}
    s_add_u32 s30, s30, s27
    s_lshl_b32 s28, s{S_SEG}, 2
    s_add_u32 s28, s28, s29
    s_add_u32 s{S_SEG}, s{S_SEG}, {NCOPY}
    s_min_u32 s31, s{S_SEG}, 63
    ''')
    x_start(o, XR, 31)
    for t in range(7):
        a, b = acc(0, t), acc(1, t)
        for r in range(4):
            o(f'v_cvt_pk_bf16_f32 v{a+r}, v{a+r}, v{b+r}')
        o(f'ds_write_b128 v{SO+t}, {vr(a,4)}')
    for t in range(7):
        o(f'ds_read_b128 {vr(acc(1,t),4)}, v{SO+7} offset:{t*1024}')
    o('s_add_u32 s31, s30, 4096')
    for t in range(7):
        o(f's_waitcnt lgkmcnt({6-t})')
        o(f'buffer_store_dwordx4 {vr(acc(1,t),4)}, v{V_L16}, {WSR}, s{30+(t>>2)} offen offset:{(t&3)*1024} sc1')
    o(f'''
    s_cmp_lt_u32 s{S_SEG}, 64
    s_cbranch_scc1 {LW}
    s_waitcnt vmcnt(0)
    s_barrier
    buffer_store_dword v6, v5, {WSR}, s28 offen sc1
    ''')
    mark(o, 88)
    if T.CFG.get('nota'): o(f's_branch {exit_label}')
    V_TW, V_TR, V_WO, V_OO, V_RW, V_RR, TMP = 5, 6, 7, 8, 9, 10, 11
    D, WF, MF, RA, ZM = 16, 32, 64, 92, 104
    Dr = lambda tt, ct: D + (tt * 2 + ct) * 4
    o(f'''
    v_mul_u32_u24 v{TMP}, {4*896}, v{V_Q}
    v_lshl_add_u32 v{TMP}, v{V_N}, 2, v{TMP}
    v_mov_b32 v{TMP+2}, {OOB}
    v_cmp_gt_u32 vcc, 3, v{V_Q}
    s_mul_i32 s22, s{S_W}, {112*896}
    s_mul_i32 s23, s{S_ID}, 56
    v_cndmask_b32 v{TMP+1}, v{TMP+2}, v{TMP}, vcc
    s_add_u32 s22, s22, s23
    ''')
    for hl in range(4):
        for hf in range(2):
            o(f's_add_u32 s23, s22, {(28*hl + 16*hf)*896}')
            for e in range(4):
                o(f'buffer_load_dword v{32+8*hl+4*hf+e}, v{TMP+hf}, {sr(S_WO,4)}, s23 offen offset:{e*896}')
    o(f'''
    s_mov_b32 s22, 0x05040100
    s_mov_b32 s23, 0x07060302
    s_lshl_b32 s26, s{S_W}, 13
    v_add_u32 v{V_WO}, s26, v{V_L16}
    s_waitcnt vmcnt(0)
    ''')
    for hl in range(4):
        for ct in range(2):
            for r in range(4):
                o(f'v_perm_b32 v{64+4*ct+r}, v{32+8*hl+2*r+1}, v{32+8*hl+2*r}, s{22+ct}')
            o(f'ds_write_b128 v{V_WO}, {vr(64+4*ct,4)} offset:{L_WO + (hl*2+ct)*1024}')
    o(f'''
    v_mov_b32 v{V_IDX}, 0x44444444
    v_mov_b32 v{TMP}, 0xeeeeeeee
    v_and_b32 v{TMP+1}, 2, v0
    v_cmp_ne_u32 vcc, 0, v{TMP+1}
    s_lshl_b32 s26, s{S_W}, 11
    s_add_u32 s26, s26, {L_RT}
    v_cndmask_b32 v{V_IDX}, v{V_IDX}, v{TMP}, vcc
    v_lshlrev_b32 v{V_TW}, 4, v{V_N}
    v_lshl_add_u32 v{V_TW}, v{V_Q}, 2, v{V_TW}
    v_add_u32 v{V_TW}, s26, v{V_TW}
    v_mul_u32_u24 v{V_TR}, 28, v{V_Q}
    v_add_lshl_u32 v{V_TR}, v{V_TR}, v{V_N}, 4
    v_add_u32 v{V_TR}, s26, v{V_TR}
    v_min_u32 v14, 13, v{V_N}
    v_mul_u32_u24 v{TMP}, 14, v{V_Q}
    v_add_lshl_u32 v14, v14, v{TMP}, 4
    s_lshl_b32 s26, s{S_W}, 10
    s_add_u32 s26, s26, {L_RED}
    v_add_u32 v{V_RW}, s26, v{V_L16}
    s_lshl_b32 s26, s{S_W}, 12
    s_add_u32 s26, s26, {L_RED}
    v_add_u32 v{V_RR}, s26, v{V_L16}
    v_lshrrev_b32 v{TMP}, 1, v{V_Q}
    v_lshlrev_b32 v{TMP}, 3, v{TMP}
    v_and_b32 v{TMP+1}, 1, v{V_Q}
    v_lshl_add_u32 v{TMP}, v{TMP+1}, 1, v{TMP}
    s_lshr_b32 s22, s{S_W}, 1
    s_lshl_b32 s22, s22, 4
    s_and_b32 s23, s{S_W}, 1
    s_add_u32 s22, s22, s23
    v_add_u32 v{TMP}, s22, v{TMP}
    v_mul_u32_u24 v{TMP}, 896, v{TMP}
    v_lshl_add_u32 v{TMP}, v{V_N}, 2, v{TMP}
    s_mul_i32 s22, s{S_ID}, 56
    v_add_u32 v{TMP}, s22, v{TMP}
    v_cmp_gt_u32 vcc, 14, v{V_N}
    v_mov_b32 v15, 0x80008000
    s_mov_b32 s{S_SEG}, s{S_J}
    v_cndmask_b32 v{V_OO}, v{TMP+2}, v{TMP}, vcc
    ''')
    LF = o.new('LF')
    o.label(LF)
    o(f'''
    s_lshr_b32 s22, s{S_SEG}, 3
    s_lshl_b32 s22, s22, 7
    s_add_u32 s22, s22, {OFF_FL + FL_O}
    ''')
    poll_counter(o, 22, 4, exit_label, TMP)
    o(f'''
    s_lshl_b32 s22, s{S_SEG}, 15
    s_lshl_b32 s23, s{S_W}, 13
    s_add_u32 s22, s22, s23
    s_add_u32 s22, s22, {OFF_OB}
    s_add_u32 s23, s22, 4096
    s_mul_i32 s30, s{S_SEG}, {WBS}
    s_add_u32 s30, s30, s27
    s_add_u32 s31, s30, 3584
    s_mul_i32 s32, s{S_SEG}, {SCS}
    s_add_u32 s32, s32, {OFF_SC}
    s_add_u32 s33, s32, 4096
    ''')
    OF = MF
    for hl in range(4):
        for tt in range(2):
            o(f'buffer_load_dwordx4 {vr(OF+8*hl+4*tt,4)}, v{V_L16}, {WSR}, s{22+(hl>>1)} offen offset:{(hl&1)*2048+tt*1024} sc1')
    for i in range(8):
        o(f'ds_read_b128 {vr(WF+4*i,4)}, v{V_WO} offset:{L_WO + i*1024}')
    o('s_waitcnt vmcnt(0) lgkmcnt(0)')
    for hl in range(4):
        for tt in range(2):
            for ct in range(2):
                o(f'{MM} {vr(Dr(tt,ct),4)}, {vr(OF+8*hl+4*tt,4)}, {vr(WF+8*hl+4*ct,4)}, ' + ('0' if hl == 0 else vr(Dr(tt, ct), 4)))
    for hl in range(4):
        for ct in range(2):
            o(f'buffer_load_dwordx4 {vr(WF+8*hl+4*ct,4)}, v14, {WSR}, s{30+(hl>>1)} offen offset:{(hl&1)*1792+ct*896} sc1')
    LS = o.new('LS')
    o(f's_cmp_eq_u32 s{S_SEG}, 63')
    o(f's_cbranch_scc1 {LS}')
    wait_written(o, 33, 3072, exit_label, TMP, 8)
    o.label(LS)
    LM = o.new('LM')
    o.label(LM)
    for j in range(7):
        o(f'buffer_load_dwordx4 {vr(MF+4*j,4)}, v{V_L16}, {WSR}, s{32+(j>>2)} offen offset:{(j&3)*1024} sc1')
    o(f's_sub_u32 s{S_BUD}, s{S_BUD}, 1')
    o(f's_cbranch_scc1 {exit_label}')
    o('s_waitcnt vmcnt(0)')
    o(f'v_max_u32 v{TMP}, v{MF}, v{MF+1}')
    for r in range(2, 28, 2):
        o(f'v_max3_u32 v{TMP}, v{TMP}, v{MF+r}, v{MF+r+1}')
    LM2 = o.new('LM')
    o(f'v_cmp_eq_u32 vcc, -1, v{TMP}')
    o(f's_cbranch_vccz {LM2}')
    o('s_sleep 6')
    o(f's_branch {LM}')
    o.label(LM2)
    ra = lambda t: RA + (t % 3) * 4
    def post(t):
        a = ra(t)
        return [f'v_add_f32 v{a}, v{a}, v{a+2}', f'v_add_f32 v{a+1}, v{a+1}, v{a+3}',
                f'v_cvt_pk_bf16_f32 v{a}, v{a}, v{a+1}', f'ds_write_b32 v{V_TW}, v{a} offset:{t*256}']
    for r in range(8):
        o(f'v_mov_b32 v{RA+r}, 0')
    o('s_nop 0')
    for t in range(7):
        fill = {}
        if t >= 1:
            p = post(t - 1)
            fill = {2: [p[0]], 3: [p[1]], 4: [p[2]], 5: [p[3]]}
        if t + 1 < 7 and t >= 1:
            z = [f'v_mov_b32 v{ra(t+1)+r}, 0' for r in range(4)]
            fill[0] = z[0:2]
            fill[1] = z[2:4]
        T.merge(o, [T.SM(ra(t), MF + 4 * j, wreg(t, j)) for j in range(7)], fill)
    o('s_nop 7')
    for p in post(6):
        o(p)
    o(f'ds_read_b128 {vr(ZM,4)}, v{V_TR}')
    o(f'ds_read_b128 {vr(ZM+4,4)}, v{V_TR} offset:224')
    PX = MF
    o(f'''
    s_lshl_b32 s22, s{S_W}, 13
    s_add_u32 s22, s22, s32
    s_add_u32 s22, s22, 7168
    s_add_u32 s23, s22, 4096
    s_lshl_b32 s26, s{S_W}, 11
    s_add_u32 s26, s26, s32
    s_add_u32 s26, s26, {7168 + 32768}
    s_waitcnt lgkmcnt(0)
    ''')
    LP, LP2 = o.new('LP'), o.new('LP')
    o.label(LP)
    for hl in range(4):
        for tt in range(2):
            o(f'buffer_load_dwordx4 {vr(PX+8*hl+4*tt,4)}, v{V_L16}, {WSR}, s{22+(hl>>1)} offen offset:{(hl&1)*2048+tt*1024} sc1')
    for tt in range(2):
        o(f'buffer_load_dwordx4 {vr(PX+32+4*tt,4)}, v{V_L16}, {WSR}, s26 offen offset:{tt*1024} sc1')
    o(f's_sub_u32 s{S_BUD}, s{S_BUD}, 1')
    o(f's_cbranch_scc1 {exit_label}')
    o('s_waitcnt vmcnt(0)')
    o(f'v_or_b32 v{TMP}, v{PX}, v{PX+1}')
    for r in range(2, 40, 2):
        o(f'v_or3_b32 v{TMP}, v{TMP}, v{PX+r}, v{PX+r+1}')
    o(f'v_and_b32 v{TMP}, v{TMP}, v15')
    o(f'v_cmp_ne_u32 vcc, 0, v{TMP}')
    o(f's_cbranch_vccz {LP2}')
    o('s_sleep 2')
    o(f's_branch {LP}')
    o.label(LP2)
    for hl in range(5):
        for tt in range(2):
            for ct in range(2):
                b = WF + 8 * hl + 4 * ct if hl < 4 else ZM + 4 * ct
                o(f'{MM} {vr(Dr(tt,ct),4)}, {vr(PX+8*hl+4*tt,4)}, {vr(b,4)}, {vr(Dr(tt,ct),4)}')
    o('s_nop 7')
    for tt in range(2):
        for rp in range(2):
            for ct in range(2):
                o(f'ds_write_b64 v{V_RW}, {vr(Dr(tt,ct)+2*rp,2)} offset:{(tt*2+rp)*4096 + ct*8}')
    o('s_waitcnt lgkmcnt(0)')
    o('s_barrier')
    for sw in range(4):
        o(f'ds_read_b128 {vr(WF+4*sw,4)}, v{V_RR} offset:{sw*1024}')
    o(f'''
    s_mul_i32 s22, s{S_SEG}, 28672
    v_xor_b32 v{V_RW}, 0x4000, v{V_RW}
    v_xor_b32 v{V_RR}, 0x4000, v{V_RR}
    s_add_u32 s{S_SEG}, s{S_SEG}, {NCOPY}
    s_waitcnt lgkmcnt(0)
    ''')
    for r in range(4):
        o(f'v_add_f32 v{WF+r}, v{WF+r}, v{WF+4+r}')
        o(f'v_add_f32 v{WF+8+r}, v{WF+8+r}, v{WF+12+r}')
    for r in range(4):
        o(f'v_add_f32 v{WF+r}, v{WF+r}, v{WF+8+r}')
    o(f'''
    v_cvt_pk_bf16_f32 v{TMP}, v{WF}, v{WF+2}
    v_cvt_pk_bf16_f32 v112, v{WF+1}, v{WF+3}
    buffer_store_dword v{TMP}, v{V_OO}, {sr(S_OUT,4)}, s22 offen
    buffer_store_dword v112, v{V_OO}, {sr(S_OUT,4)}, s22 offen offset:3584
    ''')
    if T.CFG.get('wbl'):
        LWB = o.new('LWB')
        o(f's_sub_u32 s22, s{S_SEG}, {T.CFG["wbl"]}\ns_add_u32 s22, s22, s{S_W}\ns_cmp_lg_u32 s22, 0\ns_cbranch_scc1 {LWB}\ns_waitcnt vmcnt(0)\nbuffer_wbl2 sc1\n{LWB}:')
    o(f'''
    s_cmp_lt_u32 s{S_SEG}, 64
    s_cbranch_scc1 {LF}
    s_branch {exit_label}
    ''')
LDS_WB = 65536 + 32768

def gen_TA(o, exit_label):
    ACC, XR = 16, 72
    acc = lambda tt, t: ACC + (tt * 7 + t) * 4
    V_XK, V_MK, V_LW, V_G, V_PM, TMP = 5, 6, 7, 8, 9, 10
    S = 104
    lane_consts(o)
    o(f's_mov_b32 s{S_SEG}, s{S_J}')
    x_start(o, XR, S_SEG)
    load_w448(o, OFF_AF)
    T.VERIFY(o, 16)
    jninv(o, V_G, TMP)
    o(f'''
    v_lshrrev_b32 v{TMP}, 1, v{V_Q}
    v_and_b32 v{TMP+1}, 1, v{V_Q}
    v_lshlrev_b32 v{V_XK}, 4, v{V_G}
    v_lshl_add_u32 v{V_XK}, v{TMP}, 8, v{V_XK}
    v_lshl_add_u32 v{V_XK}, v{TMP+1}, 3, v{V_XK}
    v_and_b32 v{V_MK}, 13, v0
    v_lshlrev_b32 v{V_MK}, 4, v{V_MK}
    v_lshl_add_u32 v{V_MK}, v{TMP}, 5, v{V_MK}
    v_lshl_add_u32 v{V_MK}, v{TMP+1}, 3, v{V_MK}
    v_lshlrev_b32 v{TMP}, 3, v{TMP}
    v_lshl_add_u32 v{TMP}, v{TMP+1}, 1, v{TMP}
    v_sub_u32 v{TMP}, v{V_G}, v{TMP}
    v_cmp_le_i32 s[48:49], 0, v{TMP}
    v_cmp_le_i32 s[50:51], 4, v{TMP}
    v_cmp_le_i32 s[52:53], 1, v{TMP}
    v_cmp_le_i32 s[54:55], 5, v{TMP}
    v_lshlrev_b32 v{V_G}, 2, v{V_G}
    s_mul_i32 s26, s{S_W}, 6144
    v_add_u32 v{V_LW}, s26, v{V_L16}
    v_lshlrev_b32 v2, 4, v{V_N}
    v_lshl_add_u32 v{V_PM}, v{V_Q}, 2, v2
    v_mov_b32 v14, v{V_L16}
    s_waitcnt vmcnt(0)
    ''')
    mark(o, 70)
    LT = o.new('LT')
    o.label(LT)
    gemm_seg(o, XR, 7, lambda tt, t, ks, x: f'{MM} {vr(acc(tt,t),4)}, {wreg_half(t,ks>>1,ks&1)}, {vr(x,4)}, ' + ('0' if ks == 0 else vr(acc(tt, t), 4)), 0)
    o(f'''
    s_mul_i32 s30, s{S_SEG}, {SBS}
    s_mul_i32 s22, s{S_W}, {14*256}
    s_add_u32 s30, s30, s22
    s_add_u32 s30, s30, {OFF_XN}
    s_add_u32 s31, s30, 14336
    s_mul_i32 s32, s{S_SEG}, {SCS}
    s_add_u32 s32, s32, {OFF_SC}
    s_mul_i32 s22, s{S_W}, {7*256}
    s_add_u32 s33, s32, s22
    s_lshl_b32 s34, s{S_SEG}, 7
    s_lshl_b32 s22, s{S_W}, 6
    s_add_u32 s34, s34, s22
    s_add_u32 s34, s34, {OFF_G}
    ''')
    for t in range(7):
        for tt in range(2):
            a = acc(tt, t)
            o(f'v_cvt_pk_bf16_f32 v{a}, v{a}, v{a+1}')
            o(f'v_cvt_pk_bf16_f32 v{a+1}, v{a+2}, v{a+3}')
            o(f'buffer_load_dwordx2 {vr(a+2,2)}, v{V_XK}, {WSR}, s{30+tt} offen offset:{t*512}')
    o(f'buffer_load_dword v15, v{V_G}, {WSR}, s34 offen')
    SX = {(0, 0): XR, (1, 0): XR + 4, (1, 1): XR + 8}
    SMm = [XR + 12, XR + 16]
    o('s_waitcnt vmcnt(0)')
    for t in range(7):
        for (tt, kt), d in SX.items():
            o(f'{M16} {vr(d,4)}, {vr(acc(kt,t)+2,2)}, {vr(acc(tt,t),2)}, ' + ('0' if t == 0 else vr(d, 4)))
    if T.CFG.get('tal', 1):
        LS = o.new('LS')
        o(f's_cmp_eq_u32 s{S_SEG}, 63')
        o(f's_cbranch_scc1 {LS}')
        wait_written(o, 32, 0, exit_label, TMP, T.CFG.get('tas', 8))
        o.label(LS)
    LM, LM2 = o.new('LM'), o.new('LM')
    o.label(LM)
    for t in range(7):
        o(f'buffer_load_dwordx2 {vr(acc(0,t)+2,2)}, v{V_MK}, {WSR}, s33 offen offset:{t*256} sc1')
    o(f's_sub_u32 s{S_BUD}, s{S_BUD}, 1')
    o(f's_cbranch_scc1 {exit_label}')
    o(f'ds_write_b128 v{V_LW}, {vr(SX[0,0],4)}')
    o(f'ds_write_b128 v{V_LW}, {vr(SX[1,0],4)} offset:3072')
    o(f'ds_write_b128 v{V_LW}, {vr(SX[1,1],4)} offset:4096')
    o('s_waitcnt vmcnt(0)')
    o(f'v_max_u32 v{TMP}, v{acc(0,0)+2}, v{acc(0,0)+3}')
    for t in range(1, 7):
        o(f'v_max3_u32 v{TMP}, v{TMP}, v{acc(0,t)+2}, v{acc(0,t)+3}')
    o(f'v_cmp_eq_u32 vcc, -1, v{TMP}')
    o(f's_cbranch_vccz {LM2}')
    o('s_sleep 4')
    o(f's_branch {LM}')
    o.label(LM2)
    for t in range(7):
        for tt in range(2):
            o(f'{M16} {vr(SMm[tt],4)}, {vr(acc(0,t)+2,2)}, {vr(acc(tt,t),2)}, ' + ('0' if t == 0 else vr(SMm[tt], 4)))
    o('s_nop 7')
    o(f'ds_write_b64 v{V_LW}, {vr(SMm[0],2)} offset:2048')
    o(f'ds_write_b64 v{V_LW}, {vr(SMm[1],2)} offset:5120')
    o(f'''
    s_mov_b32 s35, s{S_SEG}
    s_add_u32 s{S_SEG}, s{S_SEG}, {NCOPY}
    s_min_u32 s31, s{S_SEG}, 63
    s_waitcnt lgkmcnt(0)
    s_barrier
    ''')
    LN, L1 = o.new('LN'), o.new('L1')
    o(f's_cmp_ge_u32 s{S_W}, 2')
    o(f's_cbranch_scc1 {LN}')
    o(f's_cmp_eq_u32 s{S_W}, 1')
    o(f's_cbranch_scc1 {L1}')
    R = ACC
    for tt in range(2):
        if tt == 1:
            o.label(L1)
        kts = [0] if tt == 0 else [0, 1]
        for sw in range(4):
            for kt in kts:
                o(f'ds_read_b128 {vr(R+12*sw+4*kt,4)}, v14 offset:{sw*6144 + tt*3072 + kt*1024}')
            o(f'ds_read_b64 {vr(R+12*sw+8,2)}, v14 offset:{sw*6144 + tt*3072 + 2048}')
        regs = [4 * kt + r for kt in kts for r in range(4)] + [8, 9]
        o(f'v_mov_b32 v{TMP+1}, 0xff800000')
        o(f'v_sub_f32 v15, 1.0, v15')
        o('s_waitcnt lgkmcnt(0)')
        for r in regs:
            o(f'v_add_f32 v{R+r}, v{R+r}, v{R+12+r}')
            o(f'v_add_f32 v{R+24+r}, v{R+24+r}, v{R+36+r}')
        for r in regs:
            o(f'v_add_f32 v{R+r}, v{R+r}, v{R+24+r}')
        for r in range(4):
            o(f'v_cndmask_b32 v{R+4*tt+r}, v{TMP+1}, v{R+4*tt+r}, s[{48+2*r}:{49+2*r}]')
        o(f'v_max_f32 v{TMP}, v{R+8}, v{R+9}')
        for i in range(0, len(regs) - 2, 2):
            o(f'v_max3_f32 v{TMP}, v{TMP}, v{R+regs[i]}, v{R+regs[i+1]}')
        xq(o, 'v_max_f32', TMP, TMP + 2)
        for r in regs:
            o(f'v_sub_f32 v{R+r}, v{R+r}, v{TMP}')
        for r in regs:
            o(f'v_exp_f32 v{R+r}, v{R+r}')
        o('s_nop 0')
        o(f'v_add_f32 v{TMP}, v{R+8}, v{R+9}')
        for r in regs[:-2]:
            o(f'v_add_f32 v{TMP}, v{TMP}, v{R+r}')
        xq(o, 'v_add_f32', TMP, TMP + 2)
        o(f'v_rcp_f32 v{TMP}, v{TMP}')
        o('s_nop 0')
        o(f'v_mul_f32 v{TMP}, v{TMP}, v15')
        for r in regs:
            o(f'v_mul_f32 v{R+r}, v{R+r}, v{TMP}')
        o(f'v_cvt_pk_bf16_f32 v{S+4}, |v{R+8}|, |v{R+9}|')
        o(f'ds_write_b32 v{V_PM}, v{S+4} offset:{24576 + tt*256}')
        o(f'ds_read_b128 {vr(S+8,4)}, v2 offset:{24576 + tt*256}')
        for r in range(4):
            hi = f'|v{R+4+r}|' if tt == 1 else '0'
            o(f'v_cvt_pk_bf16_f32 v{S+r}, |v{R+r}|, {hi}')
        o(f'''
        s_lshl_b32 s22, s{S_ID}, 11
        s_add_u32 s22, s22, s32
        s_add_u32 s22, s22, {7168 + tt*1024}
        s_lshr_b32 s23, s{S_ID}, 2
        s_lshl_b32 s23, s23, 11
        s_add_u32 s23, s23, s32
        s_add_u32 s23, s23, {7168 + 32768 + tt*1024}
        s_and_b32 s26, s{S_ID}, 3
        s_lshl_b32 s26, s26, 8
        s_add_u32 s23, s23, s26
        buffer_store_dwordx4 {vr(S,4)}, v{V_L16}, {WSR}, s22 offen sc1
        s_mov_b64 exec, 0xffff
        s_waitcnt lgkmcnt(0)
        buffer_store_dwordx4 {vr(S+8,4)}, v2, {WSR}, s23 offen sc1
        s_mov_b64 exec, -1
        ''')
        if tt == 0:
            o(f's_branch {LN}')
    o.label(LN)
    o(f'v_xor_b32 v{V_LW}, 0x8000, v{V_LW}')
    o(f'v_xor_b32 v14, 0x8000, v14')
    x_start(o, XR, 31)
    o(f's_cmp_lt_u32 s{S_SEG}, 64')
    o(f's_cbranch_scc1 {LT}')
    o(f's_branch {exit_label}')
LDS_TA = 65536

def gen_HG(o, exit_label):
    def hw(t, ks):
        u = t * 14 + ks
        return ar(4 * u, 4) if u < 64 else vr(176 + 4 * (u - 64), 4)
    ACC, XR, KV, W = 16, 64, 96, 128
    acc = lambda tt, t: ACC + (tt * 6 + t) * 4
    kv = lambda sg, ft, dt: KV + ((sg * 2 + ft) * 2 + dt) * 4
    V_ONE, V_PH, V_G, TMP = 8, 5, 6, 12
    def signal(off_sgpr):
        L = o.new('Lsg')
        o(f'''
        s_waitcnt vmcnt(0)
        s_barrier
        s_cmp_lg_u32 s{S_W}, 0
        s_cbranch_scc1 {L}
        v_mov_b32 v{TMP}, 1
        v_mov_b32 v{TMP+1}, 0
        s_mov_b64 exec, 1
        buffer_atomic_add v{TMP}, v{TMP+1}, {WSR}, s{off_sgpr} offen
        s_mov_b64 exec, -1
        {L}:
        ''')
    T.VERIFY(o, 16)
    LH0 = o.new('LH')
    o(f'''
    s_lshl_b32 s{S_SEG}, s{S_J}, 3
    s_lshl_b32 s27, s{S_ID}, 2
    s_add_u32 s27, s27, s{S_W}                 ; head
    s_load_dwordx2 s[52:53], s[0:1], {KA_WQKV}
    s_load_dwordx2 s[56:57], s[0:1], {KA_WPHI}
    s_mov_b32 s54, {448*2688}
    s_mov_b32 s55, 0x20000
    s_mov_b32 s58, {16*28*28*2}
    s_mov_b32 s59, 0x20000
    s_and_b32 s33, s{S_J}, 1
    s_mov_b32 s34, s27
    s_lshr_b32 s35, s{S_J}, 1
    v_lshlrev_b32 v1, 4, v0
    v_and_b32 v2, 15, v0
    v_lshrrev_b32 v3, 4, v0
    s_waitcnt lgkmcnt(0)
    s_cmp_ge_u32 s{S_J}, 6
    s_cbranch_scc1 {LH0}
    ''')
    prep.gen_hf(o)
    o.label(LH0)
    o(f's_lshl_b32 s30, s{S_ID}, 7')
    o(f's_add_u32 s30, s30, {OFF_FL + FL_KV + 512}')
    signal(30)
    poll_counter(o, 30, 8, exit_label, TMP)
    lane_consts(o)
    x_start(o, XR, S_SEG)
    o(f's_mul_i32 s22, s27, {HFH}')
    o(f's_add_u32 s22, s22, {OFF_HF}')
    for u in range(84):
        o(f'buffer_load_dwordx4 {hw(u // 14, u % 14)}, v{V_L16}, {WSR}, s22 offen offset:{(u&3)*1024} sc1')
        if u & 3 == 3:
            o('s_add_u32 s22, s22, 4096')
        if u % 12 == 11 and u > 40:
            o('s_waitcnt vmcnt(40)')
    jninv(o, V_G, TMP)
    o(f'''
    v_lshlrev_b32 v{V_G}, 2, v{V_G}
    v_cmp_eq_u32 vcc, 12, v{V_N}
    v_cmp_gt_u32 s[48:49], 3, v{V_Q}
    v_cmp_gt_u32 s[50:51], 12, v{V_N}
    v_cndmask_b32 v{V_ONE}, 0, 1.0, vcc
    v_mov_b32 v{V_ONE+1}, v{V_ONE}
    v_mov_b32 v{V_ONE+2}, v{V_ONE}
    v_mov_b32 v{V_ONE+3}, v{V_ONE}
    s_lshl_b32 s26, s{S_W}, 15
    v_add_u32 v{V_PH}, s26, v{V_L16}
    s_mov_b32 s28, 0
    ''')
    for r in range(32):
        o(f'v_mov_b32 v{KV+r}, 0')
    o('s_waitcnt vmcnt(0)')
    mark(o, 70)
    LH = o.new('LH')
    o.label(LH)
    def mf(tt, t, ks, x):
        c = vr(acc(tt, t), 4) if ks else (vr(V_ONE, 4) if t == 5 else '0')
        a, b = (hw(t, ks), vr(x, 4)) if t < 2 else (vr(x, 4), hw(t, ks))
        return f'{MM} {vr(acc(tt,t),4)}, {a}, {b}, {c}'
    gemm_seg(o, XR, 6, mf, 0)
    o(f's_add_u32 s{S_SEG}, s{S_SEG}, 1')
    o(f's_min_u32 s31, s{S_SEG}, 63')
    x_start(o, XR, 31)
    for tt in range(2):
        y = acc(tt, 0)
        mx, mn, t2, EP, EM = W, W + 1, W + 2, W + 8, W + 16
        for r in range(4):
            o(f'v_cndmask_b32 v{y+4+r}, v{y}, v{y+4+r}, s[48:49]')
        o(f'v_max3_f32 v{mx}, v{y}, v{y+1}, v{y+2}')
        o(f'v_min3_f32 v{mn}, v{y}, v{y+1}, v{y+2}')
        o(f'v_max3_f32 v{mx}, v{mx}, v{y+3}, v{y+4}')
        o(f'v_min3_f32 v{mn}, v{mn}, v{y+3}, v{y+4}')
        o(f'v_max3_f32 v{mx}, v{mx}, v{y+5}, v{y+6}')
        o(f'v_min3_f32 v{mn}, v{mn}, v{y+5}, v{y+6}')
        o(f'v_max_f32 v{mx}, v{mx}, v{y+7}')
        o(f'v_min_f32 v{mn}, v{mn}, v{y+7}')
        xq(o, 'v_max_f32', mx, t2)
        xq(o, 'v_min_f32', mn, t2)
        for r in range(8):
            o(f'v_sub_f32 v{EP+r}, v{y+r}, v{mx}')
            o(f'v_sub_f32 v{EM+r}, v{mn}, v{y+r}')
        for r in range(8):
            o(f'v_exp_f32 v{EP+r}, v{EP+r}')
            o(f'v_exp_f32 v{EM+r}, v{EM+r}')
        o('s_nop 0')
        for r in range(4, 8):
            o(f'v_cndmask_b32 v{EP+r}, 0, v{EP+r}, s[48:49]')
            o(f'v_cndmask_b32 v{EM+r}, 0, v{EM+r}, s[48:49]')
        o(f'v_add_f32 v{mx}, v{EP}, v{EP+1}')
        o(f'v_add_f32 v{mn}, v{EM}, v{EM+1}')
        for r in range(2, 8):
            o(f'v_add_f32 v{mx}, v{mx}, v{EP+r}')
            o(f'v_add_f32 v{mn}, v{mn}, v{EM+r}')
        xq(o, 'v_add_f32', mx, t2)
        xq(o, 'v_add_f32', mn, t2)
        o(f'v_rcp_f32 v{mx}, v{mx}')
        o(f'v_rcp_f32 v{mn}, v{mn}')
        o('s_nop 0')
        for r in range(8):
            o(f'v_mul_f32 v{EP+r}, v{EP+r}, v{mx}')
            o(f'v_mul_f32 v{EM+r}, v{EM+r}, v{mn}')
        for r in range(4):
            o(f'v_cvt_pk_bf16_f32 v{EP+r}, v{EP+2*r}, v{EP+2*r+1}')
        for r in range(4):
            o(f'v_cvt_pk_bf16_f32 v{EM+r}, v{EM+2*r}, v{EM+2*r+1}')
        o(f'ds_write_b128 v{V_PH}, {vr(EP,4)} offset:{tt*2048}')
        o(f'ds_write_b128 v{V_PH}, {vr(EM,4)} offset:{tt*2048+1024}')
    o(f'v_add_u32 v{V_PH}, 4096, v{V_PH}')
    items = [(tt, r) for tt in range(2) for r in range(4)]
    y0 = lambda i: acc(items[i][0], 2) + items[i][1]
    y1 = lambda i: acc(items[i][0], 3) + items[i][1]
    MX, MN, N0, N1 = W, W + 8, W + 16, W + 24
    dpp = lambda op, r, sh: f'{op}_dpp v{r}, v{r}, v{r} row_ror:{sh} row_mask:0xf bank_mask:0xf'
    for i in range(8):
        o(f'v_cndmask_b32 v{y1(i)}, v{y0(i)}, v{y1(i)}, s[50:51]')
    for i in range(8):
        o(f'v_max_f32 v{MX+i}, v{y0(i)}, v{y1(i)}')
        o(f'v_min_f32 v{MN+i}, v{y0(i)}, v{y1(i)}')
    for sh in (8, 4, 2, 1):
        for i in range(8):
            o(dpp('v_max_f32', MX + i, sh))
        for i in range(8):
            o(dpp('v_min_f32', MN + i, sh))
    for i in range(8):
        o(f'v_sub_f32 v{N0+i}, v{MN+i}, v{y0(i)}')
        o(f'v_sub_f32 v{N1+i}, v{MN+i}, v{y1(i)}')
        o(f'v_sub_f32 v{y0(i)}, v{y0(i)}, v{MX+i}')
        o(f'v_sub_f32 v{y1(i)}, v{y1(i)}, v{MX+i}')
    for i in range(8):
        for r in (N0 + i, N1 + i, y0(i), y1(i)):
            o(f'v_exp_f32 v{r}, v{r}')
    o('s_nop 0')
    for i in range(8):
        o(f'v_cndmask_b32 v{y1(i)}, 0, v{y1(i)}, s[50:51]')
        o(f'v_cndmask_b32 v{N1+i}, 0, v{N1+i}, s[50:51]')
    for i in range(8):
        o(f'v_add_f32 v{MX+i}, v{y0(i)}, v{y1(i)}')
        o(f'v_add_f32 v{MN+i}, v{N0+i}, v{N1+i}')
    for sh in (8, 4, 2, 1):
        for i in range(8):
            o(dpp('v_add_f32', MX + i, sh))
        for i in range(8):
            o(dpp('v_add_f32', MN + i, sh))
    for i in range(16):
        o(f'v_rcp_f32 v{MX+i}, v{MX+i}')
    o('s_nop 0')
    for i in range(8):
        o(f'v_mul_f32 v{y0(i)}, v{y0(i)}, v{MX+i}')
        o(f'v_mul_f32 v{y1(i)}, v{y1(i)}, v{MX+i}')
        o(f'v_mul_f32 v{N0+i}, v{N0+i}, v{MN+i}')
        o(f'v_mul_f32 v{N1+i}, v{N1+i}, v{MN+i}')
    PK = W + 32
    for i in range(0, 8, 2):
        o(f'v_cvt_pk_bf16_f32 v{PK+i//2}, v{y0(i)}, v{y0(i+1)}')
        o(f'v_cvt_pk_bf16_f32 v{PK+4+i//2}, v{y1(i)}, v{y1(i+1)}')
        o(f'v_cvt_pk_bf16_f32 v{PK+8+i//2}, v{N0+i}, v{N0+i+1}')
        o(f'v_cvt_pk_bf16_f32 v{PK+12+i//2}, v{N1+i}, v{N1+i+1}')
    for dt in range(2):
        for i in range(0, 8, 2):
            a = acc(items[i][0], 4 + dt) + items[i][1]
            o(f'v_cvt_pk_bf16_f32 v{W+4*dt+i//2}, v{a}, v{a+1}')
    o('s_nop 1')
    for sg in range(2):
        for ft in range(2):
            for dt in range(2):
                o(f'{MM} {vr(kv(sg,ft,dt),4)}, {vr(PK+8*sg+4*ft,4)}, {vr(W+4*dt,4)}, {vr(kv(sg,ft,dt),4)}')
    o(f'''
    s_add_u32 s28, s28, 1
    s_cmp_lt_u32 s28, 8
    s_cbranch_scc1 {LH}
    s_lshl_b32 s29, s27, 16
    s_add_u32 s29, s29, {OFF_KVP}
    s_lshl_b32 s22, s{S_J}, 13
    s_add_u32 s22, s22, s29
    s_add_u32 s23, s22, 4096
    s_nop 7
    ''')
    for i in range(8):
        o(f'buffer_store_dwordx4 {vr(KV+4*i,4)}, v{V_L16}, {WSR}, s{22+(i>>2)} offen offset:{(i&3)*1024} sc1')
    o(f's_lshl_b32 s30, s{S_ID}, 7')
    o(f's_add_u32 s30, s30, {OFF_FL + FL_KV}')
    mark(o, 88)
    signal(30)
    poll_counter(o, 30, 8, exit_label, TMP)
    for tb in range(8):
        dst = KV if tb == 0 else (16 if tb & 1 else 48)
        o(f's_add_u32 s23, s29, 4096')
        for i in range(8):
            o(f'buffer_load_dwordx4 {vr(dst+4*i,4)}, v{V_L16}, {WSR}, s{29 if i < 4 else 23} offen offset:{(i&3)*1024} sc1')
        o(f's_add_u32 s29, s29, 8192')
        if tb >= 2:
            o('s_waitcnt vmcnt(8)')
            p = 16 if (tb - 1) & 1 else 48
            for r in range(32):
                o(f'v_add_f32 v{KV+r}, v{KV+r}, v{p+r}')
    o('s_waitcnt vmcnt(0)')
    for r in range(32):
        o(f'v_add_f32 v{KV+r}, v{KV+r}, v{16+r}')
    KT = W
    for sg in range(2):
        for dt in range(2):
            for ft in range(2):
                for rp in range(2):
                    a = kv(sg, ft, dt) + 2 * rp
                    o(f'v_cvt_pk_bf16_f32 v{KT+(sg*2+dt)*4+2*ft+rp}, v{a}, v{a+1}')
    o(f'''
    s_lshl_b32 s26, s{S_W}, 15
    v_add_u32 v{V_PH}, s26, v{V_L16}
    v_add_u32 v7, 48, v{V_N}
    v_lshlrev_b32 v7, 2, v7
    s_lshl_b32 s22, s{S_J}, 18
    s_lshl_b32 s23, s27, 11
    s_add_u32 s22, s22, s23
    s_add_u32 s22, s22, {OFF_OB}
    s_lshl_b32 s23, s{S_J}, 10
    s_add_u32 s23, s23, {OFF_G}
    s_mov_b32 s28, 0
    ''')
    L2 = o.new('LH')
    o.label(L2)
    PQ, DD = 16, 32
    for i in range(4):
        o(f'ds_read_b128 {vr(PQ+4*i,4)}, v{V_PH} offset:{i*1024}')
    for tt in range(2):
        o(f'buffer_load_dword v{48+tt}, v{V_G}, {WSR}, s23 offen offset:{tt*64}')
    o('s_waitcnt lgkmcnt(0)')
    for sg in range(2):
        for tt in range(2):
            for dt in range(2):
                d = DD + (tt * 2 + dt) * 4
                o(f'{MM} {vr(d,4)}, {vr(KT+(sg*2+dt)*4,4)}, {vr(PQ+8*tt+4*sg,4)}, ' + ('0' if sg == 0 else vr(d, 4)))
    o('s_nop 7')
    for tt in range(2):
        o(f'ds_bpermute_b32 v{50+tt}, v7, v{DD+8*tt+4}')
    o('s_waitcnt vmcnt(0) lgkmcnt(0)')
    for tt in range(2):
        o(f'v_add_f32 v{50+tt}, {f32(1e-6)}, v{50+tt}')
        o(f'v_rcp_f32 v{50+tt}, v{50+tt}')
    o('s_nop 0')
    for tt in range(2):
        d = DD + 8 * tt
        o(f'v_mul_f32 v{50+tt}, v{50+tt}, v{48+tt}')
        for r in range(8):
            o(f'v_mul_f32 v{d+r}, v{d+r}, v{50+tt}')
        for r in range(4):
            o(f'v_cvt_pk_bf16_f32 v{56+4*tt+r}, v{d+2*r}, v{d+2*r+1}')
        o(f'v_cndmask_b32 v{58+4*tt}, 0, v{58+4*tt}, s[48:49]')
        o(f'v_cndmask_b32 v{59+4*tt}, 0, v{59+4*tt}, s[48:49]')
        o(f'buffer_store_dwordx4 {vr(56+4*tt,4)}, v{V_L16}, {WSR}, s22 offen offset:{tt*1024} sc1')
    o(f'''
    v_add_u32 v{V_PH}, 4096, v{V_PH}
    s_add_u32 s22, s22, 32768
    s_add_u32 s23, s23, 128
    s_add_u32 s28, s28, 1
    s_cmp_lt_u32 s28, 8
    s_cbranch_scc1 {L2}
    s_lshl_b32 s30, s{S_J}, 7
    s_add_u32 s30, s30, {OFF_FL + FL_O}
    ''')
    signal(30)
    o(f's_branch {exit_label}')
LDS_HG = 131072
```

```python
import sys
from common import *
import prep, team as T, workers as W

LDS_K2 = 131072
HEAD = open('gated_mix__linear_kernel_hedgehog__memory_aug_recurrent_mem_tr__prompt.s.ref').read().split('; Override launch')[0]

def gen_main(o, name, diag=False, force_slow=False):
    def verify(o, t):
        L1, L2 = o.new('Lvf'), o.new('Lvf')
        o(f'''
        s_cmp_lg_u32 s94, 0
        s_cbranch_scc1 {L2}
        v_and_b32 v{t+1}, 31, v0
        v_lshlrev_b32 v{t+1}, 2, v{t+1}
        {L1}:
        buffer_load_dword v{t}, v{t+1}, s[12:15], 0 offen offset:128 sc1
        s_sub_u32 s{T.S_BUD}, s{T.S_BUD}, 1
        s_cbranch_scc1 {name}_exit
        s_waitcnt vmcnt(0)
        v_cmp_eq_u32 vcc, 0, v{t}
        s_cbranch_vccnz {L1}
        v_readfirstlane_b32 s94, v{t}
        s_nop 1
        v_cmp_ne_u32 vcc, {'s94' if not force_slow else '0'}, v{t}
        s_cbranch_vccnz {name}_census
        {L2}:
        ''')
    T.VERIFY = verify
    X = name + '_exit'
    o.label(name)
    o(f'''
    s_cmp_ge_u32 s2, 256
    s_cbranch_scc1 {name}_end
    s_load_dwordx2 s[4:5], s[0:1], {KA_WS}
    s_load_dwordx2 s[8:9], s[0:1], {KA_OUT}
    s_load_dwordx2 s[12:13], s[0:1], {KA_DBG}
    s_load_dwordx2 s[44:45], s[0:1], {KA_WO}
    ''')
    if diag:
        o('s_memrealtime s[68:69]')
    o(f'''
    s_getreg_b32 s3, hwreg(HW_REG_XCC_ID)
    s_and_b32 s3, s3, 15
    s_mov_b32 s6, {WS_BYTES}
    s_mov_b32 s7, 0x20000
    s_mov_b32 s10, {2048*896}
    s_mov_b32 s11, 0x20000
    s_mov_b32 s14, 256
    s_mov_b32 s15, 0x20000
    s_mov_b32 s46, {448*896}
    s_mov_b32 s47, 0x20000
    s_mov_b32 s{T.S_BUD}, 400000
    v_lshrrev_b32 v1, 6, v0
    v_and_b32 v0, 63, v0
    v_readfirstlane_b32 s{T.S_W}, v1
    s_waitcnt lgkmcnt(0)
    s_and_b32 s22, s2, 7
    s_lshl_b32 s22, s22, 5
    s_lshr_b32 s23, s2, 3
    s_add_u32 s22, s22, s23
    s_mov_b32 s94, 0
    s_cmp_ge_u32 s22, 32
    s_cbranch_scc1 {name}_go
    s_cmp_lg_u32 s{T.S_W}, 0
    s_cbranch_scc1 {name}_go
    s_add_u32 s23, s3, 1
    v_mov_b32 v2, s23
    s_lshl_b32 s23, s22, 2
    v_mov_b32 v3, s23
    s_mov_b64 exec, 1
    buffer_store_dword v2, v3, s[12:15], 0 offen offset:128 sc1
    s_mov_b64 exec, -1
    s_branch {name}_go
    {name}_census:
    s_mov_b32 s94, 1
    s_waitcnt vmcnt(0) lgkmcnt(0)
    s_barrier
    v_mbcnt_lo_u32_b32 v0, -1, 0
    v_mbcnt_hi_u32_b32 v0, -1, v0
    s_cmp_lg_u32 s{T.S_W}, 0
    s_cbranch_scc1 {name}_c2
    v_mov_b32 v2, 1
    v_mov_b32 v3, 0
    s_lshl_b32 s20, s3, 2
    s_mov_b64 exec, 1
    buffer_atomic_add v2, v3, s[12:15], s20 offen sc0
    s_mov_b64 exec, -1
    v_and_b32 v3, 15, v0
    v_lshlrev_b32 v3, 2, v3
    s_waitcnt vmcnt(0)
    v_readfirstlane_b32 s21, v2                ; ticket
    {name}_c1:
    buffer_load_dword v4, v3, s[12:15], 0 offen sc1
    s_sub_u32 s{T.S_BUD}, s{T.S_BUD}, 1
    s_cbranch_scc1 {name}_end
    s_waitcnt vmcnt(0)
    v_mov_b32 v5, v4
    s_nop 1
    v_add_u32_dpp v5, v5, v5 row_ror:8 row_mask:0xf bank_mask:0xf
    s_nop 1
    v_add_u32_dpp v5, v5, v5 row_ror:4 row_mask:0xf bank_mask:0xf
    s_nop 1
    v_add_u32_dpp v5, v5, v5 row_ror:2 row_mask:0xf bank_mask:0xf
    s_nop 1
    v_add_u32_dpp v5, v5, v5 row_ror:1 row_mask:0xf bank_mask:0xf
    v_cmp_gt_u32 vcc, 256, v5
    s_cbranch_vccnz {name}_c1
    v_and_b32 v6, 15, v0
    v_cmp_gt_u32 vcc, s3, v6
    s_nop 1
    v_cndmask_b32 v5, 0, v4, vcc
    s_nop 1
    v_add_u32_dpp v5, v5, v5 row_ror:8 row_mask:0xf bank_mask:0xf
    s_nop 1
    v_add_u32_dpp v5, v5, v5 row_ror:4 row_mask:0xf bank_mask:0xf
    s_nop 1
    v_add_u32_dpp v5, v5, v5 row_ror:2 row_mask:0xf bank_mask:0xf
    s_nop 1
    v_add_u32_dpp v5, v5, v5 row_ror:1 row_mask:0xf bank_mask:0xf
    v_cmp_le_u32 vcc, {32 if not force_slow else 1000}, v4
    s_nop 0
    v_readfirstlane_b32 s22, v5
    s_ff1_i32_b32 s23, vcc_lo
    s_add_u32 s22, s22, s21
    s_cmp_lt_i32 s23, 0
    s_cbranch_scc1 {name}_c3
    s_add_u32 s24, s22, 32
    s_cmp_ge_u32 s3, s23
    s_cselect_b32 s22, s22, s24
    s_cmp_lt_u32 s21, 32
    s_cselect_b32 s24, s21, s22
    s_cmp_eq_u32 s3, s23
    s_cselect_b32 s22, s24, s22
    s_branch {name}_c4
    {name}_c3:
    s_or_b32 s22, s22, 0x10000
    {name}_c4:
    v_mov_b32 v2, s22
    v_mov_b32 v3, 0
    ds_write_b32 v3, v2
    s_waitcnt lgkmcnt(0)
    {name}_c2:
    s_barrier
    v_mov_b32 v3, 0
    ds_read_b32 v2, v3
    s_waitcnt lgkmcnt(0)
    v_readfirstlane_b32 s22, v2
    s_barrier
    {name}_go:
    s_lshr_b32 s{T.S_MODE}, s22, 16
    s_and_b32 s{T.S_MODE}, s{T.S_MODE}, 1
    s_and_b32 s22, s22, 255
    s_mov_b32 s85, s22
    {'s_memrealtime s[86:87]' if diag else ''}
    s_cmp_ge_u32 s22, 32
    s_cbranch_scc1 {name}_w
    s_mov_b32 s{T.S_ROLE}, s22
    ''')
    T.gen_team_body(o, X)
    o.raw('.p2align 6')
    o.label(name + '_w')
    o(f'''
    s_sub_u32 s22, s22, 32
    s_cmp_ge_u32 s22, 192
    s_cbranch_scc1 {name}_hg
    s_mul_i32 s23, s22, 10923
    s_lshr_b32 s23, s23, 16
    s_mul_i32 s24, s23, 6
    s_sub_u32 s{W.S_J}, s22, s24
    s_and_b32 s{W.S_ID}, s23, 15
    s_cmp_ge_u32 s23, 16
    s_cbranch_scc1 {name}_ta
    ''')
    if T.CFG.get('now'): o(f's_branch {X}')
    if T.CFG.get('dlyw'): o('s_sleep 127\n' * T.CFG['dlyw'])
    W.gen_WB(o, X)
    o.label(name + '_ta')
    if T.CFG.get('nota'): o(f's_branch {X}')
    if T.CFG.get('dly'): o('s_sleep 127\n' * T.CFG['dly'])
    W.gen_TA(o, X)
    o.label(name + '_hg')
    o(f'''
    s_sub_u32 s22, s22, 192
    s_lshr_b32 s{W.S_ID}, s22, 3
    s_and_b32 s{W.S_J}, s22, 7
    ''')
    if T.CFG.get('nohg'): o(f's_branch {X}')
    if T.CFG.get('dly'): o('s_sleep 127\n' * T.CFG['dly'])
    W.gen_HG(o, X)
    o.label(X)
    if diag:
        o(f'''
        s_memrealtime s[72:73]
        s_memtime s[92:93]
        s_waitcnt lgkmcnt(0)
        s_sub_u32 s92, s92, s80
        s_lshl_b32 s3, s85, 2
        s_add_u32 s3, s3, s{T.S_W}
        s_lshl_b32 s3, s3, 5
        s_add_u32 s3, s3, {OFF_END1}
        v_mbcnt_lo_u32_b32 v1, -1, 0
        v_mbcnt_hi_u32_b32 v1, -1, v1
        v_lshlrev_b32 v1, 2, v1
        s_sub_u32 s77, s3, {OFF_END1}
        s_lshl_b32 s77, s77, 3
        s_add_u32 s77, s77, {OFF_END1 + 131072}
        s_mov_b64 exec, -1
        buffer_store_dword v0, v1, s[4:7], s77 offen
        v_mov_b32 v1, 0
        s_mov_b64 exec, 1
        ''')
        for i, s in enumerate([68, 70, 72, T.S_BUD, 92, 86, 88, 90]):
            o(f'v_mov_b32 v2, s{s}')
            o(f'buffer_store_dword v2, v1, s[4:7], s3 offen offset:{4*i}')
        o('s_waitcnt vmcnt(0)')
        if T.CFG.get('echo'):
            e = T.CFG['echo']
            o(f'''
            s_cmp_lg_u32 s{T.S_W}, 0
            s_cbranch_scc1 {name}_end
            s_cmp_lg_u32 s85, 35
            s_cbranch_scc1 {name}_end
            s_mov_b32 s77, {OFF_END1 + 65536}
            buffer_load_dwordx4 v[8:11], v1, s[4:7], s77 offen
            s_mov_b32 s77, {OFF_END1}
            buffer_load_dwordx4 v[12:15], v1, s[4:7], s77 offen sc1
            s_waitcnt vmcnt(0)
            v_readfirstlane_b32 s60, v8                ; K1 start
            s_nop 1
            {'s_sub_u32 s61, s68, s60' if e == 1 else 's_sub_u32 s61, s72, s60' if e == 2 else 's_sub_u32 s61, s72, s68' if e == 3 else 's_mov_b32 s61, 1000'}
            s_min_u32 s61, s61, 20000
            {name}_e1:
            s_memrealtime s[62:63]
            s_waitcnt lgkmcnt(0)
            s_sub_u32 s62, s62, s72
            s_cmp_lt_u32 s62, s61
            s_cbranch_scc1 {name}_e1
            ''')
        if T.CFG.get('dbg'):
            o(f'''
            s_cmp_lg_u32 s{T.S_W}, 0
            s_cbranch_scc1 {name}_end
            s_mov_b32 s77, {OFF_END1 + 65536}
            buffer_load_dwordx4 v[8:11], v1, s[4:7], s77 offen
            s_waitcnt vmcnt(0)
            s_cmp_eq_u32 s85, 35
            s_cbranch_scc1 {name}_d2
            s_cmp_lg_u32 s85, 0
            s_cbranch_scc1 {name}_end
            v_sub_u32 v2, v10, v8
            buffer_store_dword v2, v1, s[12:15], 0 offen offset:0
            v_sub_u32 v2, v11, v8
            buffer_store_dword v2, v1, s[12:15], 0 offen offset:4
            v_sub_u32 v2, v9, v8
            buffer_store_dword v2, v1, s[12:15], 0 offen offset:8
            ''')
            for i, s in enumerate([68, 70, 88, 90, 72]):
                o(f'v_sub_u32 v2, s{s}, v8')
                o(f'buffer_store_dword v2, v1, s[12:15], 0 offen offset:{12+4*i}')
            o(f's_branch {name}_end')
            o.label(name + '_d2')
            for i, s in enumerate([70, 88, 72]):
                o(f'v_sub_u32 v2, s{s}, v8')
                o(f'buffer_store_dword v2, v1, s[12:15], 0 offen offset:{40+4*i}')
    o.label(name + '_end')
    o('s_endpgm')

def build(diag=False, force_slow=False):
    T.CFG['flags'] = 0 if T.CFG.get('now') else 1
    T.CFG['diag'] = int(diag)
    prep.DIAG = diag
    prep.CFG['asc1'] = T.CFG.get('asc1', 1)
    prep.CFG['slp'] = T.CFG.get('slp', 0)
    prep.CFG['warm'] = T.CFG.get('warm', 0)
    prep.CFG['clk'] = T.CFG.get('clk', 0)
    prep.CFG['rot'] = T.CFG.get('rot', 1)
    prep.CFG['sc1'] = T.CFG.get('k1sc1', 1)
    W.DIAG = diag
    o = Asm()
    hdr = HEAD + f'; @launch kernel=prep_kernel grid=(256,1,1) block=(512,1,1) lds={prep.LDS_K1}\n' \
               + f'; @launch kernel=main_kernel grid=(256,1,1) block=(256,1,1) lds={LDS_K2}\n'
    o.raw('.amdgcn_target "amdgcn-amd-amdhsa--gfx950"\n.text\n.globl prep_kernel\n.p2align 8\n.type prep_kernel,@function')
    prep.gen_prep(o, 'prep_kernel')
    o.raw('.globl main_kernel\n.p2align 8\n.type main_kernel,@function')
    gen_main(o, 'main_kernel', diag, force_slow)
    o.raw('.section .rodata,"a"\n.p2align 6')
    o.raw(kd('prep_kernel', 256, 256, 80))
    o.raw('.p2align 6')
    o.raw(kd('main_kernel', 512, 256, 96))
    return hdr + o.text()

if __name__ == '__main__':
    for a in sys.argv[2:]:
        if '=' in a:
            k, v = a.split('='); T.CFG[k] = int(v)
    open(sys.argv[1], 'w').write(build('diag' in sys.argv, 'slow' in sys.argv))
```

```python
from common import *

S_WS, S_DBG = 4, 12
S_W, S_ROLE, S_STEP, S_BUD = 16, 17, 18, 19
S_M0, S_M1 = 20, 21
S_T0, S_T1, S_T2, S_T3 = 22, 23, 24, 25
S_PB = 26
S_X0, S_X1 = 27, 28
S_Z = 30
S_MO = 35
S_MG = 36
S_MODE = 37
S_TOUCH = 38
S_ZP = 39
S_FM = 82
S_FA = 84
S_ST = 40

V_L16, V_IDX = 1, 2
V_TW, V_TR = 3, 4
V_A0, V_A1, V_A2, V_A3, V_A4, V_A5, V_A6, V_A7 = 5, 6, 7, 8, 9, 10, 11, 12
V_TMP = 13
V_MEMF = 16
V_ACC = 44
V_XK = 72
V_MK = 104
V_WT = 120

L_MEMS = 0
L_TIMG = 7424
L_SP = L_TIMG + 8192 + 256
L_ZERO = L_SP + 8192
L_END = L_ZERO + 1024

CFG = dict(vs=3, w1g=2, nbar=10, split=0, nb=4, nw=4, sq=4, zn=1, za=8, zb=8, trk=8, wo0=0, wo1=1, wo2=1, wo3=0, ne=5, lg0=12, lgs=6, dP=2, spP=10, spec=1, specB=1, mask=0, dA=2, dBm=1, flags=0, diag=1, gapA=54, gapB=10, gapB2=20, sp=6, ahead=1, f1=3, f2=3, tw=1, tl=56, xg=(2, 6, 10, 14, 18))

def wreg(t, j):
    u = t * 7 + j
    return ar(8 * u, 8) if u < 32 else vr(V_WT + 8 * (u - 32), 8)
def wreg_half(t, j, hf):
    u = t * 7 + j
    return ar(8 * u + 4 * hf, 4) if u < 32 else vr(V_WT + 8 * (u - 32) + 4 * hf, 4)
def acc(t): return V_ACC + 4 * t
def memf(j): return V_MEMF + 4 * j
def SM(d, a, b): return f'v_smfmac_f32_16x16x64_bf16 {vr(d,4)}, {vr(a,4)}, {b}, v{V_IDX}'
def M(t, j): return SM(acc(t), memf(j), wreg(t, j))
def zero(r): return f'v_mov_b32 v{r}, 0'
def zero4(a): return [zero(a + i) for i in range(4)]

def zero_ds(a): return f'ds_read_b128 {vr(a,4)}, v{V_L16} offset:{L_ZERO}'
def pause(o, n):
    if CFG.get('nops'):
        for _ in range(n // 4):
            o('s_nop 15')
    elif n >= 4:
        o(f's_sleep {n // 4}')
    if n % 4:
        o(f's_nop {4 * (n % 4) - 1}')

def post(t):
    a = acc(t)
    return [f'v_add_f32 v{a}, v{a}, v{a+2}', f'v_add_f32 v{a+1}, v{a+1}, v{a+3}',
            f'v_cvt_pk_bf16_f32 v{a}, v{a}, v{a+1}', f'ds_write_b32 v{V_TW}, v{a} offset:{t*256}']

def merge(o, main, fill):
    for i, m in enumerate(main):
        o(m)
        for f in fill.get(i, []):
            o(f)

LIGHT = None
MARK = False
VERIFY = None
def stamp(o, k, on):
    if MARK:
        o(f'; MARK {k}')
    if on or (LIGHT and k in LIGHT):
        o(f's_memtime {sr(S_ST+2*k,2)}')

def trace(o, reset=False):
    if CFG.get('trace'):
        if reset:
            o('s_mov_b32 s76, 0')
        o('s_memtime s[78:79]\ns_waitcnt lgkmcnt(0)\ns_mov_b32 m0, s76\ns_nop 0\nv_writelane_b32 v0, s78, m0\ns_add_u32 s76, s76, 1\ns_and_b32 s76, s76, 63')

def flags_reload(o):
    o(f'''
    v_lshrrev_b32 v{V_TMP+1}, 2, v{V_L16}
    buffer_load_dword v{V_TMP}, v{V_TMP+1}, {sr(S_WS,4)}, s{S_FA} offen sc1
    s_waitcnt vmcnt(0)
    v_cmp_ne_u32 {sr(S_FM,2)}, 0, v{V_TMP}
    s_nop 0
    ''')

def mem_issue(o):
    o(f'buffer_load_dwordx4 {vr(memf(0),4)}, v{V_L16}, {sr(S_WS,4)}, s{S_M0} offen sc1')
    o(f'buffer_load_dwordx4 {vr(memf(1),4)}, v{V_L16}, {sr(S_WS,4)}, s{S_M1} offen sc1')

def poll_and_head(o, w, exit_label, extra_reads, fill2, stamps, early=(), after_barrier=None, depth=2, nbar=7):
    kk = [(j + 2 * w) % 7 for j in range(7)]
    L, OK = o.new('Lpm'), o.new('Lok')
    m = memf(0)
    dp = depth
    o(f's_branch {OK}')
    o.label(L)
    if CFG['mask']:
        o('s_mov_b64 exec, vcc')
    mem_issue(o)
    if CFG['mask']:
        o('s_mov_b64 exec, -1')
    o(f's_sub_u32 s{S_BUD}, s{S_BUD}, 1')
    o(f's_cbranch_scc1 {exit_label}')
    if CFG['spec']:
        o('s_nop 2')
        for z in zero4(acc(0)) + zero4(acc(1)):
            o(z)
    o.label(OK)
    o(f's_waitcnt vmcnt({2*dp-1})')
    o(f'v_max3_u32 v{V_TMP}, v{m}, v{m+1}, v{m+2}')
    o(f's_waitcnt vmcnt({2*dp-2})')
    trace(o)
    stamp(o, 0, stamps)
    o(f'v_max3_u32 v{V_TMP+2}, v{m+4}, v{m+5}, v{m+6}')
    o(f'v_max3_u32 v{V_TMP}, v{m+3}, v{m+7}, v{V_TMP}')
    if CFG['spec']:
        o(M(0, 0))
    o(f'v_max_u32 v{V_TMP}, v{V_TMP}, v{V_TMP+2}')
    o(f'v_cmp_eq_u32 vcc, -1, v{V_TMP}')
    if CFG['spec']:
        o(M(1, 0))
        o(f'ds_write_b128 v{V_L16}, {vr(memf(0),4)} offset:{L_MEMS+kk[0]*1024}')
        o(f's_cbranch_vccnz {L}')
    else:
        o(f's_cbranch_vccnz {L}')
        o(M(0, 0))
        o(f'ds_write_b128 v{V_L16}, {vr(memf(0),4)} offset:{L_MEMS+kk[0]*1024}')
        o(M(1, 0))
    ms = [M(t, 0) for t in range(2, 7)] + [M(t, 1) for t in range(7)]
    for i in range(nbar - 2):
        o(ms.pop(0))
        if w != 3 and i == CFG['w1g']:
            o(f'ds_write_b128 v{V_L16}, {vr(memf(1),4)} offset:{L_MEMS+kk[1]*1024}')
        if i < len(early):
            o(early[i])
    o('s_waitcnt lgkmcnt(0)')
    stamp(o, 4, stamps)
    o('s_barrier')
    stamp(o, 5, stamps)
    rd = [f'ds_read_b128 {vr(memf(j),4)}, v{V_L16} offset:{L_MEMS+kk[j]*1024}' for j in range(2, 7)]
    o(rd[0])
    if nbar == 7:
        o(rd[1])
    if after_barrier:
        after_barrier()
    rest = rd[(2 if nbar == 7 else 1):] + extra_reads
    fill = {i: [r] for i, r in enumerate(rest[:len(ms)])}
    for k, v in fill2.items():
        fill.setdefault(k, []).extend(v)
    merge(o, ms, fill)
    stamp(o, 6, stamps)
    return rest[len(ms):]

def ld0(o): o(f'buffer_load_dwordx4 {vr(memf(0),4)}, v{V_L16}, {sr(S_WS,4)}, s{S_M0} offen sc1')
def ld1(o): o(f'buffer_load_dwordx4 {vr(memf(1),4)}, v{V_L16}, {sr(S_WS,4)}, s{S_M1} offen sc1')

def head_split(o, w, exit_label, extra_reads, tail_code, stamps, early):
    kk = [(j + 2 * w) % 7 for j in range(7)]
    L, OK, L1, OK1 = o.new('Lpm'), o.new('Lok'), o.new('Lp1'), o.new('Lok')
    m = memf(0)
    o(f's_branch {OK}')
    o.label(L)
    mem_issue(o)
    o(f's_sub_u32 s{S_BUD}, s{S_BUD}, 1')
    o(f's_cbranch_scc1 {exit_label}')
    o('s_nop 2')
    for z in zero4(acc(0)) + zero4(acc(1)):
        o(z)
    o.label(OK)
    o('s_waitcnt vmcnt(3)')
    trace(o)
    stamp(o, 0, stamps)
    o(f'v_max3_u32 v{V_TMP}, v{m}, v{m+1}, v{m+2}')
    o(f'v_max_u32 v{V_TMP}, v{V_TMP}, v{m+3}')
    o(M(0, 0))
    o(f'v_cmp_eq_u32 vcc, -1, v{V_TMP}')
    o(M(1, 0))
    o(f's_cbranch_vccnz {L}')
    o(M(2, 0))
    o(f'ds_write_b128 v{V_L16}, {vr(memf(0),4)} offset:{L_MEMS+kk[0]*1024}')
    nb = CFG['nb']
    for t in range(3, nb):
        o(M(t, 0))
    o('s_waitcnt vmcnt(2)')
    o(f'v_max3_u32 v{V_TMP}, v{m+4}, v{m+5}, v{m+6}')
    o(f'v_max_u32 v{V_TMP}, v{V_TMP}, v{m+7}')
    rest = [M(t, 0) for t in range(nb, 7)] + [M(t, 1) for t in range(7)]
    if w != 3:
        o(f'ds_write_b128 v{V_L16}, {vr(memf(1),4)} offset:{L_MEMS+kk[1]*1024}')
    o(rest.pop(0))
    o(f'v_cmp_eq_u32 vcc, -1, v{V_TMP}')
    o(rest.pop(0))
    o(f's_cbranch_vccnz {L1}')
    o.label(OK1)
    for i in range(CFG['nw']):
        o(rest.pop(0))
        if i < len(early):
            o(early[i])
    o('s_waitcnt lgkmcnt(0)')
    stamp(o, 4, stamps)
    o('s_barrier')
    stamp(o, 5, stamps)
    rd = [f'ds_read_b128 {vr(memf(j),4)}, v{V_L16} offset:{L_MEMS+kk[j]*1024}' for j in range(2, 7)] + extra_reads
    o(rd.pop(0))
    o(rd.pop(0))
    for x in rest:
        o(x)
        if rd:
            o(rd.pop(0))
    stamp(o, 6, stamps)
    def slow():
        o.label(L1)
        o('s_waitcnt vmcnt(0)')
        o(f'v_max3_u32 v{V_TMP}, v{m+4}, v{m+5}, v{m+6}')
        o(f'v_max_u32 v{V_TMP}, v{V_TMP}, v{m+7}')
        if w != 3:
            o(f'ds_write_b128 v{V_L16}, {vr(memf(1),4)} offset:{L_MEMS+kk[1]*1024}')
        o(f'v_cmp_eq_u32 vcc, -1, v{V_TMP}')
        o(f's_cbranch_vccz {OK1}')
        ld1(o)
        o(f's_sub_u32 s{S_BUD}, s{S_BUD}, 1')
        o(f's_cbranch_scc1 {exit_label}')
        o(f's_branch {L1}')
    tail_code.append(slow)
    return rd

def load_weights(o, w, isA):
    kk = [(j + 2 * w) % 7 for j in range(7)]
    n = 0
    for t in range(7):
        voff = V_L16
        base = (7 * w + t) * 14336
        for j in range(7):
            o(f's_add_u32 s{S_T1}, s{S_T0}, {base + kk[j]*2048}')
            for hf in range(2):
                o(f'buffer_load_dwordx4 {wreg_half(t,j,hf)}, v{voff}, {sr(S_WS,4)}, s{S_T1} offen offset:{hf*1024}')
                n += 1
            if n % 14 == 0 and n >= 42:
                o('s_waitcnt vmcnt(40)')

def xkey_loads(w):
    r = []
    for kt in range(2):
        for ks in range(2):
            for hf in range(2):
                d = V_XK + kt * 16 + ks * 8 + hf * 4
                va = V_A1 if (ks == 1 and hf == 1) else V_L16
                r.append(f'buffer_load_dwordx4 {vr(d,4)}, v{va}, {sr(S_WS,4)}, s{S_X0+kt} offen offset:{(8*ks+4*hf)*256}')
    return r

def tile_phase(extra):
    main, fill = [], {}
    for t in range(7):
        for j in range(2, 7):
            main.append(M(t, j))
    for t in range(6):
        p = post(t)
        b = 5 * (t + 1)
        fill.setdefault(b + 2, []).append(p[0])
        fill.setdefault(b + 3, []).append(p[1])
        fill.setdefault(b + 4, []).append(p[2])
        fill.setdefault(min(b + 5, 34), []).append(p[3])
    for k, v in extra.items():
        fill.setdefault(k, []).extend(v)
    return main, fill

def gen_A(o, w, nsteps, stamps, exit_label):
    o(f'''
    v_and_b32 v{V_TMP}, 15, v0                 ; n
    v_lshrrev_b32 v{V_TMP+1}, 4, v0            ; q
    v_and_b32 v{V_TMP+2}, 1, v{V_TMP+1}        ; q&1
    v_and_b32 v{V_A1}, 0x1f0, v{V_L16}         ; (l&31)*16
    v_lshrrev_b32 v{V_TW}, 2, v{V_TMP}
    v_lshlrev_b32 v{V_TW}, 6, v{V_TW}
    v_and_b32 v{V_A0}, 1, v0
    v_lshl_add_u32 v{V_TW}, v{V_A0}, 5, v{V_TW}
    v_lshl_add_u32 v{V_TW}, v{V_TMP+1}, 3, v{V_TW}
    v_bfe_u32 v{V_A0}, v0, 1, 1
    v_lshl_add_u32 v{V_TW}, v{V_A0}, 2, v{V_TW}
    v_add_u32 v{V_TW}, {L_TIMG + w*2048}, v{V_TW}
    v_lshlrev_b32 v{V_TR}, 8, v{V_TMP+1}
    v_lshl_add_u32 v{V_TR}, v{V_TMP}, 3, v{V_TR}
    v_add_u32 v{V_TR}, {L_TIMG + w*2048}, v{V_TR}
    ; (q>>1)*256 + (4*(j>>1) + 2*(q&1) + (j&1))*16
    v_bfe_u32 v{V_A2}, v0, 1, 1
    v_lshlrev_b32 v{V_A2}, 7, v{V_A2}
    v_bfe_u32 v{V_A0}, v0, 2, 1
    v_lshl_add_u32 v{V_A2}, v{V_A0}, 6, v{V_A2}
    v_lshl_add_u32 v{V_A2}, v{V_TMP+2}, 5, v{V_A2}
    v_and_b32 v{V_A0}, 1, v0
    v_lshl_add_u32 v{V_A2}, v{V_A0}, 4, v{V_A2}
    v_lshrrev_b32 v{V_A0}, 5, v0
    v_lshl_add_u32 v{V_A2}, v{V_A0}, 8, v{V_A2}
    v_lshlrev_b32 v{V_A0}, 6, v{V_TMP+1}
    v_bfe_u32 v{V_A3}, v0, 2, 1
    v_lshl_add_u32 v{V_A0}, v{V_A3}, 5, v{V_A0}
    v_add_u32 v{V_A0}, {(w&1)*16}, v{V_A0}
    v_lshrrev_b32 v{V_A3}, 3, v{V_TMP}
    v_lshl_add_u32 v{V_A6}, v{V_A3}, 8, v{V_A0}
    v_and_b32 v{V_A3}, 3, v0
    v_lshl_add_u32 v{V_A6}, v{V_A3}, 2, v{V_A6}
    v_lshl_add_u32 v{V_A7}, v{V_A3}, 1, v{V_A0}
    s_and_b32 s{S_T2}, s{S_ROLE}, 3
    s_lshl_b32 s{S_T3}, s{S_T2}, 9
    v_add_u32 v{V_A6}, s{S_T3}, v{V_A6}
    s_lshr_b32 s{S_T3}, s{S_T2}, 1
    s_lshl_b32 s{S_T3}, s{S_T3}, 8
    s_and_b32 s{S_T2}, s{S_T2}, 1
    s_lshl_b32 s{S_T2}, s{S_T2}, 3
    s_add_u32 s{S_T3}, s{S_T3}, s{S_T2}
    v_add_u32 v{V_A7}, s{S_T3}, v{V_A7}
    s_lshr_b32 s{S_PB}, s{S_ROLE}, 2
    s_mul_i32 s{S_PB}, s{S_PB}, 2560
    s_add_u32 s{S_PB}, s{S_PB}, {OFF_PB}
    v_lshlrev_b32 v{V_A4}, 3, v0
    v_mov_b32 v{V_A5}, 0
    v_mov_b32 v{V_TMP}, 0
    v_lshlrev_b32 v{V_TMP+1}, 2, v0
    ds_write_b32 v{V_TMP+1}, v{V_TMP} offset:{L_TIMG + w*2048 + 1792}
    ds_write_b32 v{V_TMP+1}, v{V_TMP} offset:{L_MEMS + 7168}
    s_mul_i32 s{S_T0}, s{S_ROLE}, {HSZ}
    s_add_u32 s{S_T0}, s{S_T0}, {OFF_AF}
    v_lshlrev_b32 v{V_A3}, 7, v0
    v_min_u32 v{V_A0}, {22*128}, v{V_A3}
    s_mul_i32 s{S_Z}, s{S_ROLE}, {23*128}
    s_add_u32 s{S_Z}, s{S_Z}, {OFF_SB + SBS}
    s_mul_i32 s{S_TOUCH}, s{S_ROLE}, {WBB}
    s_add_u32 s{S_TOUCH}, s{S_TOUCH}, {OFF_WB + w*128}
    v_min_u32 v{V_A3}, {(CFG['tl']-1)*128}, v{V_A3}
    v_lshlrev_b32 v{V_A3}, 2, v{V_A3}
    s_mov_b32 s{S_X0}, {OFF_XN + 14*w*256}
    s_mov_b32 s{S_X1}, {OFF_XN + 14*w*256 + 14336}
    ''')
    load_weights(o, w, True)
    if VERIFY: VERIFY(o, V_ACC)
    V_L4 = V_A5 if w >= CFG['tw'] else V_TMP + 1
    if w < 2:
        o(f'v_and_b32 v{V_A0}, 0x37, v0\nv_lshlrev_b32 v{V_A0}, 2, v{V_A0}\nv_add_u32 v{V_A0}, {L_SP + 4096 + 32*w}, v{V_A0}')
    o(f'v_lshlrev_b32 v{V_L4}, 2, v0')
    for t in range(7):
        for z in zero4(acc(t)):
            o(z)
    o('s_waitcnt vmcnt(0) lgkmcnt(0)')
    if CFG['diag']: o('s_memrealtime s[70:71]\ns_memtime s[80:81]\ns_mov_b32 s76, 0')
    for _ in range(CFG['dA']):
        mem_issue(o)
    LOOP = o.new('LA')
    o.label(LOOP)
    mkr = []
    for ks in range(2):
        for hf in range(2):
            mkr.append(f'ds_read_b128 {vr(V_MK+ks*8+hf*4,4)}, v{V_A2} offset:{L_MEMS+(7*w+4*ks+2*hf)*256}')
    xl = xkey_loads(w)
    xl = [xl[0], xl[1], xl[4], xl[5], xl[2], xl[3], xl[6], xl[7]]
    if CFG.get('nox'): xl = ['s_nop 0'] * 8
    tail_code = []
    TF0, TF1 = acc(1), acc(2)
    SA = [memf(0), memf(1), acc(0)]
    if CFG['split']:
        left = head_split(o, w, exit_label, mkr, tail_code, stamps, xl[:2])
        assert len(left) <= 4
        o('s_waitcnt lgkmcnt(%d)' % (0 if stamps else 4 - len(left) + 3))
        extra = {}
        free = [0, 2, 3, 4, 5, 6, 11, 16, 10, 15]
        seq = [xl[2]] + left[:1] + [xl[3]] + left[1:] + [xl[4], xl[5], xl[6], xl[7]]
        for g, x in zip(free, seq):
            extra.setdefault(g, []).append(x)
        extra[1] = ['s_waitcnt lgkmcnt(%d)' % (0 if stamps else 4 - len(left))]
        extra.setdefault(20, []).append('s_waitcnt vmcnt(8)')
        extra.setdefault(21, []).append(zero_ds(SA[0]))
        extra.setdefault(25, []).append(zero_ds(SA[1]))
        extra.setdefault(26, []).append(f'ds_read_b64_tr_b16 {vr(TF0,2)}, v{V_TR}')
        extra.setdefault(30, []).append(zero_ds(SA[2]))
        extra.setdefault(31, []).append(f'ds_read_b64_tr_b16 {vr(TF0+2,2)}, v{V_TR} offset:128')
    else:
        nbar = CFG['nbar']
        early = [''] * (nbar - 2)
        for g, x in zip([g for g in range(nbar - 3) if g != CFG['w1g']][-4:], xl):
            early[g] = x
        left = poll_and_head(o, w, exit_label, [], {}, stamps, early, None, CFG['dA'], nbar)
        nl = len(left)
        o(f's_waitcnt lgkmcnt({4 - nl})')
        extra = {}
        out = 4 - nl
        for g in range(4):
            extra[g] = []
            if left:
                extra[g].append(left.pop(0)); out += 1
            out -= 1
            if g in (0, 1, 3) or nl:
                extra[g].append(f's_waitcnt lgkmcnt({max(out - (1 if g == 1 and not nl else 0), 0)})')
        extra[2].append(xl[4])
        extra.update({4: [mkr[0]], 5: [xl[5]], 6: [mkr[1]], 11: [xl[6]], 16: [xl[7]], 10: [mkr[2]], 15: [mkr[3]],
                      20: ['s_waitcnt vmcnt(8)'], 21: [zero_ds(SA[0])], 25: [zero_ds(SA[1])], 30: [zero_ds(SA[2])],
                      26: [f'ds_read_b64_tr_b16 {vr(TF0,2)}, v{V_TR}'], 31: [f'ds_read_b64_tr_b16 {vr(TF0+2,2)}, v{V_TR} offset:128']})
    main, fill = tile_phase(extra)
    merge(o, main, fill)
    stamp(o, 12, stamps)
    keys = lambda kt, ks: vr(V_XK + kt * 16 + ks * 8, 8) if kt < 2 else vr(V_MK + ks * 8, 8)
    o('s_waitcnt vmcnt(4) lgkmcnt(%d)' % (0 if stamps else 1))
    o(SM(SA[0], TF0, keys(0, 0)))
    o(SM(SA[1], TF0, keys(1, 0)))
    p6 = post(6)
    o(p6[0]); o(p6[1]); o(p6[2]); o(p6[3])
    o(f'ds_read_b64_tr_b16 {vr(TF1,2)}, v{V_TR} offset:1024')
    o(f'ds_read_b64_tr_b16 {vr(TF1+2,2)}, v{V_TR} offset:1152')
    o(SM(SA[2], TF0, keys(2, 0)))
    stamp(o, 7, stamps)
    for z in zero4(acc(5))[:CFG['f1']]:
        o('s_nop 1')
        o(z)
    o('s_waitcnt vmcnt(0) lgkmcnt(0)')
    stamp(o, 8, stamps)
    Y = [acc(3), acc(4)]
    for kt in range(3):
        o(SM(SA[kt], TF1, keys(kt, 1)))
    first = 1 - (w & 1)
    plane = lambda par, src: L_SP + (par * 4 + src) * 512
    add = lambda par, kt: o(f'v_add_f32 v{Y[par]+kt}, v{SA[kt]+par}, v{SA[kt]+2+par}')
    o(f's_cmp_eq_u32 s{S_MODE}, 1')
    add(first, 0); add(1 - first, 0)
    o('s_nop 1')
    add(first, 1)
    o(f'ds_write_b64 v{V_A4}, {vr(Y[first],2)} offset:{plane(first, w)}')
    add(1 - first, 1)
    if w >= 2:
        o(f'ds_write_b64 v{V_A4}, {vr(Y[1-first],2)} offset:{plane(1-first, w)}')
    for par in range(2):
        o(f'v_add_f32_dpp v{Y[0]+2}, v{SA[2]+par}, v{SA[2]+2+par} quad_perm:[0,1,2,3] row_mask:0xf bank_mask:{(3, 12)[par]}')
    o(f'ds_write_b32 v{V_L4}, v{Y[0]+2} offset:{L_SP + 4096 + 256*w}')
    for z in zero4(acc(6))[:CFG['f2']]:
        o('s_nop 2')
        o(z)
    o('s_waitcnt lgkmcnt(0)')
    stamp(o, 13, stamps)
    o('s_barrier')
    stamp(o, 9, stamps)
    L1, L2 = o.new('Ls'), o.new('Ls')
    SLOW, BACK = o.new('Lslow'), o.new('Lback')
    R = memf(2)
    E = memf(5)
    s0, s1, s2 = Y[w & 1], Y[w & 1] + 1, Y[w & 1] + 2
    if w < 2:
        u = (L_SP >> 9) + 4 * w
        o(f'ds_read2st64_b64 {vr(R,4)}, v{V_A4} offset0:{u+2} offset1:{u+3}')
        o(f'ds_read_b64 {vr(R+4,2)}, v{V_A4} offset:{plane(w, 1-w)}')
        o(f'ds_read2st64_b32 {vr(R+6,2)}, v{V_A0} offset0:0 offset1:1')
        o(f'ds_read2st64_b32 {vr(R+8,2)}, v{V_A0} offset0:2 offset1:3')
        o('s_waitcnt lgkmcnt(%d)' % (0 if stamps else 3))
        o(f'v_pk_add_f32 {vr(s0,2)}, {vr(s0,2)}, {vr(R,2)}')
        o(f'v_pk_add_f32 {vr(s0,2)}, {vr(s0,2)}, {vr(R+2,2)}')
        o('s_waitcnt lgkmcnt(%d)' % (0 if stamps else 2))
        o(f'v_pk_add_f32 {vr(s0,2)}, {vr(s0,2)}, {vr(R+4,2)}')
        o(f'v_exp_f32 v{E}, v{s0}')
        o('s_waitcnt lgkmcnt(0)')
        o(f'v_pk_add_f32 {vr(R+6,2)}, {vr(R+6,2)}, {vr(R+8,2)}')
        o(f'v_exp_f32 v{E+1}, v{s1}')
        o(f'v_add_f32 v{s2}, v{R+6}, v{R+7}')
        o(f'v_exp_f32 v{E+2}, v{s2}')
        stamp(o, 10, stamps)
        dpp = lambda op, r, sh: f'{op}_dpp v{r}, v{r}, v{r} row_ror:{sh} row_mask:0xf bank_mask:0xf'
        o(f'v_add_f32 v{E+3}, v{E}, v{E+1}')
        o(f'v_fma_f32 v{E+3}, v{E+2}, 0.5, v{E+3}')
        o(f'v_max3_f32 v{V_TMP}, |v{s0}|, |v{s1}|, |v{s2}|')
        o(f'v_cmp_nge_f32 vcc, 0x42800000, v{V_TMP}')
        o(dpp('v_add_f32', E + 3, 8))
        for sh in (4, 2, 1):
            o('s_nop 1')
            o(dpp('v_add_f32', E + 3, sh))
        stamp(o, 11, stamps)
        o(f'v_rcp_f32 v{E+3}, v{E+3}')
        o(f's_cbranch_vccnz {SLOW}')
        o.label(BACK)
        o(f'v_mul_f32 v{E}, v{E}, v{E+3}')
        o(f'v_mul_f32 v{E+1}, v{E+1}, v{E+3}')
        o(f'v_mul_f32 v{E+2}, v{E+2}, v{E+3}')
        o(f'v_cvt_pk_bf16_f32 v{E}, |v{E}|, |v{E+1}|')
        o(f'v_cvt_pk_bf16_f32 v{E+2}, |v{E+2}|, |v{E+2}|')
        o(f's_cbranch_scc1 {L1}')
        o(f'buffer_store_dword v{E}, v{V_A6}, {sr(S_WS,4)}, s{S_PB} offen')
        o(f'buffer_store_short v{E+2}, v{V_A7}, {sr(S_WS,4)}, s{S_PB} offen offset:2048')
        o.label(L2)
        o(f's_add_u32 s{S_PB}, s{S_PB}, {SBS}')
    elif w == 2:
        for z in (zero4(acc(0)) + zero4(acc(1)) + zero4(acc(2)))[:CFG['trk']]:
            o(z)
            o('s_nop 3')
    stamp(o, 3, stamps)
    o('s_barrier')
    for r, v in ((S_X0, SBS), (S_X1, SBS), (S_TOUCH, WBS), (S_Z, SBS), (S_M0, SBS), (S_M1, SBS), (S_STEP, 1)):
        o(f's_add_u32 s{r}, s{r}, {v}')
    if CFG.get('steplog'):
        o(f's_memtime s[78:79]\ns_waitcnt lgkmcnt(0)\ns_mov_b32 m0, s{S_STEP}\ns_nop 0\nv_writelane_b32 v0, s78, m0')
    if CFG['diag']:
        for st, sg in ((1, 88), (24, 90)):
            Lq = o.new('Lq')
            o(f's_cmp_lg_u32 s{S_STEP}, {st}\ns_cbranch_scc1 {Lq}\ns_memrealtime s[{sg}:{sg+1}]\ns_waitcnt lgkmcnt(0)\n{Lq}:')
    o(f's_cmp_ge_u32 s{S_STEP}, {nsteps}')
    o(f's_cbranch_scc1 {exit_label}')
    trace(o, True)
    if w == 3:
        o(f'buffer_load_dword v{V_TMP+2}, v{V_A0}, {sr(S_WS,4)}, s{S_Z} offen')
    if w < CFG['tw']:
        LT2 = o.new('Lt')
        if CFG['flags']:
            o(f'v_cmp_ne_u32 {sr(S_FM,2)}, 0, v{V_A5}')
            o(f'v_lshrrev_b32 v{V_TMP+1}, 2, v{V_L16}')
            o(f'buffer_load_dword v{V_A5}, v{V_TMP+1}, {sr(S_WS,4)}, s{S_FA} offen sc1')
            o(f's_bitcmp1_b64 {sr(S_FM,2)}, s{S_STEP}')
            o(f's_cbranch_scc0 {LT2}')
        o(f'buffer_load_dword v{V_TMP+2}, v{V_A3}, {sr(S_WS,4)}, s{S_TOUCH} offen sc1')
        o.label(LT2)
    trace(o)
    pause(o, CFG['gapA'] + CFG['wo%d' % w])
    zs = [z for t in range(7) for z in zero4(acc(t))]
    def zz(n):
        for _ in range(n):
            if zs:
                o(zs.pop(0))
                o(f's_nop {CFG["zn"]}')
    sq = CFG['sq']
    zz(28 - 3 * sq - CFG['za'])
    if CFG['split']:
        ld0(o); zz(sq); ld1(o); zz(sq); ld0(o); zz(sq); ld1(o)
    else:
        mem_issue(o); zz(2 * sq); mem_issue(o); zz(sq)
    zz(28)
    o(f's_branch {LOOP}')
    for f in tail_code:
        f()
    if w < 2:
        o.label(L1)
        o(f'buffer_store_dword v{E}, v{V_A6}, {sr(S_WS,4)}, s{S_PB} offen sc1')
        o(f'buffer_store_short v{E+2}, v{V_A7}, {sr(S_WS,4)}, s{S_PB} offen offset:2048 sc1')
        o(f's_branch {L2}')
        o.label(SLOW)
        o(f'v_max3_f32 v{V_TMP}, v{s0}, v{s1}, v{s2}')
        for sh in (8, 4, 2, 1):
            o('s_nop 1')
            o(f'v_max_f32_dpp v{V_TMP}, v{V_TMP}, v{V_TMP} row_ror:{sh} row_mask:0xf bank_mask:0xf')
        for kt in range(3):
            o(f'v_sub_f32 v{s0+kt}, v{s0+kt}, v{V_TMP}')
            o(f'v_exp_f32 v{E+kt}, v{s0+kt}')
        o('s_nop 0')
        o(f'v_add_f32 v{E+3}, v{E}, v{E+1}')
        o(f'v_fma_f32 v{E+3}, v{E+2}, 0.5, v{E+3}')
        for sh in (8, 4, 2, 1):
            o('s_nop 1')
            o(dpp('v_add_f32', E + 3, sh))
        o(f'v_rcp_f32 v{E+3}, v{E+3}')
        o(f's_branch {BACK}')

def gen_B(o, w, nsteps, stamps, exit_label):
    o(f's_sub_u32 s{S_T2}, s{S_ROLE}, 16')
    o(f's_mul_i32 s{S_T3}, s{S_T2}, 28')
    o(f'''
    v_and_b32 v{V_TMP}, 15, v0                 ; n
    v_lshrrev_b32 v{V_TMP+1}, 4, v0            ; q
    ''')
    o(f's_mul_i32 s{S_T0}, s{S_T2}, {HSZ}')
    o(f's_add_u32 s{S_T0}, s{S_T0}, {OFF_BT}')
    load_weights(o, w, False)
    if VERIFY: VERIFY(o, V_ACC)
    V_KEEP, V_JUNK = V_A6, V_TMP + 2
    o(f'''
    v_lshlrev_b32 v{V_TW}, 4, v{V_TMP}
    v_lshl_add_u32 v{V_TW}, v{V_TMP+1}, 2, v{V_TW}
    v_add_u32 v{V_TW}, {L_TIMG + w*2048}, v{V_TW}
    v_mul_u32_u24 v{V_TR}, 28, v{V_TMP+1}
    v_add_u32 v{V_TR}, v{V_TR}, v{V_TMP}
    v_lshlrev_b32 v{V_TR}, 4, v{V_TR}
    v_add_u32 v{V_TR}, {L_TIMG + w*2048}, v{V_TR}
    v_lshlrev_b32 v{V_A7}, 1, v{V_TMP}
    v_add_u32 v{V_A7}, s{S_T3}, v{V_A7}
    v_lshrrev_b32 v{V_A5}, 4, v{V_A7}
    v_lshlrev_b32 v{V_A5}, 8, v{V_A5}
    v_lshl_add_u32 v{V_A5}, v{V_TMP+1}, 6, v{V_A5}
    v_bfe_u32 v{V_A6}, v{V_A7}, 3, 1
    v_lshl_add_u32 v{V_A5}, v{V_A6}, 5, v{V_A5}
    v_bfe_u32 v{V_A6}, v{V_A7}, 1, 2
    v_lshl_add_u32 v{V_A5}, v{V_A6}, 2, v{V_A5}
    v_add_u32 v{V_A5}, {16*(w&1)}, v{V_A5}
    v_mov_b32 v{V_A7}, 0x80000000
    v_cmp_gt_u32 vcc, 14, v{V_TMP}
    s_nop 1
    v_cndmask_b32 v{V_A5}, v{V_A7}, v{V_A5}, vcc
    v_cmp_gt_u32 vcc, 32, v0
    s_nop 1
    v_cndmask_b32 v{V_A2}, v{V_A7}, v{V_L16}, vcc
    v_lshlrev_b32 v{V_A3}, 3, v0               ; l*8
    v_mov_b32 v{V_A4}, 0x80008000
    v_min_u32 v{V_A0}, 13, v{V_TMP}
    v_mul_u32_u24 v{V_A1}, 14, v{V_TMP+1}
    v_add_lshl_u32 v{V_A0}, v{V_A0}, v{V_A1}, 4    ; (14q + min(n,13))*16
    s_mul_i32 s{S_T3}, s{S_T2}, {WBB}
    s_add_u32 s{S_Z}, s{S_T3}, {OFF_WB + w*7168}
    s_add_u32 s{S_Z+1}, s{S_Z}, 3584
    s_mov_b32 s{S_PB}, {OFF_PB + w*2560}
    s_mov_b32 s{S_MO}, {OFF_MEMI + SBS}
    s_mov_b32 s{S_ZP}, {OFF_MEMG + nsteps*SCS}
    s_mov_b32 s{S_MG}, {OFF_MEMG + 2048*w}
    s_cmp_eq_u32 s{S_T2}, 0
    s_cselect_b32 s{S_T0}, 0, {OOB}
    s_cmp_eq_u32 s{S_T2}, {1 if w != 3 else 99}
    s_cselect_b32 s{S_T1}, 0, {OOB}
    v_or_b32 v{V_A1}, s{S_T0}, v{V_L16}
    v_or_b32 v{V_A7}, s{S_T1}, v{V_L16}
    ''')
    o('s_waitcnt vmcnt(0)')
    for t in range(7):
        for z in zero4(acc(t)):
            o(z)
    ZM = [V_MK, V_MK + 8]
    if CFG.get('now'):
        for r in range(32): o(zero(V_XK + r))
    for z in zero4(V_MK + 4) + zero4(V_MK + 12):
        o(z)
    if CFG['diag']: o('s_memrealtime s[70:71]\ns_memtime s[80:81]\ns_mov_b32 s76, 0')
    for _ in range(CFG['dBm']):
        mem_issue(o)
    LOOP = o.new('LB')
    o.label(LOOP)
    Wr = lambda u, ct: V_XK + 16 * u + 8 * ct
    wl = []
    for hl in range(4):
        for ct in range(2):
            wl.append(f'buffer_load_dwordx4 {vr(Wr(hl>>1,ct)+4*(hl&1),4)}, v{V_A0}, {sr(S_WS,4)}, s{S_Z+(hl>>1)} offen offset:{(hl&1)*1792+ct*896} sc1')
    if CFG.get('now'): wl = ['s_nop 0'] * 8
    pub = f'buffer_store_dword v{V_KEEP}, v{V_A5}, {sr(S_WS,4)}, s{S_ZP} offen sc1'
    early = []
    pubs = [f'buffer_store_dwordx4 {vr(memf(0),4)}, v{V_A1}, {sr(S_WS,4)}, s{S_MG} offen sc1',
            f'buffer_store_dwordx4 {vr(memf(1),4)}, v{V_A7}, {sr(S_WS,4)}, s{S_MG} offen offset:1024 sc1']
    vs = CFG['vs']
    pos = [(w if vs > 2 else 0) + vs * i for i in range(8)]
    f2 = {g: [x] for g, x in zip(pos, wl) if g < 7}
    f2.setdefault(5, []).append(pubs[0])
    f2.setdefault(6, []).append(pubs[1])
    LFW, LFB = o.new('Lfw'), o.new('Lfb')
    def chk():
        if CFG['flags']:
            o(f's_bitcmp1_b64 {sr(S_FM,2)}, s{S_STEP}')
            o(f's_cbranch_scc0 {LFW}')
            o.label(LFB)
    poll_and_head(o, w, exit_label, [], f2, stamps, early, chk, CFG['dBm'])
    o('s_waitcnt lgkmcnt(0)')
    D = [memf(0), memf(1)]
    ex = {}
    ex[5] = [zero_ds(D[0])]
    ex[6] = [zero_ds(D[1])]
    if CFG['flags']:
        ex[31] = [f'v_lshrrev_b32 v{V_TMP+1}, 2, v{V_L16}', f'buffer_load_dword v{V_JUNK}, v{V_TMP+1}, {sr(S_WS,4)}, s{S_FA} offen sc1']
    for g, x in zip(pos, wl):
        if g >= 7:
            ex.setdefault(g - 7, []).append(x)
    sal = [f's_add_u32 s{S_M0}, s{S_M0}, {SBS}', f's_add_u32 s{S_M1}, s{S_M1}, {SBS}', f's_add_u32 s{S_STEP}, s{S_STEP}, 1', f's_add_u32 s{S_MG}, s{S_MG}, {SCS}']
    for i, v in enumerate(sal):
        ex.setdefault(i, []).append(v)
    main, fill = tile_phase(ex)
    if CFG.get('bslow'):
        for g in range(35):
            fill.setdefault(g, []).append(f's_nop {CFG["bslow"]}')
    if CFG.get('bskip'):
        main = ['s_nop 3'] * 35
    merge(o, main, fill)
    o('s_nop 7')
    for p in post(6):
        o(p)
    o(f'ds_read_b128 {vr(ZM[0],4)}, v{V_TR}')
    o(f'ds_read_b128 {vr(ZM[1],4)}, v{V_TR} offset:224')
    P = memf(2)
    def p_issue():
        o(f'buffer_load_dwordx4 {vr(P,4)}, v{V_L16}, {sr(S_WS,4)}, s{S_PB} offen sc1')
        o(f'buffer_load_dwordx4 {vr(P+4,4)}, v{V_L16}, {sr(S_WS,4)}, s{S_PB} offen offset:1024 sc1')
        o(f'buffer_load_dwordx4 {vr(P+8,4)}, v{V_A2}, {sr(S_WS,4)}, s{S_PB} offen offset:2048 sc1')
    o(f's_add_u32 s{S_Z}, s{S_Z}, {WBS}')
    o(f's_add_u32 s{S_Z+1}, s{S_Z+1}, {WBS}')
    o('s_waitcnt lgkmcnt(0)')
    stamp(o, 1, stamps)
    if CFG.get('steplog'):
        o(f's_memtime s[78:79]\ns_waitcnt vmcnt(0)\ns_memtime s[76:77]\ns_waitcnt lgkmcnt(0)\ns_sub_u32 s78, s76, s78\ns_mov_b32 m0, s{S_STEP}\ns_nop 0\nv_writelane_b32 v0, s78, m0')
    pause(o, CFG['gapB'])
    trace(o, True)
    zs = [z for t in range(7) for z in zero4(acc(t))]
    def zz(n):
        for _ in range(n):
            if zs:
                o(zs.pop(0))
                o(f's_nop {CFG["zn"]}')
    zz(28 - CFG['spP'] - CFG['zb'])
    p_issue()
    zz(CFG['spP'])
    p_issue()
    zz(28)
    LP, OK = o.new('Lpp'), o.new('Lok')
    T0, T1 = V_TMP, V_TMP + 1
    o(f's_branch {OK}')
    o.label(LP)
    if CFG['mask']:
        o('s_mov_b64 exec, vcc')
    p_issue()
    if CFG['mask']:
        o('s_mov_b64 exec, -1')
    o(f's_sub_u32 s{S_BUD}, s{S_BUD}, 1')
    o(f's_cbranch_scc1 {exit_label}')
    sp = CFG['specB']
    if sp:
        o('s_nop 2')
        for z in zero4(D[0]):
            o(z)
    o.label(OK)
    dq = 3 * (CFG['dP'] - 1)
    o(f's_waitcnt vmcnt({dq+2})')
    o(f'v_or3_b32 v{T0}, v{P}, v{P+1}, v{P+2}')
    o(f's_waitcnt vmcnt({dq+1})')
    o(f'v_or3_b32 v{T1}, v{P+4}, v{P+5}, v{P+6}')
    o(f'v_or3_b32 v{T0}, v{T0}, v{P+3}, v{P+7}')
    if sp: o(SM(D[0], P, vr(Wr(0, 0), 8)))
    o(f's_waitcnt vmcnt({dq})')
    trace(o)
    stamp(o, 2, stamps)
    o(f'v_or3_b32 v{T1}, v{T1}, v{P+8}, v{P+9}')
    o(f'v_or3_b32 v{T0}, v{T0}, v{P+10}, v{P+11}')
    if sp: o(SM(D[0], P + 4, vr(Wr(1, 0), 8)))
    o(f'v_bitop3_b32 v{T0}, v{T0}, v{T1}, v{V_A4} bitop3:0xa8')
    o(f'v_cmp_ne_u32 vcc, 0, v{T0}')
    if sp: o(SM(D[0], P + 8, vr(ZM[0], 8)))
    o(f's_cbranch_vccnz {LP}')
    if not sp:
        o(SM(D[0], P, vr(Wr(0, 0), 8)))
        o(SM(D[0], P + 4, vr(Wr(1, 0), 8)))
        o(SM(D[0], P + 8, vr(ZM[0], 8)))
    o(SM(D[1], P, vr(Wr(0, 1), 8)))
    o(SM(D[1], P + 4, vr(Wr(1, 1), 8)))
    o(SM(D[1], P + 8, vr(ZM[1], 8)))
    stamp(o, 7, stamps)
    Y = V_XK if not CFG.get('now') else memf(2)
    o(f'v_add_f32 v{Y}, v{D[0]}, v{D[0]+2}')
    o(f'v_add_f32 v{Y+2}, v{D[0]+1}, v{D[0]+3}')
    o(f's_cmp_eq_u32 s{S_MODE}, 1')
    o('s_nop 4')
    o(f'v_add_f32 v{Y+1}, v{D[1]}, v{D[1]+2}')
    o(f'v_add_f32 v{Y+3}, v{D[1]+1}, v{D[1]+3}')
    if w == 0:
        o(f'ds_write_b64 v{V_A3}, {vr(Y+2,2)} offset:{L_SP + 2048}')
    elif w == 1:
        o(f'ds_write_b64 v{V_A3}, {vr(Y,2)} offset:{L_SP + 512}')
    else:
        o(f'ds_write_b64 v{V_A3}, {vr(Y,2)} offset:{L_SP + 512*w}')
        o(f'ds_write_b64 v{V_A3}, {vr(Y+2,2)} offset:{L_SP + 2048 + 512*w}')
    o('s_waitcnt lgkmcnt(0)')
    stamp(o, 8, stamps)
    o('s_barrier')
    stamp(o, 9, stamps)
    L1, L2 = o.new('Ls'), o.new('Ls')
    if w < 2:
        R = Y + 4
        own = Y + 2 * w
        srcs = [x for x in range(4) if x != w]
        for i, sw in enumerate(srcs):
            o(f'ds_read_b64 {vr(R+2*i,2)}, v{V_A3} offset:{L_SP + 2048*w + 512*sw}')
        for i in range(3):
            o('s_waitcnt lgkmcnt(%d)' % (0 if stamps else 2 - i))
            o(f'v_pk_add_f32 {vr(own,2)}, {vr(own,2)}, {vr(R+2*i,2)}')
        o(f'v_cvt_pk_bf16_f32 v{V_KEEP}, v{own}, v{own+1}')
        o(f'v_min_u32 v{V_KEEP}, 0xfffffffe, v{V_KEEP}')
        o(f's_cbranch_scc1 {L1}')
        o(f'buffer_store_dword v{V_KEEP}, v{V_A5}, {sr(S_WS,4)}, s{S_MO} offen')
        o.label(L2)
    else:
        pause(o, 6)
    stamp(o, 3, stamps)
    LAST = o.new('Llast')
    if CFG['flags']:
        o(f'v_cmp_ne_u32 {sr(S_FM,2)}, 0, v{V_JUNK}')
    o(f's_cmp_ge_u32 s{S_STEP}, {nsteps}')
    o(f's_cbranch_scc1 {LAST}')
    o(f's_add_u32 s{S_MO}, s{S_MO}, {SBS}')
    o(f's_add_u32 s{S_PB}, s{S_PB}, {SBS}')
    pause(o, CFG['gapB2'])
    mem_issue(o)
    for _ in range(CFG['dBm'] - 1):
        pause(o, CFG['sp'])
        mem_issue(o)
    o(f's_branch {LOOP}')
    if w < 2:
        o.label(L1)
        o(f'buffer_store_dword v{V_KEEP}, v{V_A5}, {sr(S_WS,4)}, s{S_MO} offen sc1')
        o(f's_branch {L2}')
    if CFG['flags']:
        o.label(LFW)
        flags_reload(o)
        o(f's_bitcmp1_b64 {sr(S_FM,2)}, s{S_STEP}')
        o(f's_cbranch_scc1 {LFB}')
        o(f's_sub_u32 s{S_BUD}, s{S_BUD}, 1')
        o(f's_cbranch_scc1 {exit_label}')
        o('s_sleep 2')
        o(f's_branch {LFW}')
    o.label(LAST)
    if w < 2:
        o(pub)
    o(f's_branch {exit_label}')

def team_common_setup(o, w):
    kk = [(j + 2 * w) % 7 for j in range(7)]
    o(f'''
    v_lshlrev_b32 v{V_L16}, 4, v0
    v_mov_b32 v{V_IDX}, 0x44444444
    v_mov_b32 v{V_TMP}, 0xeeeeeeee
    v_and_b32 v{V_TMP+1}, 2, v0
    v_cmp_ne_u32 vcc, 0, v{V_TMP+1}
    s_nop 1
    v_cndmask_b32 v{V_IDX}, v{V_IDX}, v{V_TMP}, vcc
    v_mov_b32 v{V_TMP}, 0
    v_lshlrev_b32 v{V_TMP+1}, 2, v0
    ds_write_b32 v{V_TMP+1}, v{V_TMP} offset:{L_ZERO + 256*w}
    s_mov_b32 s{S_STEP}, 0
    s_mov_b64 {sr(S_FM,2)}, 0
    s_and_b32 s{S_FA}, s{S_ROLE}, 15
    s_lshl_b32 s{S_FA}, s{S_FA}, 8
    s_add_u32 s{S_FA}, s{S_FA}, {OFF_FL}
    s_mov_b32 s{S_M0}, {OFF_MEMI + kk[0]*1024}
    s_mov_b32 s{S_M1}, {OFF_MEMI + kk[1]*1024}
    ''')

def gen_team_body(o, exit_label, nsteps=63, stamps=False):
    labs = {}
    for role in 'AB':
        for w in range(4):
            labs[role, w] = o.new(f'Lteam{role}{w}')
    LB = o.new('LteamB')
    o(f's_cmp_ge_u32 s{S_ROLE}, 16')
    o(f's_cbranch_scc1 {LB}')
    for role in 'AB':
        if role == 'B':
            o.label(LB)
        for w in range(1, 4):
            o(f's_cmp_eq_u32 s{S_W}, {w}')
            o(f's_cbranch_scc1 {labs[role,w]}')
        o(f's_branch {labs[role,0]}')
    for role in 'AB':
        for w in range(4):
            o.raw('.p2align 6')
            o.label(labs[role, w])
            team_common_setup(o, w)
            if role == 'A':
                gen_A(o, w, nsteps, stamps, exit_label)
            else:
                gen_B(o, w, nsteps, stamps, exit_label)
```

```python
from common import *

L_M, L_X = 57344, 143360
LDS_K1 = L_X + 17 * 912 + 128
MM = 'v_mfma_f32_16x16x32_bf16'
DIAG = False
CFG = dict(sc1=1, rot=1)

def fin(o):
    if CFG.get('slp'): o(f"s_sleep {CFG['slp']}")
    if DIAG:
        o(f'''
        s_waitcnt vmcnt(0)
        s_memrealtime s[74:75]
        s_lshl_b32 s3, s2, 2
        s_lshr_b32 s16, s16, 1
        s_add_u32 s3, s3, s16
        s_lshl_b32 s3, s3, 4
        s_add_u32 s3, s3, {OFF_END1 + 65536}
        v_mov_b32 v1, 0
        s_waitcnt lgkmcnt(0)
        v_mov_b32 v2, s72
        v_mov_b32 v3, s74
        v_mov_b32 v4, s76
        v_mov_b32 v5, s78
        buffer_store_dwordx4 v[2:5], v1, s[4:7], s3 offen
        ''')
    o('s_endpgm')

def mrow(o, d, t):
    o(f'''
    v_bfe_u32 v{d}, v0, 3, 1
    v_lshlrev_b32 v{d}, 4, v{d}
    v_bfe_u32 v{t}, v0, 1, 1
    v_lshl_add_u32 v{d}, v{t}, 3, v{d}
    v_bfe_u32 v{t}, v0, 2, 1
    v_lshl_add_u32 v{d}, v{t}, 2, v{d}
    v_and_b32 v{t}, 1, v0
    v_add_u32 v{d}, v{d}, v{t}
    ''')

def gen_prep(o, name):
    SC = ' sc1' if CFG['sc1'] else ''
    o.label(name)
    o(f'''
    s_cmp_ge_u32 s2, 256
    s_cbranch_scc1 {name}_end
    {'s_memrealtime s[72:73]' if DIAG else ''}
    s_load_dwordx2 s[4:5], s[0:1], {KA_WS}
    s_load_dwordx4 s[44:47], s[0:1], {KA_WQ}
    s_load_dwordx4 s[48:51], s[0:1], {KA_WV}
    s_load_dwordx2 s[56:57], s[0:1], {KA_MEM0}
    s_mov_b32 s58, 7168
    s_mov_b32 s59, 0x20000
    s_load_dwordx2 s[52:53], s[0:1], {KA_AX}
    s_load_dwordx2 s[60:61], s[0:1], {KA_GATE}
    v_lshrrev_b32 v1, 6, v0
    v_and_b32 v0, 63, v0
    v_readfirstlane_b32 s16, v1
    v_lshlrev_b32 v1, 4, v0                    ; l*16
    v_and_b32 v2, 15, v0                       ; n
    v_lshrrev_b32 v3, 4, v0                    ; q
    s_mov_b32 s6, {WS_BYTES}
    s_mov_b32 s7, 0x20000
    s_mov_b32 s10, {448*8192}
    s_mov_b32 s11, 0x20000
    s_mov_b32 s14, {448*8192}
    s_mov_b32 s15, 0x20000
    ''')
    o(f'''
    s_and_b32 s17, s2, 31                      ; matrix
    s_bfe_u32 s18, s2, 0x10005
    s_lshr_b32 s20, s2, 6
    s_and_b32 s19, s2, 7
    s_lshl_b32 s19, s19, 1
    s_lshr_b32 s21, s17, 3
    s_add_u32 s19, s19, s21
    s_and_b32 s19, s19, 15
    s_lshl_b32 s21, s19, 9
    v_lshrrev_b32 v4, 3, v0
    v_and_b32 v5, 7, v0
    v_xor_b32 v5, v5, v4
    v_lshlrev_b32 v5, 4, v5
    v_lshl_add_u32 v4, v4, 13, v5
    s_lshr_b32 s33, s2, 5
    s_lshl_b32 s33, s33, 4
    s_and_b32 s22, s2, 15
    s_add_u32 s33, s33, s22
    s_cmp_eq_u32 s16, 7
    s_cbranch_scc1 {name}_misc
    s_lshl_b32 s22, s16, 6
    v_add_u32 v5, s22, v0
    v_mul_u32_u24 v6, 4682, v5
    v_lshrrev_b32 v6, 16, v6
    v_mul_u32_u24 v7, 14, v6
    v_sub_u32 v5, v5, v7
    v_lshlrev_b32 v5, 4, v5
    v_mul_u32_u24 v6, 896, v6
    v_add_u32 v5, v5, v6
    s_mul_i32 s24, s18, 7
    s_add_u32 s24, s24, s16
    s_lshl_b32 s25, s24, 18
    s_add_u32 s25, s25, s21
    s_mul_i32 s26, s16, 12288
    s_add_u32 s26, s26, {L_M}
    s_waitcnt lgkmcnt(0)
    s_cmp_ge_u32 s17, 16
    s_cbranch_scc1 {name}_B
    ''')
    ACC, FA, FB = 32, 88, 128
    acc = lambda mt, t: ACC + (mt * 7 + t) * 4
    def stage_m(i):
        return ['\n'.join([f's_add_u32 m0, s{40+p}, {(i % 3)*4096}', f's_add_u32 s23, s{36+p}, {i*128}',
                           'buffer_load_dwordx4 v4, s[8:11], s23 offen lds']) for p in range(4)]
    def body(isB):
        def stage_n(i):
            return ['\n'.join([f's_add_u32 m0, s{(28, 34)[p]}, {i*14336}', f's_add_u32 s23, s{(27, 29)[p]}, {i*(57344 if isB else 128)}',
                               f'buffer_load_dwordx4 v{5 if isB else 4}, s[12:15], s23 offen lds']) for p in range(2)]
        if isB:
            o('s_mov_b32 s8, s48\ns_mov_b32 s9, s49\ns_mov_b32 s12, s50\ns_mov_b32 s13, s51')
            o(f'''
            s_mul_i32 s27, s19, 229376
            s_mul_i32 s22, s20, 224
            s_add_u32 s27, s27, s22
            s_lshl_b32 s28, s16, 10
            ''')
        else:
            o('s_mov_b32 s8, s44\ns_mov_b32 s9, s45\ns_mov_b32 s12, s46\ns_mov_b32 s13, s47')
            o(f'''
            s_mul_i32 s27, s20, 7
            s_add_u32 s27, s27, s16
            s_lshl_b32 s27, s27, 17
            s_add_u32 s27, s27, s21
            s_lshl_b32 s28, s16, 11
            ''')
        ds, dl = (28672, 7168) if isB else (65536, 1024)
        o(f'''
        s_add_u32 s29, s27, {ds}
        s_add_u32 s34, s28, {dl}
        s_cmp_eq_u32 s18, 1
        s_cselect_b32 s22, s29, s27
        s_cselect_b32 s29, s27, s29
        s_mov_b32 s27, s22
        s_cselect_b32 s22, s34, s28
        s_cselect_b32 s34, s28, s34
        s_mov_b32 s28, s22
        ''')
        o(stage_n(0)[0])
        for p in range(4):
            o(f's_add_u32 s22, s20, {p}\ns_and_b32 s22, s22, 3\ns_lshl_b32 s23, s22, 16\ns_add_u32 s{36+p}, s25, s23\ns_lshl_b32 s23, s22, 10\ns_add_u32 s{40+p}, s26, s23')
            o(stage_m(0)[p])
            if p == 1:
                o(stage_n(0)[1])
        LA = o.new('Larm')
        if not isB:
            o(f's_lshl_b32 s22, s2, 3\ns_add_u32 s22, s22, s16\ns_cmp_lg_u32 s22, {9*8}\ns_cbranch_scc1 {LA}')
            mem0_image(o, SC)
            o.label(LA)
        mrow(o, 6, 7)
        for beta in range(2):
            for ksp in range(2):
                d = 8 + 2 * beta + ksp
                o(f'''
                v_add_u32 v7, {2*beta}, v6
                v_add_u32 v{d}, {4*ksp}, v3
                v_xor_b32 v{d}, v{d}, v7
                v_and_b32 v{d}, 7, v{d}
                v_lshlrev_b32 v{d}, 4, v{d}
                v_lshl_add_u32 v{d}, v7, 7, v{d}
                v_add_u32 v{d}, s26, v{d}
                ''')
        if isB:
            o(f'''
            v_lshrrev_b32 v14, 2, v2
            v_lshl_add_u32 v14, v3, 3, v14
            v_mul_u32_u24 v14, 224, v14
            v_and_b32 v7, 3, v0
            v_lshl_add_u32 v14, v7, 3, v14
            s_mul_i32 s22, s20, 112
            s_and_b32 s30, s19, 3
            s_mul_i32 s30, s30, 28
            ''')
            for t in range(7):
                d = 20 + t
                o(f'''
                v_add_u32 v16, s22, v2
                v_add_u32 v16, {16*t}, v16                 ; c
                v_mul_u32_u24 v17, 2341, v16
                v_lshrrev_b32 v17, 16, v17                 ; b = c / 28
                v_mul_u32_u24 v18, 28, v17
                v_sub_u32 v16, v16, v18                    ; cl
                v_and_b32 v18, 1, v16
                v_mul_u32_u24 v18, 14, v18
                v_lshrrev_b32 v16, 1, v16
                v_add3_u32 v16, v16, v18, s30              ; p
                v_mul_u32_u24 v{d}, {HSZ}, v17
                v_lshrrev_b32 v18, 4, v16
                v_mul_u32_u24 v18, 14336, v18
                v_add_u32 v{d}, v{d}, v18
                v_and_b32 v16, 15, v16
                v_lshl_add_u32 v16, v3, 4, v16
                v_lshl_add_u32 v{d}, v16, 4, v{d}
                ''')
            o(f'''
            s_lshr_b32 s31, s19, 2
            s_mul_i32 s31, s31, {7*14336}
            s_add_u32 s31, s31, {OFF_BT}
            ''')
        else:
            for ksp in range(2):
                d = 14 + ksp
                o(f'''
                v_add_u32 v{d}, {4*ksp}, v3
                v_xor_b32 v{d}, v{d}, v2
                v_and_b32 v{d}, 7, v{d}
                v_lshlrev_b32 v{d}, 4, v{d}
                v_lshl_add_u32 v{d}, v2, 7, v{d}
                ''')
            o(f'''
            s_mov_b32 s30, {f32(LOG2E/16)}
            s_mul_i32 s31, s19, {HSZ}
            s_mul_i32 s22, s20, {7*14336}
            s_add_u32 s31, s31, s22
            s_add_u32 s31, s31, {OFF_AF}
            ''')
        o('s_lshl_b32 s22, s24, 10\ns_add_u32 s31, s31, s22')
        def reads(i):
            fa, fb = FA + 16 * (i & 1), FB + 56 * (i & 1)
            g = [[]]
            for ksp in range(2):
                for mt in range(2):
                    g[0].append(f'ds_read_b128 {vr(fa+8*ksp+4*mt,4)}, v{8+2*mt+ksp} offset:{(i % 3)*4096}')
            for ksp in range(2):
                for t in range(7):
                    d = fb + 28 * ksp + 4 * t
                    if isB:
                        g.append([f'ds_read_b64_tr_b16 {vr(d+2*rd,2)}, v14 offset:{i*14336 + (32*ksp+4*rd)*224 + 32*t}' for rd in range(2)])
                    else:
                        g.append([f'ds_read_b128 {vr(d,4)}, v{14+ksp} offset:{i*14336 + t*2048}'])
            return g
        o('s_waitcnt vmcnt(0)\ns_barrier')
        if DIAG: o('s_memrealtime s[76:77]\ns_memtime s[66:67]\ns_waitcnt lgkmcnt(0)')
        for g in reads(0):
            for r in g:
                o(r)
        for i in range(4):
            fa, fb = FA + 16 * (i & 1), FB + 56 * (i & 1)
            nxt, dma = [], []
            if i < 3:
                o('s_waitcnt lgkmcnt(0)\ns_barrier')
                nxt = reads(i + 1)
            else:
                o('s_waitcnt lgkmcnt(0)')
            if nxt:
                for r in nxt[0]:
                    o(r)
            for k in range(14):
                ksp, t = divmod(k, 7)
                for mt in range(2):
                    c = '0' if (i == 0 and ksp == 0) else vr(acc(mt, t), 4)
                    o(f'{MM} {vr(acc(mt,t),4)}, {vr(fa+8*ksp+4*mt,4)}, {vr(fb+28*ksp+4*t,4)}, {c}')
                    if mt == 0 and nxt:
                        for r in nxt[1 + k]:
                            o(r)
                if k % 2 == 1 and k // 2 < len(dma):
                    o(dma[k // 2])
        if DIAG: o('s_memrealtime s[78:79]\ns_memtime s[68:69]\ns_waitcnt lgkmcnt(0)' + ('\ns_sub_u32 s72, s68, s66' if CFG.get('clk') else ''))
        o('s_nop 7')
        for t in range(7):
            a, b = acc(0, t), acc(1, t)
            if not isB:
                for r in range(4):
                    o(f'v_mul_f32 v{a+r}, s30, v{a+r}')
                    o(f'v_mul_f32 v{b+r}, s30, v{b+r}')
            o(f'v_cvt_pk_bf16_f32 v{a}, v{a}, v{a+1}')
            o(f'v_cvt_pk_bf16_f32 v{a+1}, v{a+2}, v{a+3}')
            o(f'v_cvt_pk_bf16_f32 v{a+2}, v{b}, v{b+1}')
            o(f'v_cvt_pk_bf16_f32 v{a+3}, v{b+2}, v{b+3}')
            if isB:
                o(f'buffer_store_dwordx4 {vr(a,4)}, v{20+t}, s[4:7], s31 offen')
            else:
                o(f'buffer_store_dwordx4 {vr(a,4)}, v1, s[4:7], s31 offen' + (SC if CFG.get('asc1', 1) else ''))
                o(f's_add_u32 s31, s31, 14336')
        if DIAG:
            o(f's_cmp_eq_u32 s16, 6\ns_cbranch_scc1 {name}_end')
        fin(o)
    body(False)
    o.label(name + '_B')
    body(True)
    o.label(name + '_misc')
    if CFG.get('warm'):
        o(f'''
        s_getpc_b64 s[36:37]
        {name}_pc:
        s_sub_u32 s36, s36, {name}_pc-{name}
        s_subb_u32 s37, s37, 0
        v_lshlrev_b32 v250, 7, v0
        global_load_dword v251, v250, s[36:37]
        v_add_u32 v250, 8192, v250
        v_min_u32 v250, {name}_end-{name}, v250
        global_load_dword v252, v250, s[36:37]
        ''')
    o(f'''
    s_mov_b32 s54, {2048*896}
    s_mov_b32 s55, 0x20000
    s_mov_b32 s62, 896
    s_mov_b32 s63, 0x20000
    s_mul_i32 s35, s33, 14336
    s_waitcnt lgkmcnt(0)
    s_cmp_ge_u32 s17, 16
    s_cselect_b32 s8, s48, s44
    s_cselect_b32 s9, s49, s45
    s_cselect_b32 s12, s50, s46
    s_cselect_b32 s13, s51, s47
    s_cselect_b64 vcc, -1, 0
    s_bitcmp1_b32 s2, 4
    s_cbranch_scc1 {name}_nox
    s_mov_b32 exec_hi, 0x00ffffff
    ''')
    for i in range(16):
        o(f's_mov_b32 m0, {L_X + i*912}')
        o(f's_add_u32 s22, s35, {i*896}')
        o(f'buffer_load_dwordx4 v1, s[52:55], s22 offen lds')
    o(f's_mov_b32 m0, {L_X + 16*912}')
    o('s_nop 0')
    o('buffer_load_dwordx4 v1, s[60:63], 0 offen lds')
    o('s_mov_b64 exec, -1')
    o.label(name + '_nox')
    for w in range(7):
        o(f'''
        v_add_u32 v5, {64*w}, v0
        v_mul_u32_u24 v6, 4682, v5
        v_lshrrev_b32 v6, 16, v6
        v_mul_u32_u24 v7, 14, v6
        v_sub_u32 v5, v5, v7
        v_lshlrev_b32 v5, 4, v5
        v_mul_u32_u24 v6, 896, v6
        v_add_u32 v5, v5, v6
        v_add_u32 v6, {w*131072}, v4
        v_cndmask_b32 v{20+w}, v6, v5, vcc
        ''')
    o(f'''
    s_mul_i32 s27, s19, 229376
    s_mul_i32 s22, s20, 224
    s_add_u32 s27, s27, s22
    s_mul_i32 s22, s20, {7*131072}
    s_add_u32 s22, s22, s21
    s_mov_b32 s23, 65536
    s_mov_b32 s24, 1024
    s_mov_b32 s30, 2048
    s_mov_b32 s31, 128
    s_cmp_ge_u32 s17, 16
    s_cselect_b32 s27, s27, s22
    s_cselect_b32 s23, 28672, s23
    s_cselect_b32 s24, 7168, s24
    s_cselect_b32 s30, 1024, s30
    s_cselect_b32 s31, 57344, s31
    s_add_u32 s29, s27, s23
    s_cmp_eq_u32 s18, 1
    s_cselect_b32 s22, s29, s27
    s_cselect_b32 s29, s27, s29
    s_mov_b32 s27, s22
    s_cselect_b32 s28, s24, 0
    s_cselect_b32 s34, 0, s24
    s_mul_i32 s25, s18, {7*262144}
    s_add_u32 s25, s25, s21
    ''')
    for p in range(4):
        o(f's_add_u32 s22, s20, {p}\ns_and_b32 s22, s22, 3\ns_lshl_b32 s23, s22, 16\ns_add_u32 s{36+p}, s25, s23\ns_lshl_b32 s{40+p}, s22, 10')
    def ld_n(i, p):
        o(f's_add_u32 s{(27, 29)[p]}, s{(27, 29)[p]}, s31')
        o(f's_add_u32 s22, s{(28, 34)[p]}, {i*14336}')
        for w in range(7):
            o('s_mov_b32 m0, s22')
            o('s_add_u32 s22, s22, s30')
            o(f'buffer_load_dwordx4 v{20+w}, s[12:15], s{(27, 29)[p]} offen lds')
    def ld_m(i, p):
        for w in range(7):
            o(f's_add_u32 m0, s{40+p}, {L_M + w*12288 + (i % 3)*4096}')
            o(f's_add_u32 s23, s{36+p}, {w*262144 + i*128}')
            o('buffer_load_dwordx4 v4, s[8:11], s23 offen lds')
    def half(i, h):
        ld_n(i, h); ld_m(i, 2 * h); ld_m(i, 2 * h + 1)
    half(1, 0); half(1, 1)
    o('s_barrier\ns_waitcnt vmcnt(42)')
    half(2, 0)
    o('s_waitcnt vmcnt(21)\ns_barrier')
    half(2, 1); half(3, 0)
    o('s_waitcnt vmcnt(21)\ns_barrier')
    half(3, 1)
    o('s_waitcnt vmcnt(0)\ns_barrier')
    GW, XR = 32, 96
    o(f'''
    s_bitcmp1_b32 s2, 4
    s_cbranch_scc1 {name}_arm
    s_mov_b32 s17, s33
    s_mov_b32 s18, s35
    v_lshlrev_b32 v4, 4, v3
    v_add_u32 v4, {L_X + 16*912}, v4
    v_mul_u32_u24 v5, 912, v2
    v_lshl_add_u32 v5, v3, 4, v5
    v_add_u32 v5, {L_X}, v5
    v_and_b32 v6, 8, v0
    v_and_b32 v7, 1, v0
    v_lshl_add_u32 v6, v7, 2, v6
    v_bfe_u32 v7, v0, 2, 1
    v_lshl_add_u32 v6, v7, 1, v6
    v_bfe_u32 v7, v0, 1, 1
    v_add_u32 v6, v6, v7
    v_mul_u32_u24 v6, 912, v6
    v_lshrrev_b32 v7, 1, v3
    v_lshl_add_u32 v6, v7, 5, v6
    v_and_b32 v7, 1, v3
    v_lshl_add_u32 v6, v7, 3, v6
    v_add_u32 v6, {L_X}, v6
    s_lshr_b32 s20, s17, 1
    s_mul_i32 s20, s20, {SBS}
    s_and_b32 s21, s17, 1
    s_mul_i32 s21, s21, 14336
    s_add_u32 s20, s20, s21
    s_add_u32 s20, s20, {OFF_XN}
    s_add_u32 s21, s18, {OFF_XP}
    s_waitcnt vmcnt(0)
    ''')
    for ks in range(14):
        o(f'ds_read_b128 {vr(XR+4*ks,4)}, v5 offset:{ks*64}')
    XQ = XR + 56
    for ks in range(14):
        o(f'ds_read_b128 {vr(GW+4*ks,4)}, v4 offset:{ks*64}')
    o('s_waitcnt lgkmcnt(0)')
    for ks in range(14):
        o(f'ds_read2_b32 {vr(XQ+4*ks,2)}, v6 offset0:{16*ks} offset1:{16*ks+4}')
        o(f'ds_read2_b32 {vr(XQ+4*ks+2,2)}, v6 offset0:{16*ks+1} offset1:{16*ks+5}')
        o(f'buffer_store_dwordx4 {vr(XR+4*ks,4)}, v1, s[4:7], s20 offen offset:{(ks&3)*1024}{SC}')
        if ks & 3 == 3:
            o('s_add_u32 s20, s20, 4096')
    o('v_mov_b32 v8, 0\nv_mov_b32 v9, 0')
    for ks in range(14):
        for r in range(4):
            o(f'v_dot2_f32_bf16 v{8+(r&1)}, v{XR+4*ks+r}, v{GW+4*ks+r}, v{8+(r&1)}')
    o('s_waitcnt lgkmcnt(0)')
    for ks in range(14):
        o(f'buffer_store_dwordx4 {vr(XQ+4*ks,4)}, v1, s[4:7], s21 offen offset:{(ks&3)*1024}{SC}')
        if ks & 3 == 3:
            o('s_add_u32 s21, s21, 4096')
    o(f'''
    v_add_f32 v8, v8, v9
    v_xor_b32 v10, 16, v0
    v_lshlrev_b32 v10, 2, v10
    ds_bpermute_b32 v9, v10, v8
    v_xor_b32 v10, 32, v0
    v_lshlrev_b32 v10, 2, v10
    s_waitcnt lgkmcnt(0)
    v_add_f32 v8, v8, v9
    ds_bpermute_b32 v9, v10, v8
    s_waitcnt lgkmcnt(0)
    v_add_f32 v8, v8, v9
    v_mul_f32 v8, {f32(-LOG2E)}, v8
    v_exp_f32 v8, v8
    s_nop 0
    v_add_f32 v8, 1.0, v8
    v_rcp_f32 v8, v8
    v_lshlrev_b32 v10, 2, v2
    s_lshl_b32 s22, s17, 6
    s_add_u32 s22, s22, {OFF_G}
    buffer_store_dword v8, v10, s[4:7], s22 offen
    ''')
    fin(o)
    o.label(name + '_arm')
    arm(o, name, SC)
    fin(o)
    o.label(name + '_end')
    o('s_endpgm')

def arm(o, name, SC):
    o(f'''
    s_lshr_b32 s64, s33, 1                     ; step
    s_and_b32 s65, s33, 1
    s_mul_i32 s65, s65, 33
    s_add_u32 s71, s65, 33
    s_min_u32 s71, s71, 65
    s_mul_i32 s66, s64, {SBS}
    s_add_u32 s66, s66, {OFF_SB}
    s_mul_i32 s67, s64, {SCS}
    s_add_u32 s67, s67, {OFF_SC - 18*1024}
    v_mov_b32 v240, -1
    v_mov_b32 v241, -1
    v_mov_b32 v242, -1
    v_mov_b32 v243, -1
    {name}_a1:
    s_cmp_lt_u32 s65, 18
    s_cselect_b32 s69, s66, s67
    s_cselect_b32 s70, 0, 18
    s_sub_u32 s70, s65, s70
    s_lshl_b32 s68, s64, 3
    s_add_u32 s70, s70, s68
    s_cmp_lt_u32 s70, 7
    s_cbranch_scc1 {name}_a4
    s_lshl_b32 s68, s65, 10
    s_add_u32 s69, s69, s68
    buffer_store_dwordx4 v[240:243], v1, s[4:7], s69 offen{SC}
    {name}_a4:
    s_add_u32 s65, s65, 1
    s_cmp_lt_u32 s65, s71
    s_cbranch_scc1 {name}_a1
    s_cmp_eq_u32 s33, 127
    s_cbranch_scc0 {name}_a2
    v_mov_b32 v244, 0
    v_mov_b32 v245, 0
    v_mov_b32 v246, 0
    v_mov_b32 v247, 0
    s_mov_b32 s69, {OFF_FL}
    s_mov_b32 s70, {OFF_FL + 4096}
    ''')
    for i in range(8):
        o(f'buffer_store_dwordx4 v[244:247], v1, s[4:7], s{69+(i>>2)} offen offset:{(i&3)*1024}{SC}')
    o.label(name + '_a2')

def mem0_image(o, SC):
    o(f'''
    v_lshrrev_b32 v238, 2, v2
    v_lshlrev_b32 v238, 1, v238
    v_and_b32 v239, 1, v0
    v_add_u32 v238, v238, v239
    v_mul_u32_u24 v238, 896, v238
    v_lshl_add_u32 v238, v3, 5, v238
    v_bfe_u32 v239, v0, 1, 1
    v_lshl_add_u32 v238, v239, 4, v238
    ''')
    for kk in range(7):
        o(f'buffer_load_dwordx4 {vr(124+4*kk,4)}, v238, s[56:59], 0 offen offset:{kk*128}')
    o(f'''
    s_mov_b32 s66, {OFF_MEMI}
    s_mov_b32 s67, {OFF_MEMI + 4096}
    s_mov_b32 s68, {OFF_MEMG}
    s_mov_b32 s69, {OFF_MEMG + 4096}
    s_waitcnt vmcnt(0)
    ''')
    for r in range(28):
        o(f'v_min_u32 v{124+r}, 0xfffffffe, v{124+r}')
    for kk in range(7):
        o(f'buffer_store_dwordx4 {vr(124+4*kk,4)}, v1, s[4:7], s{66+(kk>>2)} offen offset:{(kk&3)*1024}{SC}')
        o(f'buffer_store_dwordx4 {vr(124+4*kk,4)}, v1, s[4:7], s{68+(kk>>2)} offen offset:{(kk&3)*1024}{SC}')

def gen_hf(o):
    LP = o.new('Lphi')
    mrow(o, 6, 7)
    o(f'''
    v_mul_u32_u24 v6, 2688, v6
    v_lshl_add_u32 v6, v3, 4, v6
    s_mul_i32 s22, s33, {224*2688}
    s_mul_i32 s23, s35, 896
    s_add_u32 s22, s22, s23
    s_mul_i32 s23, s34, 56
    s_add_u32 s22, s22, s23
    ''')
    AFR = 32
    for k7 in range(7):
        for beta in range(2):
            d = AFR + (k7 * 2 + beta) * 4
            o(f's_add_u32 s23, s22, {(32*k7 + 2*beta)*2688}')
            o(f'buffer_load_dwordx2 {vr(d,2)}, v6, s[52:55], s23 offen')
            o(f'buffer_load_dwordx2 {vr(d+2,2)}, v6, s[52:55], s23 offen offset:8')
    PH, PT = 96, 104
    o(f'''
    v_mul_u32_u24 v7, {8*56}, v3
    v_lshl_add_u32 v7, v2, 1, v7
    v_mov_b32 v9, {OOB}
    v_cmp_gt_u32 vcc, 12, v2
    s_mul_i32 s23, s34, 1568
    s_nop 0
    v_cndmask_b32 v8, v9, v7, vcc
    v_cmp_gt_u32 vcc, 3, v3
    s_nop 1
    v_cndmask_b32 v10, v9, v7, vcc             ; e >= 4: q < 3
    v_cndmask_b32 v11, v9, v8, vcc
    ''')
    for nt in range(2):
        for e in range(8):
            va = (7, 8, 10, 11)[nt + 2 * (e >= 4)]
            o(f'buffer_load_ushort v{PT+8*nt+e}, v{va}, s[56:59], s23 offen offset:{e*56 + nt*32}')
    o(f'''
    s_waitcnt vmcnt(0)
    s_mov_b32 s30, {f32(LOG2E)}
    s_cmp_lg_u32 s35, 2
    s_cbranch_scc1 {LP}
    s_mov_b32 s30, 1.0
    v_lshlrev_b32 v7, 3, v3
    v_sub_u32 v7, v2, v7                       ; n - 8q
    v_mov_b32 v8, 0x3f80
    v_cmp_gt_u32 vcc, 12, v2
    s_nop 1
    v_cndmask_b32 v9, 0, v8, vcc
    ''')
    for nt in range(2):
        for e in range(8):
            o(f'v_cmp_eq_u32 vcc, {e - 16*nt}, v7')
            o('s_nop 1')
            o(f'v_cndmask_b32 v{PT+8*nt+e}, 0, v{8+nt}, vcc')
    o.label(LP)
    for nt in range(2):
        for r in range(4):
            o(f'v_lshl_or_b32 v{PH+4*nt+r}, v{PT+8*nt+2*r+1}, 16, v{PT+8*nt+2*r}')
    o(f'''
    s_mul_i32 s31, s34, {HFH}
    s_mul_i32 s23, s35, {2*14336}
    s_add_u32 s31, s31, s23
    s_mul_i32 s23, s33, 7168
    s_add_u32 s31, s31, s23
    s_add_u32 s31, s31, {OFF_HF}
    s_add_u32 s32, s31, 14336
    ''')
    D = 124
    for k7 in range(7):
        for nt in range(2):
            for beta in range(2):
                o(f'{MM} {vr(D+16*k7+8*nt+4*beta,4)}, {vr(AFR+(k7*2+beta)*4,4)}, {vr(PH+4*nt,4)}, 0')
    o('s_nop 7')
    for k7 in range(7):
        for nt in range(2):
            a = D + 16 * k7 + 8 * nt
            for r in range(8):
                o(f'v_mul_f32 v{a+r}, s30, v{a+r}')
            for r in range(4):
                o(f'v_cvt_pk_bf16_f32 v{a+r}, v{a+2*r}, v{a+2*r+1}')
            o(f'buffer_store_dwordx4 {vr(a,4)}, v1, s[4:7], s{31+nt} offen offset:{(k7&3)*1024} sc1')
        if k7 == 3:
            o('s_add_u32 s31, s31, 4096\ns_add_u32 s32, s32, 4096')
```

```python
from common import *

S_WS, S_DBG = 4, 12
S_W, S_ROLE, S_STEP, S_BUD = 16, 17, 18, 19
S_M0, S_M1 = 20, 21
S_T0, S_T1, S_T2, S_T3 = 22, 23, 24, 25
S_PB = 26
S_X0, S_X1 = 27, 28
S_Z = 30
S_MO = 35
S_MG = 36
S_MODE = 37
S_TOUCH = 38
S_ZP = 39
S_FM = 82
S_HU = 34
S_FA = 84
S_ST = 40

V_L16, V_IDX = 1, 2
V_TW, V_TR = 3, 4
V_A0, V_A1, V_A2, V_A3, V_A4, V_A5, V_A6, V_A7 = 5, 6, 7, 8, 9, 10, 11, 12
V_TMP = 13
V_MEMF = 16
V_ACC = 44
V_XK = 72
V_MK = 104
V_WT = 120

L_MEMS = 0
L_TIMG = 7424
L_SP = L_TIMG + 8192 + 256
L_ZERO = L_SP + 8192
L_END = L_ZERO + 1024

CFG = dict(nops=1, nwB=1, nbarB=9, prog=0, pq=4, pbar=1, pre=0, hu=0, hd=4, hs=12, hgA=20, hp=1, vs=2, w1g=2, nbar=10, split=0, nb=4, nw=4, sq=3, zn=1, za=4, zb=4, trk=8, wo0=0, wo1=1, wo2=1, wo3=0, ne=5, lg0=12, lgs=6, dP=2, spP=10, spec=1, specB=1, mask=0, dA=2, dBm=1, flags=0, diag=1, gapA=42, gapB=6, gapB2=13, sp=6, ahead=1, f1=3, f2=3, tw=1, tl=56, xg=(2, 6, 10, 14, 18))

def wreg(t, j):
    u = t * 7 + j
    return ar(8 * u, 8) if u < 32 else vr(V_WT + 8 * (u - 32), 8)
def wreg_half(t, j, hf):
    u = t * 7 + j
    return ar(8 * u + 4 * hf, 4) if u < 32 else vr(V_WT + 8 * (u - 32) + 4 * hf, 4)
def acc(t): return V_ACC + 4 * t
def memf(j): return V_MEMF + 4 * j
def SM(d, a, b): return f'v_smfmac_f32_16x16x64_bf16 {vr(d,4)}, {vr(a,4)}, {b}, v{V_IDX}'
def M(t, j): return SM(acc(t), memf(j), wreg(t, j))
def zero(r): return f'v_mov_b32 v{r}, 0'
def zero4(a): return [zero(a + i) for i in range(4)]

def zero_ds(a): return f'ds_read_b128 {vr(a,4)}, v{V_L16} offset:{L_ZERO}'
def pause(o, n, dyn=None):
    if dyn is not None and CFG.get('dyn'):
        L = o.new('Lpz')
        o(f's_mov_b32 s{S_T1}, s{dyn}')
        o.raw('.p2align 4')
        o(f'{L}:\ns_sub_u32 s{S_T1}, s{S_T1}, 1\ns_cbranch_scc0 {L}')
    if CFG.get('nops'):
        for _ in range(n // 4):
            o('s_nop 15')
    elif n >= 4:
        o(f's_sleep {n // 4}')
    if n % 4:
        o(f's_nop {4 * (n % 4) - 1}')

def post(t):
    a = acc(t)
    return [f'v_add_f32 v{a}, v{a}, v{a+2}', f'v_add_f32 v{a+1}, v{a+1}, v{a+3}',
            f'v_cvt_pk_bf16_f32 v{a}, v{a}, v{a+1}', f'ds_write_b32 v{V_TW}, v{a} offset:{t*256}']

def merge(o, main, fill):
    for i, m in enumerate(main):
        o(m)
        for f in fill.get(i, []):
            o(f)

LIGHT = None
MARK = False
VERIFY = None
def stamp(o, k, on):
    if MARK:
        o(f'; MARK {k}')
    if on or (LIGHT and k in LIGHT):
        o(f's_memtime {sr(S_ST+2*k,2)}')

def trace(o, reset=False):
    if CFG.get('trace'):
        if reset:
            o('s_mov_b32 s76, 0')
        o('s_memtime s[78:79]\ns_waitcnt lgkmcnt(0)\ns_mov_b32 m0, s76\ns_nop 0\nv_writelane_b32 v0, s78, m0\ns_add_u32 s76, s76, 1\ns_and_b32 s76, s76, 63')

def flags_reload(o):
    o(f'''
    v_lshrrev_b32 v{V_TMP+1}, 2, v{V_L16}
    buffer_load_dword v{V_TMP}, v{V_TMP+1}, {sr(S_WS,4)}, s{S_FA} offen sc1
    s_waitcnt vmcnt(0)
    v_cmp_ne_u32 {sr(S_FM,2)}, 0, v{V_TMP}
    s_nop 0
    ''')

def heads_up_wait(o, w, vl4, exit_label, gap, dyn):
    if w == 2:
        L, X = o.new('Lhu'), o.new('Lhx')
        ld = f'buffer_load_dword v{V_TMP}, v{vl4}, {sr(S_WS,4)}, s{S_HU} offen sc1'
        o(f's_cmp_eq_u32 s{S_MODE}, 1')
        o(f's_cbranch_scc1 {X}')
        pause(o, gap, dyn)
        for _ in range(CFG['hd'] - 1):
            o(ld)
            o(f's_nop {CFG["hs"]}')
        o.label(L)
        o(ld)
        o(f's_sub_u32 s{S_BUD}, s{S_BUD}, 1')
        o(f's_cbranch_scc1 {exit_label}')
        o(f's_waitcnt vmcnt({CFG["hd"]-1})')
        o(f'v_cmp_eq_u32 vcc, -1, v{V_TMP}')
        o(f's_cbranch_vccnz {L}')
        o.label(X)
    o('s_barrier')
    o(f's_add_u32 s{S_HU}, s{S_HU}, {SBS}')

def mem_issue(o):
    o(f'buffer_load_dwordx4 {vr(memf(0),4)}, v{V_L16}, {sr(S_WS,4)}, s{S_M0} offen sc1')
    o(f'buffer_load_dwordx4 {vr(memf(1),4)}, v{V_L16}, {sr(S_WS,4)}, s{S_M1} offen sc1')

def poll_and_head(o, w, exit_label, extra_reads, fill2, stamps, early=(), after_barrier=None, depth=2, nbar=7):
    kk = [(j + 2 * w) % 7 for j in range(7)]
    L, OK = o.new('Lpm'), o.new('Lok')
    m = memf(0)
    dp = depth
    o(f's_branch {OK}')
    o.label(L)
    if CFG['mask']:
        o('s_mov_b64 exec, vcc')
    mem_issue(o)
    if CFG['mask']:
        o('s_mov_b64 exec, -1')
    o(f's_sub_u32 s{S_BUD}, s{S_BUD}, 1')
    o(f's_cbranch_scc1 {exit_label}')
    if CFG['spec']:
        o('s_nop 2')
        for z in zero4(acc(0)) + zero4(acc(1)):
            o(z)
    o.label(OK)
    o(f's_waitcnt vmcnt({2*dp-1})')
    o(f'v_max3_u32 v{V_TMP}, v{m}, v{m+1}, v{m+2}')
    o(f's_waitcnt vmcnt({2*dp-2})')
    trace(o)
    stamp(o, 0, stamps)
    o(f'v_max3_u32 v{V_TMP+2}, v{m+4}, v{m+5}, v{m+6}')
    o(f'v_max3_u32 v{V_TMP}, v{m+3}, v{m+7}, v{V_TMP}')
    if CFG['spec']:
        o(M(0, 0))
    o(f'v_max_u32 v{V_TMP}, v{V_TMP}, v{V_TMP+2}')
    o(f'v_cmp_eq_u32 vcc, -1, v{V_TMP}')
    if CFG['spec']:
        o(M(1, 0))
        o(f'ds_write_b128 v{V_L16}, {vr(memf(0),4)} offset:{L_MEMS+kk[0]*1024}')
        o(f's_cbranch_vccnz {L}')
    else:
        o(f's_cbranch_vccnz {L}')
        o(M(0, 0))
        o(f'ds_write_b128 v{V_L16}, {vr(memf(0),4)} offset:{L_MEMS+kk[0]*1024}')
        o(M(1, 0))
    ms = [M(t, 0) for t in range(2, 7)] + [M(t, 1) for t in range(7)]
    for i in range(nbar - 2):
        o(ms.pop(0))
        if w != 3 and i == CFG['w1g']:
            o(f'ds_write_b128 v{V_L16}, {vr(memf(1),4)} offset:{L_MEMS+kk[1]*1024}')
        if i < len(early):
            o(early[i])
    o('s_waitcnt lgkmcnt(0)')
    stamp(o, 4, stamps)
    o('s_barrier')
    stamp(o, 5, stamps)
    rd = [f'ds_read_b128 {vr(memf(j),4)}, v{V_L16} offset:{L_MEMS+kk[j]*1024}' for j in range(2, 7)]
    o(rd[0])
    if nbar == 7:
        o(rd[1])
    if after_barrier:
        after_barrier()
    rest = rd[(2 if nbar == 7 else 1):] + extra_reads
    fill = {i: [r] for i, r in enumerate(rest[:len(ms)])}
    for k, v in fill2.items():
        fill.setdefault(k, []).extend(v)
    merge(o, ms, fill)
    stamp(o, 6, stamps)
    return rest[len(ms):]

def ld0(o): o(f'buffer_load_dwordx4 {vr(memf(0),4)}, v{V_L16}, {sr(S_WS,4)}, s{S_M0} offen sc1')
def ld1(o): o(f'buffer_load_dwordx4 {vr(memf(1),4)}, v{V_L16}, {sr(S_WS,4)}, s{S_M1} offen sc1')

def head_split(o, w, exit_label, extra_reads, tail_code, stamps, early):
    kk = [(j + 2 * w) % 7 for j in range(7)]
    L, OK, L1, OK1 = o.new('Lpm'), o.new('Lok'), o.new('Lp1'), o.new('Lok')
    m = memf(0)
    o(f's_branch {OK}')
    o.label(L)
    mem_issue(o)
    o(f's_sub_u32 s{S_BUD}, s{S_BUD}, 1')
    o(f's_cbranch_scc1 {exit_label}')
    o('s_nop 2')
    for z in zero4(acc(0)) + zero4(acc(1)):
        o(z)
    o.label(OK)
    o('s_waitcnt vmcnt(3)')
    trace(o)
    stamp(o, 0, stamps)
    o(f'v_max3_u32 v{V_TMP}, v{m}, v{m+1}, v{m+2}')
    o(f'v_max_u32 v{V_TMP}, v{V_TMP}, v{m+3}')
    o(M(0, 0))
    o(f'v_cmp_eq_u32 vcc, -1, v{V_TMP}')
    o(M(1, 0))
    o(f's_cbranch_vccnz {L}')
    o(M(2, 0))
    o(f'ds_write_b128 v{V_L16}, {vr(memf(0),4)} offset:{L_MEMS+kk[0]*1024}')
    nb = CFG['nb']
    for t in range(3, nb):
        o(M(t, 0))
    o('s_waitcnt vmcnt(2)')
    o(f'v_max3_u32 v{V_TMP}, v{m+4}, v{m+5}, v{m+6}')
    o(f'v_max_u32 v{V_TMP}, v{V_TMP}, v{m+7}')
    rest = [M(t, 0) for t in range(nb, 7)] + [M(t, 1) for t in range(7)]
    if w != 3:
        o(f'ds_write_b128 v{V_L16}, {vr(memf(1),4)} offset:{L_MEMS+kk[1]*1024}')
    o(rest.pop(0))
    o(f'v_cmp_eq_u32 vcc, -1, v{V_TMP}')
    o(rest.pop(0))
    o(f's_cbranch_vccnz {L1}')
    o.label(OK1)
    for i in range(CFG['nw']):
        o(rest.pop(0))
        if i < len(early):
            o(early[i])
    o('s_waitcnt lgkmcnt(0)')
    stamp(o, 4, stamps)
    o('s_barrier')
    stamp(o, 5, stamps)
    rd = [f'ds_read_b128 {vr(memf(j),4)}, v{V_L16} offset:{L_MEMS+kk[j]*1024}' for j in range(2, 7)] + extra_reads
    o(rd.pop(0))
    o(rd.pop(0))
    for x in rest:
        o(x)
        if rd:
            o(rd.pop(0))
    stamp(o, 6, stamps)
    def slow():
        o.label(L1)
        o('s_waitcnt vmcnt(0)')
        o(f'v_max3_u32 v{V_TMP}, v{m+4}, v{m+5}, v{m+6}')
        o(f'v_max_u32 v{V_TMP}, v{V_TMP}, v{m+7}')
        if w != 3:
            o(f'ds_write_b128 v{V_L16}, {vr(memf(1),4)} offset:{L_MEMS+kk[1]*1024}')
        o(f'v_cmp_eq_u32 vcc, -1, v{V_TMP}')
        o(f's_cbranch_vccz {OK1}')
        ld1(o)
        o(f's_sub_u32 s{S_BUD}, s{S_BUD}, 1')
        o(f's_cbranch_scc1 {exit_label}')
        o(f's_branch {L1}')
    tail_code.append(slow)
    return rd

def load_weights(o, w, isA):
    kk = [(j + 2 * w) % 7 for j in range(7)]
    n = 0
    for t in range(7):
        voff = V_L16
        base = (7 * w + t) * 14336
        for j in range(7):
            o(f's_add_u32 s{S_T1}, s{S_T0}, {base + kk[j]*2048}')
            for hf in range(2):
                o(f'buffer_load_dwordx4 {wreg_half(t,j,hf)}, v{voff}, {sr(S_WS,4)}, s{S_T1} offen offset:{hf*1024}')
                n += 1
            if n % 14 == 0 and n >= 42:
                o('s_waitcnt vmcnt(40)')

def xkey_loads(w):
    r = []
    for kt in range(2):
        for ks in range(2):
            for hf in range(2):
                d = V_XK + kt * 16 + ks * 8 + hf * 4
                va = V_A1 if (ks == 1 and hf == 1) else V_L16
                r.append(f'buffer_load_dwordx4 {vr(d,4)}, v{va}, {sr(S_WS,4)}, s{S_X0+kt} offen offset:{(8*ks+4*hf)*256}')
    return r

def tile_phase(extra):
    main, fill = [], {}
    for t in range(7):
        for j in range(2, 7):
            main.append(M(t, j))
    for t in range(6):
        p = post(t)
        b = 5 * (t + 1)
        fill.setdefault(b + 2, []).append(p[0])
        fill.setdefault(b + 3, []).append(p[1])
        fill.setdefault(b + 4, []).append(p[2])
        fill.setdefault(min(b + 5, 34), []).append(p[3])
    for k, v in extra.items():
        fill.setdefault(k, []).extend(v)
    return main, fill

def gen_A(o, w, nsteps, stamps, exit_label):
    o(f'''
    v_and_b32 v{V_TMP}, 15, v0                 ; n
    v_lshrrev_b32 v{V_TMP+1}, 4, v0            ; q
    v_and_b32 v{V_TMP+2}, 1, v{V_TMP+1}        ; q&1
    v_and_b32 v{V_A1}, 0x1f0, v{V_L16}         ; (l&31)*16
    v_lshrrev_b32 v{V_TW}, 2, v{V_TMP}
    v_lshlrev_b32 v{V_TW}, 6, v{V_TW}
    v_and_b32 v{V_A0}, 1, v0
    v_lshl_add_u32 v{V_TW}, v{V_A0}, 5, v{V_TW}
    v_lshl_add_u32 v{V_TW}, v{V_TMP+1}, 3, v{V_TW}
    v_bfe_u32 v{V_A0}, v0, 1, 1
    v_lshl_add_u32 v{V_TW}, v{V_A0}, 2, v{V_TW}
    v_add_u32 v{V_TW}, {L_TIMG + w*2048}, v{V_TW}
    v_lshlrev_b32 v{V_TR}, 8, v{V_TMP+1}
    v_lshl_add_u32 v{V_TR}, v{V_TMP}, 3, v{V_TR}
    v_add_u32 v{V_TR}, {L_TIMG + w*2048}, v{V_TR}
    ; (q>>1)*256 + (4*(j>>1) + 2*(q&1) + (j&1))*16
    v_bfe_u32 v{V_A2}, v0, 1, 1
    v_lshlrev_b32 v{V_A2}, 7, v{V_A2}
    v_bfe_u32 v{V_A0}, v0, 2, 1
    v_lshl_add_u32 v{V_A2}, v{V_A0}, 6, v{V_A2}
    v_lshl_add_u32 v{V_A2}, v{V_TMP+2}, 5, v{V_A2}
    v_and_b32 v{V_A0}, 1, v0
    v_lshl_add_u32 v{V_A2}, v{V_A0}, 4, v{V_A2}
    v_lshrrev_b32 v{V_A0}, 5, v0
    v_lshl_add_u32 v{V_A2}, v{V_A0}, 8, v{V_A2}
    v_lshlrev_b32 v{V_A0}, 6, v{V_TMP+1}
    v_bfe_u32 v{V_A3}, v0, 2, 1
    v_lshl_add_u32 v{V_A0}, v{V_A3}, 5, v{V_A0}
    v_add_u32 v{V_A0}, {(w&1)*16}, v{V_A0}
    v_lshrrev_b32 v{V_A3}, 3, v{V_TMP}
    v_lshl_add_u32 v{V_A6}, v{V_A3}, 8, v{V_A0}
    v_and_b32 v{V_A3}, 3, v0
    v_lshl_add_u32 v{V_A6}, v{V_A3}, 2, v{V_A6}
    v_lshl_add_u32 v{V_A7}, v{V_A3}, 1, v{V_A0}
    s_and_b32 s{S_T2}, s{S_ROLE}, 3
    s_lshl_b32 s{S_T3}, s{S_T2}, 9
    v_add_u32 v{V_A6}, s{S_T3}, v{V_A6}
    s_lshr_b32 s{S_T3}, s{S_T2}, 1
    s_lshl_b32 s{S_T3}, s{S_T3}, 8
    s_and_b32 s{S_T2}, s{S_T2}, 1
    s_lshl_b32 s{S_T2}, s{S_T2}, 3
    s_add_u32 s{S_T3}, s{S_T3}, s{S_T2}
    v_add_u32 v{V_A7}, s{S_T3}, v{V_A7}
    s_lshr_b32 s{S_PB}, s{S_ROLE}, 2
    s_mul_i32 s{S_PB}, s{S_PB}, 2560
    s_add_u32 s{S_PB}, s{S_PB}, {OFF_PB}
    v_lshlrev_b32 v{V_A4}, 3, v0
    v_mov_b32 v{V_A5}, 0
    v_mov_b32 v{V_TMP}, 0
    v_lshlrev_b32 v{V_TMP+1}, 2, v0
    ds_write_b32 v{V_TMP+1}, v{V_TMP} offset:{L_TIMG + w*2048 + 1792}
    ds_write_b32 v{V_TMP+1}, v{V_TMP} offset:{L_MEMS + 7168}
    s_mul_i32 s{S_T0}, s{S_ROLE}, {HSZ}
    s_add_u32 s{S_T0}, s{S_T0}, {OFF_AF}
    v_lshlrev_b32 v{V_A3}, 7, v0
    v_min_u32 v{V_A0}, {22*128}, v{V_A3}
    s_mul_i32 s{S_Z}, s{S_ROLE}, {23*128}
    s_add_u32 s{S_Z}, s{S_Z}, {OFF_SB + SBS*(2 if CFG['hu'] else 1)}
    s_mul_i32 s{S_TOUCH}, s{S_ROLE}, {WBB}
    s_add_u32 s{S_TOUCH}, s{S_TOUCH}, {OFF_WB + w*128}
    v_min_u32 v{V_A3}, {(CFG['tl']-1)*128}, v{V_A3}
    v_lshlrev_b32 v{V_A3}, 2, v{V_A3}
    s_mov_b32 s{S_X0}, {OFF_XN + 14*w*256}
    s_mov_b32 s{S_X1}, {OFF_XN + 14*w*256 + 14336}
    ''')
    if CFG['pre'] and w >= 2:
        o(f's_sub_u32 s{S_T1}, s{S_Z}, {SBS*(3-w)}')
        o(f'buffer_load_dword v{V_TMP+2}, v{V_A0}, {sr(S_WS,4)}, s{S_T1} offen')
    load_weights(o, w, True)
    if VERIFY: VERIFY(o, V_ACC)
    V_L4 = V_A5 if w >= CFG['tw'] else V_TMP + 1
    if w < 2:
        o(f'v_and_b32 v{V_A0}, 0x37, v0\nv_lshlrev_b32 v{V_A0}, 2, v{V_A0}\nv_add_u32 v{V_A0}, {L_SP + 4096 + 32*w}, v{V_A0}')
    o(f'v_lshlrev_b32 v{V_L4}, 2, v0')
    for t in range(7):
        for z in zero4(acc(t)):
            o(z)
    o('s_waitcnt vmcnt(0) lgkmcnt(0)')
    if CFG['diag']: o('s_memrealtime s[70:71]\ns_memtime s[80:81]\ns_mov_b32 s76, 0')
    for _ in range(CFG['dA']):
        mem_issue(o)
    LOOP = o.new('LA')
    o.label(LOOP)
    mkr = []
    for ks in range(2):
        for hf in range(2):
            mkr.append(f'ds_read_b128 {vr(V_MK+ks*8+hf*4,4)}, v{V_A2} offset:{L_MEMS+(7*w+4*ks+2*hf)*256}')
    xl = xkey_loads(w)
    xl = [xl[0], xl[1], xl[4], xl[5], xl[2], xl[3], xl[6], xl[7]]
    if CFG.get('nox'): xl = ['s_nop 0'] * 8
    tail_code = []
    TF0, TF1 = acc(1), acc(2)
    SA = [memf(0), memf(1), acc(0)]
    if CFG['split']:
        left = head_split(o, w, exit_label, mkr, tail_code, stamps, xl[:2])
        assert len(left) <= 4
        o('s_waitcnt lgkmcnt(%d)' % (0 if stamps else 4 - len(left) + 3))
        extra = {}
        free = [0, 2, 3, 4, 5, 6, 11, 16, 10, 15]
        seq = [xl[2]] + left[:1] + [xl[3]] + left[1:] + [xl[4], xl[5], xl[6], xl[7]]
        for g, x in zip(free, seq):
            extra.setdefault(g, []).append(x)
        extra[1] = ['s_waitcnt lgkmcnt(%d)' % (0 if stamps else 4 - len(left))]
        extra.setdefault(20, []).append('s_waitcnt vmcnt(8)')
        extra.setdefault(21, []).append(zero_ds(SA[0]))
        extra.setdefault(25, []).append(zero_ds(SA[1]))
        extra.setdefault(26, []).append(f'ds_read_b64_tr_b16 {vr(TF0,2)}, v{V_TR}')
        extra.setdefault(30, []).append(zero_ds(SA[2]))
        extra.setdefault(31, []).append(f'ds_read_b64_tr_b16 {vr(TF0+2,2)}, v{V_TR} offset:128')
    else:
        nbar = CFG['nbar']
        early = [''] * (nbar - 2)
        for g, x in zip([g for g in range(nbar - 3) if g != CFG['w1g']][-4:], xl):
            early[g] = x
        sbt = (lambda: o(f'buffer_load_dword v{V_A6}, v{V_A0}, {sr(S_WS,4)}, s{S_Z} offen')) if False else None
        left = poll_and_head(o, w, exit_label, [], {}, stamps, early, sbt, CFG['dA'], nbar)
        nl = len(left)
        o(f's_waitcnt lgkmcnt({4 - nl})')
        extra = {}
        out = 4 - nl
        for g in range(4):
            extra[g] = []
            if left:
                extra[g].append(left.pop(0)); out += 1
            out -= 1
            if g in (0, 1, 3) or nl:
                extra[g].append(f's_waitcnt lgkmcnt({max(out - (1 if g == 1 and not nl else 0), 0)})')
        extra[2].append(xl[4])
        extra.update({4: [mkr[0]], 5: [xl[5]], 6: [mkr[1]], 11: [xl[6]], 16: [xl[7]], 10: [mkr[2]], 15: [mkr[3]],
                      20: ['s_waitcnt vmcnt(%d)' % (9 if sbt else 8)], 21: [zero_ds(SA[0])], 25: [zero_ds(SA[1])], 30: [zero_ds(SA[2])],
                      26: [f'ds_read_b64_tr_b16 {vr(TF0,2)}, v{V_TR}'], 31: [f'ds_read_b64_tr_b16 {vr(TF0+2,2)}, v{V_TR} offset:128']})
    main, fill = tile_phase(extra)
    merge(o, main, fill)
    stamp(o, 12, stamps)
    keys = lambda kt, ks: vr(V_XK + kt * 16 + ks * 8, 8) if kt < 2 else vr(V_MK + ks * 8, 8)
    o('s_waitcnt vmcnt(%d) lgkmcnt(%d)' % (4, 0 if stamps else 1))
    o(SM(SA[0], TF0, keys(0, 0)))
    o(SM(SA[1], TF0, keys(1, 0)))
    p6 = post(6)
    o(p6[0]); o(p6[1]); o(p6[2]); o(p6[3])
    o(f'ds_read_b64_tr_b16 {vr(TF1,2)}, v{V_TR} offset:1024')
    o(f'ds_read_b64_tr_b16 {vr(TF1+2,2)}, v{V_TR} offset:1152')
    o(SM(SA[2], TF0, keys(2, 0)))
    stamp(o, 7, stamps)
    for z in zero4(acc(5))[:CFG['f1']]:
        o('s_nop 1')
        o(z)
    o('s_waitcnt vmcnt(0) lgkmcnt(0)')
    stamp(o, 8, stamps)
    Y = [acc(3), acc(4)]
    for kt in range(3):
        o(SM(SA[kt], TF1, keys(kt, 1)))
    first = 1 - (w & 1)
    plane = lambda par, src: L_SP + (par * 4 + src) * 512
    add = lambda par, kt: o(f'v_add_f32 v{Y[par]+kt}, v{SA[kt]+par}, v{SA[kt]+2+par}')
    o(f's_cmp_eq_u32 s{S_MODE}, 1')
    add(first, 0); add(1 - first, 0)
    o('s_nop 1')
    add(first, 1)
    o(f'ds_write_b64 v{V_A4}, {vr(Y[first],2)} offset:{plane(first, w)}')
    add(1 - first, 1)
    if w >= 2:
        o(f'ds_write_b64 v{V_A4}, {vr(Y[1-first],2)} offset:{plane(1-first, w)}')
    for par in range(2):
        o(f'v_add_f32_dpp v{Y[0]+2}, v{SA[2]+par}, v{SA[2]+2+par} quad_perm:[0,1,2,3] row_mask:0xf bank_mask:{(3, 12)[par]}')
    o(f'ds_write_b32 v{V_L4}, v{Y[0]+2} offset:{L_SP + 4096 + 256*w}')
    for z in zero4(acc(6))[:CFG['f2']]:
        o('s_nop 2')
        o(z)
    if not CFG.get('nwA'): o('s_waitcnt lgkmcnt(0)')
    stamp(o, 13, stamps)
    o('s_barrier')
    stamp(o, 9, stamps)
    L1, L2 = o.new('Ls'), o.new('Ls')
    SLOW, BACK = o.new('Lslow'), o.new('Lback')
    R = memf(2)
    E = memf(5)
    s0, s1, s2 = Y[w & 1], Y[w & 1] + 1, Y[w & 1] + 2
    if w < 2:
        u = (L_SP >> 9) + 4 * w
        o(f'ds_read2st64_b64 {vr(R,4)}, v{V_A4} offset0:{u+2} offset1:{u+3}')
        o(f'ds_read_b64 {vr(R+4,2)}, v{V_A4} offset:{plane(w, 1-w)}')
        o(f'ds_read2st64_b32 {vr(R+6,2)}, v{V_A0} offset0:0 offset1:1')
        o(f'ds_read2st64_b32 {vr(R+8,2)}, v{V_A0} offset0:2 offset1:3')
        o('s_waitcnt lgkmcnt(%d)' % (0 if stamps else 3))
        o(f'v_pk_add_f32 {vr(s0,2)}, {vr(s0,2)}, {vr(R,2)}')
        o(f'v_pk_add_f32 {vr(s0,2)}, {vr(s0,2)}, {vr(R+2,2)}')
        o('s_waitcnt lgkmcnt(%d)' % (0 if stamps else 2))
        o(f'v_pk_add_f32 {vr(s0,2)}, {vr(s0,2)}, {vr(R+4,2)}')
        o(f'v_exp_f32 v{E}, v{s0}')
        o('s_waitcnt lgkmcnt(0)')
        o(f'v_pk_add_f32 {vr(R+6,2)}, {vr(R+6,2)}, {vr(R+8,2)}')
        o(f'v_exp_f32 v{E+1}, v{s1}')
        o(f'v_add_f32 v{s2}, v{R+6}, v{R+7}')
        o(f'v_exp_f32 v{E+2}, v{s2}')
        stamp(o, 10, stamps)
        dpp = lambda op, r, sh: f'{op}_dpp v{r}, v{r}, v{r} row_ror:{sh} row_mask:0xf bank_mask:0xf'
        o(f'v_add_f32 v{E+3}, v{E}, v{E+1}')
        o(f'v_fma_f32 v{E+3}, v{E+2}, 0.5, v{E+3}')
        o(f'v_max3_f32 v{V_TMP}, |v{s0}|, |v{s1}|, |v{s2}|')
        o(f'v_cmp_nge_f32 vcc, 0x42800000, v{V_TMP}')
        o(dpp('v_add_f32', E + 3, 8))
        for sh in (4, 2, 1):
            o('s_nop 1')
            o(dpp('v_add_f32', E + 3, sh))
        stamp(o, 11, stamps)
        o(f'v_rcp_f32 v{E+3}, v{E+3}')
        o(f's_cbranch_vccnz {SLOW}')
        o.label(BACK)
        o(f'v_mul_f32 v{E}, v{E}, v{E+3}')
        o(f'v_mul_f32 v{E+1}, v{E+1}, v{E+3}')
        o(f'v_mul_f32 v{E+2}, v{E+2}, v{E+3}')
        o(f'v_cvt_pk_bf16_f32 v{E}, |v{E}|, |v{E+1}|')
        o(f'v_cvt_pk_bf16_f32 v{E+2}, |v{E+2}|, |v{E+2}|')
        o(f's_cbranch_scc1 {L1}')
        o(f'buffer_store_dword v{E}, v{V_A6}, {sr(S_WS,4)}, s{S_PB} offen')
        o(f'buffer_store_short v{E+2}, v{V_A7}, {sr(S_WS,4)}, s{S_PB} offen offset:2048')
        o.label(L2)
        o(f's_add_u32 s{S_PB}, s{S_PB}, {SBS}')
    elif w == 2:
        for z in (zero4(acc(0)) + zero4(acc(1)) + zero4(acc(2)))[:CFG['trk']]:
            o(z)
            o('s_nop 3')
    stamp(o, 3, stamps)
    o('s_barrier')
    for r, v in ((S_X0, SBS), (S_X1, SBS), (S_TOUCH, WBS), (S_Z, SBS), (S_M0, SBS), (S_M1, SBS), (S_STEP, 1)):
        o(f's_add_u32 s{r}, s{r}, {v}')
    if CFG.get('steplog'):
        o(f's_memtime s[78:79]\ns_waitcnt lgkmcnt(0)\ns_mov_b32 m0, s{S_STEP}\ns_nop 0\nv_writelane_b32 v0, s78, m0')
    if CFG['diag']:
        for st, sg in ((1, 88), (24, 90)):
            Lq = o.new('Lq')
            o(f's_cmp_lg_u32 s{S_STEP}, {st}\ns_cbranch_scc1 {Lq}\ns_memrealtime s[{sg}:{sg+1}]\ns_waitcnt lgkmcnt(0)\n{Lq}:')
    o(f's_cmp_ge_u32 s{S_STEP}, {nsteps}')
    o(f's_cbranch_scc1 {exit_label}')
    trace(o, True)
    if w == 3 and not CFG['hu']:
        o(f'buffer_load_dword v{V_TMP+2}, v{V_A0}, {sr(S_WS,4)}, s{S_Z} offen')
    if w < CFG['tw']:
        LT2 = o.new('Lt')
        if CFG['flags']:
            o(f'v_cmp_ne_u32 {sr(S_FM,2)}, 0, v{V_A5}')
            o(f'v_lshrrev_b32 v{V_TMP+1}, 2, v{V_L16}')
            o(f'buffer_load_dword v{V_A5}, v{V_TMP+1}, {sr(S_WS,4)}, s{S_FA} offen sc1')
            o(f's_bitcmp1_b64 {sr(S_FM,2)}, s{S_STEP}')
            o(f's_cbranch_scc0 {LT2}')
        o(f'buffer_load_dword v{V_TMP+2}, v{V_A3}, {sr(S_WS,4)}, s{S_TOUCH} offen sc1')
        o.label(LT2)
    trace(o)
    if CFG['hu']:
        heads_up_wait(o, w, V_L4, exit_label, CFG['hgA'], None)
        pause(o, CFG['gapA'], 92)
    else:
        pause(o, CFG['gapA'] + CFG['wo%d' % w], 92)
    zs = [z for t in range(7) for z in zero4(acc(t))]
    def zz(n):
        for _ in range(n):
            if zs:
                o(zs.pop(0))
                o(f's_nop {CFG["zn"]}')
    sq = CFG['sq']
    if CFG['hu']:
        zs_pre = 28 - 3 * sq - CFG['za']
        idx = max(i for i, l in enumerate(o.lines) if 's_cbranch_scc1 ' + exit_label in l and 's_cmp_ge_u32' in o.lines[i-1])
        o.lines[idx+1:idx+1] = ['    ' + zs.pop(0) for _ in range(zs_pre)]
    else:
        zz(28 - 3 * sq - CFG['za'])
    if CFG['split']:
        ld0(o); zz(sq); ld1(o); zz(sq); ld0(o); zz(sq); ld1(o)
    else:
        mem_issue(o); zz(2 * sq); mem_issue(o); zz(sq)
    zz(28)
    o(f's_branch {LOOP}')
    for f in tail_code:
        f()
    if w < 2:
        o.label(L1)
        o(f'buffer_store_dword v{E}, v{V_A6}, {sr(S_WS,4)}, s{S_PB} offen sc1')
        o(f'buffer_store_short v{E+2}, v{V_A7}, {sr(S_WS,4)}, s{S_PB} offen offset:2048 sc1')
        o(f's_branch {L2}')
        o.label(SLOW)
        o(f'v_max3_f32 v{V_TMP}, v{s0}, v{s1}, v{s2}')
        for sh in (8, 4, 2, 1):
            o('s_nop 1')
            o(f'v_max_f32_dpp v{V_TMP}, v{V_TMP}, v{V_TMP} row_ror:{sh} row_mask:0xf bank_mask:0xf')
        for kt in range(3):
            o(f'v_sub_f32 v{s0+kt}, v{s0+kt}, v{V_TMP}')
            o(f'v_exp_f32 v{E+kt}, v{s0+kt}')
        o('s_nop 0')
        o(f'v_add_f32 v{E+3}, v{E}, v{E+1}')
        o(f'v_fma_f32 v{E+3}, v{E+2}, 0.5, v{E+3}')
        for sh in (8, 4, 2, 1):
            o('s_nop 1')
            o(dpp('v_add_f32', E + 3, sh))
        o(f'v_rcp_f32 v{E+3}, v{E+3}')
        o(f's_branch {BACK}')

def gen_B(o, w, nsteps, stamps, exit_label):
    o(f's_sub_u32 s{S_T2}, s{S_ROLE}, 16')
    o(f's_mul_i32 s{S_T3}, s{S_T2}, 28')
    o(f'''
    v_and_b32 v{V_TMP}, 15, v0                 ; n
    v_lshrrev_b32 v{V_TMP+1}, 4, v0            ; q
    ''')
    o(f's_mul_i32 s{S_T0}, s{S_T2}, {HSZ}')
    o(f's_add_u32 s{S_T0}, s{S_T0}, {OFF_BT}')
    load_weights(o, w, False)
    if VERIFY: VERIFY(o, V_ACC)
    V_KEEP, V_JUNK = V_A6, V_TMP + 2
    o(f'''
    v_lshlrev_b32 v{V_TW}, 4, v{V_TMP}
    v_lshl_add_u32 v{V_TW}, v{V_TMP+1}, 2, v{V_TW}
    v_add_u32 v{V_TW}, {L_TIMG + w*2048}, v{V_TW}
    v_mul_u32_u24 v{V_TR}, 28, v{V_TMP+1}
    v_add_u32 v{V_TR}, v{V_TR}, v{V_TMP}
    v_lshlrev_b32 v{V_TR}, 4, v{V_TR}
    v_add_u32 v{V_TR}, {L_TIMG + w*2048}, v{V_TR}
    v_lshlrev_b32 v{V_A7}, 1, v{V_TMP}
    v_add_u32 v{V_A7}, s{S_T3}, v{V_A7}
    v_lshrrev_b32 v{V_A5}, 4, v{V_A7}
    v_lshlrev_b32 v{V_A5}, 8, v{V_A5}
    v_lshl_add_u32 v{V_A5}, v{V_TMP+1}, 6, v{V_A5}
    v_bfe_u32 v{V_A6}, v{V_A7}, 3, 1
    v_lshl_add_u32 v{V_A5}, v{V_A6}, 5, v{V_A5}
    v_bfe_u32 v{V_A6}, v{V_A7}, 1, 2
    v_lshl_add_u32 v{V_A5}, v{V_A6}, 2, v{V_A5}
    v_add_u32 v{V_A5}, {16*(w&1)}, v{V_A5}
    v_mov_b32 v{V_A7}, 0x80000000
    v_cmp_gt_u32 vcc, 14, v{V_TMP}
    s_nop 1
    v_cndmask_b32 v{V_A5}, v{V_A7}, v{V_A5}, vcc
    v_cmp_gt_u32 vcc, 32, v0
    s_nop 1
    v_cndmask_b32 v{V_A2}, v{V_A7}, v{V_L16}, vcc
    v_lshlrev_b32 v{V_A3}, 3, v0               ; l*8
    v_mov_b32 v{V_A4}, 0x80008000
    v_min_u32 v{V_A0}, 13, v{V_TMP}
    v_mul_u32_u24 v{V_A1}, 14, v{V_TMP+1}
    v_add_lshl_u32 v{V_A0}, v{V_A0}, v{V_A1}, 4    ; (14q + min(n,13))*16
    s_mul_i32 s{S_T3}, s{S_T2}, {WBB}
    s_add_u32 s{S_Z}, s{S_T3}, {OFF_WB + w*7168}
    s_add_u32 s{S_Z+1}, s{S_Z}, 3584
    s_mov_b32 s{S_PB}, {OFF_PB + w*2560}
    s_mov_b32 s{S_MO}, {OFF_MEMI + SBS}
    s_mov_b32 s{S_ZP}, {OFF_MEMG + nsteps*SCS}
    s_mov_b32 s{S_MG}, {OFF_MEMG + 2048*w}
    s_cmp_eq_u32 s{S_T2}, 0
    s_cselect_b32 s{S_T0}, 0, {OOB}
    s_cmp_eq_u32 s{S_T2}, {1 if w != 3 else 99}
    s_cselect_b32 s{S_T1}, 0, {OOB}
    v_or_b32 v{V_A1}, s{S_T0}, v{V_L16}
    v_or_b32 v{V_A7}, s{S_T1}, v{V_L16}
    ''')
    o('s_waitcnt vmcnt(0)')
    for t in range(7):
        for z in zero4(acc(t)):
            o(z)
    ZM = [V_MK, V_MK + 8]
    o(f'''
    v_mov_b32 v{V_MEMF}, -1
    v_mov_b32 v{V_MEMF+1}, -1
    v_mov_b32 v{V_MEMF+2}, 0
    ds_write_b64 v{V_A3}, {vr(V_MEMF,2)} offset:{L_SP + 512*w}
    ds_write_b64 v{V_A3}, {vr(V_MEMF,2)} offset:{L_SP + 2048 + 512*w}
    v_lshrrev_b32 v{V_TMP}, 1, v{V_A3}
    ds_write_b32 v{V_TMP}, v{V_MEMF+2} offset:{L_TIMG + w*2048 + 1792}
    s_waitcnt lgkmcnt(0)
    ''')
    if CFG['hu']:
        o(f'''
        s_lshl_b32 s{S_T0}, s{S_T2}, 4
        s_add_u32 s{S_T0}, s{S_T0}, {4*w}
        v_cmp_eq_u32 vcc, 0, v0
        v_mov_b32 v{V_TMP}, s{S_T0}
        v_mov_b32 v{V_TMP+1}, {OOB}
        v_cndmask_b32 v0, v{V_TMP+1}, v{V_TMP}, vcc
        ''')
        if w == 3:
            o(f'''
            v_lshlrev_b32 v{V_A5}, 3, v{V_L16}
            v_min_u32 v{V_A5}, {22*128}, v{V_A5}
            s_mul_i32 s{S_TOUCH}, s{S_T2}, {23*128}
            s_add_u32 s{S_TOUCH}, s{S_TOUCH}, {OFF_SB + 2*SBS}
            ''')
    if CFG.get('now'):
        for r in range(32): o(zero(V_XK + r))
    for z in zero4(V_MK + 4) + zero4(V_MK + 12):
        o(z)
    if CFG['diag']: o('s_memrealtime s[70:71]\ns_memtime s[80:81]\ns_mov_b32 s76, 0')
    for _ in range(CFG['dBm']):
        mem_issue(o)
    LOOP = o.new('LB')
    o.label(LOOP)
    Wr = lambda u, ct: V_XK + 16 * u + 8 * ct
    wl = []
    for hl in range(4):
        for ct in range(2):
            wl.append(f'buffer_load_dwordx4 {vr(Wr(hl>>1,ct)+4*(hl&1),4)}, v{V_A0}, {sr(S_WS,4)}, s{S_Z+(hl>>1)} offen offset:{(hl&1)*1792+ct*896} sc1')
    if CFG.get('now'): wl = ['s_nop 0'] * 8
    pub = f'buffer_store_dword v{V_KEEP}, v{V_A5}, {sr(S_WS,4)}, s{S_ZP} offen sc1'
    early = []
    pubs = [f'buffer_store_dwordx4 {vr(memf(0),4)}, v{V_A1}, {sr(S_WS,4)}, s{S_MG} offen sc1',
            f'buffer_store_dwordx4 {vr(memf(1),4)}, v{V_A7}, {sr(S_WS,4)}, s{S_MG} offen offset:1024 sc1']
    vs = CFG['vs']
    pos = [(w if vs > 2 else 0) + vs * i for i in range(8)]
    nh = 14 - CFG['nbarB']
    f2 = {g: [x] for g, x in zip(pos, wl) if g < nh}
    if CFG['hu'] and w == 3:
        f2.setdefault(1, []).append(f'buffer_load_dword v{V_KEEP}, v{V_A5}, {sr(S_WS,4)}, s{S_TOUCH} offen')
    LFW, LFB = o.new('Lfw'), o.new('Lfb')
    def chk():
        if CFG['flags']:
            o(f's_bitcmp1_b64 {sr(S_FM,2)}, s{S_STEP}')
            o(f's_cbranch_scc0 {LFW}')
            o.label(LFB)
    poll_and_head(o, w, exit_label, [], f2, stamps, early, chk, CFG['dBm'], CFG['nbarB'])
    o('s_waitcnt lgkmcnt(0)')
    D = [memf(0), memf(1)]
    ex = {}
    ex[5] = [zero_ds(D[0])]
    ex[6] = [zero_ds(D[1])]
    if CFG['flags']:
        ex[31] = [f'v_lshrrev_b32 v{V_TMP+1}, 2, v{V_L16}', f'buffer_load_dword v{V_JUNK}, v{V_TMP+1}, {sr(S_WS,4)}, s{S_FA} offen sc1']
    for g, x in zip(pos, wl):
        if g >= nh:
            ex.setdefault(g - nh, []).append(x)
    LPB = o.new('Lpub')
    ex.setdefault(2, []).extend([f's_cmp_gt_u32 s{S_T2}, 1', f's_cbranch_scc1 {LPB}', pubs[0], pubs[1], f'{LPB}:'])
    sal = [f's_add_u32 s{S_M0}, s{S_M0}, {SBS}', f's_add_u32 s{S_M1}, s{S_M1}, {SBS}', f's_add_u32 s{S_STEP}, s{S_STEP}, 1', f's_add_u32 s{S_MG}, s{S_MG}, {SCS}', f's_add_u32 s{S_TOUCH}, s{S_TOUCH}, {SBS}']
    for i, v in enumerate(sal):
        ex.setdefault(i, []).append(v)
    main, fill = tile_phase(ex)
    if CFG.get('bslow'):
        for g in range(35):
            fill.setdefault(g, []).append(f's_nop {CFG["bslow"]}')
    if CFG.get('bskip'):
        main = ['s_nop 3'] * 35
    merge(o, main, fill)
    o('s_nop 7')
    for p in post(6):
        o(p)
    o(f'ds_read_b128 {vr(ZM[0],4)}, v{V_TR}')
    o(f'ds_read_b128 {vr(ZM[1],4)}, v{V_TR} offset:224')
    P = memf(2)
    V_NEG = memf(6)
    if w < 2 and CFG['nwB']:
        o(f'v_mov_b32 v{V_NEG}, -1\nv_mov_b32 v{V_NEG+1}, -1')
    def p_issue():
        o(f'buffer_load_dwordx4 {vr(P,4)}, v{V_L16}, {sr(S_WS,4)}, s{S_PB} offen sc1')
        o(f'buffer_load_dwordx4 {vr(P+4,4)}, v{V_L16}, {sr(S_WS,4)}, s{S_PB} offen offset:1024 sc1')
        o(f'buffer_load_dwordx4 {vr(P+8,4)}, v{V_A2}, {sr(S_WS,4)}, s{S_PB} offen offset:2048 sc1')
    o(f's_add_u32 s{S_Z}, s{S_Z}, {WBS}')
    o(f's_add_u32 s{S_Z+1}, s{S_Z+1}, {WBS}')
    o('s_waitcnt lgkmcnt(0)')
    stamp(o, 1, stamps)
    if CFG.get('steplog') == 2:
        o(f's_memtime s[78:79]\ns_waitcnt vmcnt(0)\ns_memtime s[76:77]\ns_waitcnt lgkmcnt(0)\ns_sub_u32 s78, s76, s78\ns_mov_b32 m0, s{S_STEP}\ns_nop 0\nv_writelane_b32 v0, s78, m0')
    pause(o, CFG['gapB'], 93)
    trace(o, True)
    zs = [z for t in range(7) for z in zero4(acc(t))]
    def zz(n):
        for _ in range(n):
            if zs:
                o(zs.pop(0))
                o(f's_nop {CFG["zn"]}')
    if CFG['prog']:
        pl = [f'buffer_load_dwordx4 {vr(P,4)}, v{V_L16}, {sr(S_WS,4)}, s{S_PB} offen sc1',
              f'buffer_load_dwordx4 {vr(P+4,4)}, v{V_L16}, {sr(S_WS,4)}, s{S_PB} offen offset:1024 sc1',
              f'buffer_load_dwordx4 {vr(P+8,4)}, v{V_A2}, {sr(S_WS,4)}, s{S_PB} offen offset:2048 sc1']
        if CFG['pbar']:
            o('s_barrier')
        pq = CFG['pq']
        zz(28 - 5 * pq)
        for i in range(6):
            o(pl[i % 3])
            zz(pq)
    else:
        zz(28 - CFG['spP'] - CFG['zb'])
        p_issue()
        zz(CFG['spP'])
        p_issue()
        zz(28)
    LP, OK = o.new('Lpp'), o.new('Lok')
    T0, T1 = V_TMP, V_TMP + 1
    o(f's_branch {OK}')
    o.label(LP)
    if CFG['mask']:
        o('s_mov_b64 exec, vcc')
    p_issue()
    if CFG['mask']:
        o('s_mov_b64 exec, -1')
    o(f's_sub_u32 s{S_BUD}, s{S_BUD}, 1')
    o(f's_cbranch_scc1 {exit_label}')
    Y = V_XK if not CFG.get('now') else memf(5)
    if CFG['prog']:
        o('s_nop 2')
        for z in zero4(D[0]) + zero4(D[1]):
            o(z)
        o.label(OK)
        ops = [(vr(Wr(0, 0), 8), vr(Wr(0, 1), 8)), (vr(Wr(1, 0), 8), vr(Wr(1, 1), 8)), (vr(ZM[0], 8), vr(ZM[1], 8))]
        for i in range(3):
            p = P + 4 * i
            o(f's_waitcnt vmcnt({5-i})')
            if i == 2:
                stamp(o, 2, stamps)
            if i == 0:
                o(f'v_or_b32 v{T0}, v{p}, v{p+1}')
            else:
                o(f'v_or3_b32 v{T0}, v{T0}, v{p}, v{p+1}')
            o(f'v_or3_b32 v{T0}, v{T0}, v{p+2}, v{p+3}')
            o(SM(D[0], p, ops[i][0]))
            if i == 2:
                o(f'v_and_b32 v{T0}, v{T0}, v{V_A4}')
            o(SM(D[1], p, ops[i][1]))
        o(f'v_cmp_ne_u32 vcc, 0, v{T0}')
        o(f's_cmp_eq_u32 s{S_MODE}, 1')
        o('s_nop 0')
        o(f's_cbranch_vccnz {LP}')
        stamp(o, 7, stamps)
        o(f'v_add_f32 v{Y}, v{D[0]}, v{D[0]+2}')
        o(f'v_add_f32 v{Y+2}, v{D[0]+1}, v{D[0]+3}')
        o('s_nop 1')
        o(f'v_add_f32 v{Y+1}, v{D[1]}, v{D[1]+2}')
        o(f'v_add_f32 v{Y+3}, v{D[1]+1}, v{D[1]+3}')
    else:
        sp = CFG['specB']
        if sp:
            o('s_nop 2')
            for z in zero4(D[0]):
                o(z)
        o.label(OK)
        dq = 3 * (CFG['dP'] - 1)
        o(f's_waitcnt vmcnt({dq+2})')
        o(f'v_or3_b32 v{T0}, v{P}, v{P+1}, v{P+2}')
        o(f's_waitcnt vmcnt({dq+1})')
        o(f'v_or3_b32 v{T1}, v{P+4}, v{P+5}, v{P+6}')
        o(f'v_or3_b32 v{T0}, v{T0}, v{P+3}, v{P+7}')
        if sp: o(SM(D[0], P, vr(Wr(0, 0), 8)))
        o(f's_waitcnt vmcnt({dq})')
        trace(o)
        stamp(o, 2, stamps)
        o(f'v_or3_b32 v{T1}, v{T1}, v{P+8}, v{P+9}')
        o(f'v_or3_b32 v{T0}, v{T0}, v{P+10}, v{P+11}')
        if sp: o(SM(D[0], P + 4, vr(Wr(1, 0), 8)))
        o(f'v_bitop3_b32 v{T0}, v{T0}, v{T1}, v{V_A4} bitop3:0xa8')
        o(f'v_cmp_ne_u32 vcc, 0, v{T0}')
        if sp: o(SM(D[0], P + 8, vr(ZM[0], 8)))
        o(f's_cbranch_vccnz {LP}')
        if not sp:
            o(SM(D[0], P, vr(Wr(0, 0), 8)))
            o(SM(D[0], P + 4, vr(Wr(1, 0), 8)))
            o(SM(D[0], P + 8, vr(ZM[0], 8)))
        o(SM(D[1], P, vr(Wr(0, 1), 8)))
        if CFG['hu'] and CFG['hp'] == 0:
            o(f'buffer_store_dword v{V_MK+4}, v0, {sr(S_WS,4)}, s{S_HU} offen')
        o(SM(D[1], P + 4, vr(Wr(1, 1), 8)))
        o(SM(D[1], P + 8, vr(ZM[1], 8)))
        stamp(o, 7, stamps)
        o(f'v_add_f32 v{Y}, v{D[0]}, v{D[0]+2}')
        o(f'v_add_f32 v{Y+2}, v{D[0]+1}, v{D[0]+3}')
        o(f's_cmp_eq_u32 s{S_MODE}, 1')
        if CFG['hu'] and CFG['hp'] == 1:
            o(f'buffer_store_dword v{V_MK+4}, v0, {sr(S_WS,4)}, s{S_HU} offen')
            o('s_nop 3')
        else:
            o('s_nop 4')
        o(f'v_add_f32 v{Y+1}, v{D[1]}, v{D[1]+2}')
        o(f'v_add_f32 v{Y+3}, v{D[1]+1}, v{D[1]+3}')

    if w == 0:
        o(f'ds_write_b64 v{V_A3}, {vr(Y+2,2)} offset:{L_SP + 2048}')
    elif w == 1:
        o(f'ds_write_b64 v{V_A3}, {vr(Y,2)} offset:{L_SP + 512}')
    else:
        o(f'ds_write_b64 v{V_A3}, {vr(Y,2)} offset:{L_SP + 512*w}')
        o(f'ds_write_b64 v{V_A3}, {vr(Y+2,2)} offset:{L_SP + 2048 + 512*w}')
    if not CFG['nwB']: o('s_waitcnt lgkmcnt(0)')
    stamp(o, 8, stamps)
    o('s_barrier')
    stamp(o, 9, stamps)
    L1, L2 = o.new('Ls'), o.new('Ls')
    if w < 2:
        R = Y + 4
        own = Y + 2 * w
        srcs = [x for x in range(4) if x != w]
        for i, sw in enumerate(srcs):
            o(f'ds_read_b64 {vr(R+2*i,2)}, v{V_A3} offset:{L_SP + 2048*w + 512*sw}')
        LSL, LSB = o.new('Lrs'), o.new('Lrb')
        SU = R + 6
        rds = [f'ds_read_b64 {vr(R+2*i,2)}, v{V_A3} offset:{L_SP + 2048*w + 512*sw}' for i, sw in enumerate(srcs)]
        arms = [f'ds_write_b64 v{V_A3}, {vr(V_NEG,2)} offset:{L_SP + 2048*w + 512*sw}' for sw in srcs]
        for i in range(3):
            o('s_waitcnt lgkmcnt(%d)' % (0 if stamps else 2 - i))
            o(f'v_pk_add_f32 {vr(SU,2)}, {vr(own if i == 0 else SU,2)}, {vr(R+2*i,2)}')
        if CFG['nwB']:
            o(f'v_cmp_u_f32 vcc, v{SU}, v{SU+1}')
            o(f'v_cvt_pk_bf16_f32 v{V_KEEP}, v{SU}, v{SU+1}')
            o(f's_cbranch_scc1 {L1}')
            o(f'v_cndmask_b32 v{V_KEEP}, v{V_KEEP}, v{V_NEG}, vcc')
        else:
            o(f'v_cvt_pk_bf16_f32 v{V_KEEP}, v{SU}, v{SU+1}')
            o(f'v_min_u32 v{V_KEEP}, 0xfffffffe, v{V_KEEP}')
            o(f's_cbranch_scc1 {L1}')
        o(f'buffer_store_dword v{V_KEEP}, v{V_A5}, {sr(S_WS,4)}, s{S_MO} offen')
        o.label(L2)
        if CFG['nwB']:
            o(f's_cbranch_vccnz {LSL}')
            o.label(LSB)
            for a in arms:
                o(a)
    elif not CFG['hu']:
        pause(o, 6)
    stamp(o, 3, stamps)
    LAST = o.new('Llast')
    if CFG['flags']:
        o(f'v_cmp_ne_u32 {sr(S_FM,2)}, 0, v{V_JUNK}')
    o(f's_cmp_ge_u32 s{S_STEP}, {nsteps}')
    o(f's_cbranch_scc1 {LAST}')
    o(f's_add_u32 s{S_MO}, s{S_MO}, {SBS}')
    o(f's_add_u32 s{S_PB}, s{S_PB}, {SBS}')
    if CFG['hu']:
        if w == 2:
            o(f'v_lshrrev_b32 v{V_TMP+1}, 2, v{V_L16}')
        heads_up_wait(o, w, V_TMP + 1, exit_label, 0, None)
    pause(o, CFG['gapB2'], 94)
    mem_issue(o)
    for _ in range(CFG['dBm'] - 1):
        pause(o, CFG['sp'])
        mem_issue(o)
    o(f's_branch {LOOP}')
    if w < 2:
        o.label(L1)
        if CFG['nwB']:
            o(f'v_cndmask_b32 v{V_KEEP}, v{V_KEEP}, v{V_NEG}, vcc')
        o(f'buffer_store_dword v{V_KEEP}, v{V_A5}, {sr(S_WS,4)}, s{S_MO} offen sc1')
        o(f's_branch {L2}')
        if CFG['nwB']:
            LS2 = o.new('Lr2')
            o.label(LSL)
            for r in rds:
                o(r)
            o(f's_sub_u32 s{S_BUD}, s{S_BUD}, 1')
            o(f's_cbranch_scc1 {exit_label}')
            o('s_waitcnt vmcnt(0) lgkmcnt(0)')
            o(f'v_max3_u32 v{V_TMP}, v{R}, v{R+1}, v{R+2}')
            o(f'v_max3_u32 v{V_TMP}, v{V_TMP}, v{R+3}, v{R+4}')
            o(f'v_max_u32 v{V_TMP}, v{V_TMP}, v{R+5}')
            o(f'v_cmp_eq_u32 vcc, -1, v{V_TMP}')
            o(f's_cbranch_vccnz {LSL}')
            for i in range(3):
                o(f'v_pk_add_f32 {vr(SU,2)}, {vr(own if i == 0 else SU,2)}, {vr(R+2*i,2)}')
            o(f'v_cvt_pk_bf16_f32 v{V_KEEP}, v{SU}, v{SU+1}')
            o(f'v_min_u32 v{V_KEEP}, 0xfffffffe, v{V_KEEP}')
            o(f's_cmp_eq_u32 s{S_MODE}, 1')
            o(f's_cbranch_scc1 {LS2}')
            o(f'buffer_store_dword v{V_KEEP}, v{V_A5}, {sr(S_WS,4)}, s{S_MO} offen')
            o(f's_branch {LSB}')
            o.label(LS2)
            o(f'buffer_store_dword v{V_KEEP}, v{V_A5}, {sr(S_WS,4)}, s{S_MO} offen sc1')
            o(f's_branch {LSB}')
    if CFG['flags']:
        o.label(LFW)
        flags_reload(o)
        o(f's_bitcmp1_b64 {sr(S_FM,2)}, s{S_STEP}')
        o(f's_cbranch_scc1 {LFB}')
        o(f's_sub_u32 s{S_BUD}, s{S_BUD}, 1')
        o(f's_cbranch_scc1 {exit_label}')
        o('s_sleep 2')
        o(f's_branch {LFW}')
    o.label(LAST)
    if w < 2:
        o(pub)
    o(f's_branch {exit_label}')

def team_common_setup(o, w):
    kk = [(j + 2 * w) % 7 for j in range(7)]
    o(f'''
    v_lshlrev_b32 v{V_L16}, 4, v0
    v_mov_b32 v{V_IDX}, 0x44444444
    v_mov_b32 v{V_TMP}, 0xeeeeeeee
    v_and_b32 v{V_TMP+1}, 2, v0
    v_cmp_ne_u32 vcc, 0, v{V_TMP+1}
    s_nop 1
    v_cndmask_b32 v{V_IDX}, v{V_IDX}, v{V_TMP}, vcc
    v_mov_b32 v{V_TMP}, 0
    v_lshlrev_b32 v{V_TMP+1}, 2, v0
    ds_write_b32 v{V_TMP+1}, v{V_TMP} offset:{L_ZERO + 256*w}
    s_mov_b32 s{S_STEP}, 0
    s_mov_b32 s{S_HU}, {OFF_HU}
    s_mov_b64 {sr(S_FM,2)}, 0
    s_and_b32 s{S_FA}, s{S_ROLE}, 15
    s_lshl_b32 s{S_FA}, s{S_FA}, 8
    s_add_u32 s{S_FA}, s{S_FA}, {OFF_FL}
    s_mov_b32 s{S_M0}, {OFF_MEMI + kk[0]*1024}
    s_mov_b32 s{S_M1}, {OFF_MEMI + kk[1]*1024}
    ''')

def gen_team_body(o, exit_label, nsteps=63, stamps=False):
    labs = {}
    for role in 'AB':
        for w in range(4):
            labs[role, w] = o.new(f'Lteam{role}{w}')
    LB = o.new('LteamB')
    o(f's_cmp_ge_u32 s{S_ROLE}, 16')
    o(f's_cbranch_scc1 {LB}')
    for role in 'AB':
        if role == 'B':
            o.label(LB)
        for w in range(1, 4):
            o(f's_cmp_eq_u32 s{S_W}, {w}')
            o(f's_cbranch_scc1 {labs[role,w]}')
        o(f's_branch {labs[role,0]}')
    for role in 'AB':
        for w in range(4):
            o.raw('.p2align 6')
            o.label(labs[role, w])
            team_common_setup(o, w)
            if role == 'A':
                gen_A(o, w, nsteps, stamps, exit_label)
            else:
                gen_B(o, w, nsteps, stamps, exit_label)
```

```python
from common import *

S_WS, S_DBG = 4, 12
S_W, S_ROLE, S_STEP, S_BUD = 16, 17, 18, 19
S_M0, S_M1 = 20, 21
S_T0, S_T1, S_T2, S_T3 = 22, 23, 24, 25
S_PB = 26
S_X0, S_X1 = 27, 28
S_Z = 30
S_MO = 35
S_MG = 36
S_MODE = 37
S_TOUCH = 38
S_ZP = 39
S_FM = 82
S_HU = 34
S_FA = 84
S_ST = 40

V_L16, V_IDX = 1, 2
V_TW, V_TR = 3, 4
V_A0, V_A1, V_A2, V_A3, V_A4, V_A5, V_A6, V_A7 = 5, 6, 7, 8, 9, 10, 11, 12
V_TMP = 13
V_MEMF = 16
V_ACC = 44
V_XK = 72
V_MK = 104
V_WT = 120

L_MEMS = 0
L_TIMG = 7424
L_SP = L_TIMG + 8192 + 256
L_ZERO = L_SP + 8192
L_END = L_ZERO + 1024

CFG = dict(k3=0, trkB=0, nops=0, nwB=1, nbarB=9, prog=0, pq=4, pbar=1, pre=0, hu=0, hd=4, hs=12, hgA=20, hp=1, vs=2, w1g=2, nbar=10, split=0, nb=4, nw=4, sq=3, zn=1, za=4, zb=4, trk=8, wo0=0, wo1=1, wo2=1, wo3=0, ne=5, lg0=12, lgs=6, dP=2, spP=10, spec=1, specB=1, mask=0, dA=2, dBm=1, flags=0, diag=1, gapA=44, gapB=3, gapB2=13, sp=6, ahead=1, f1=3, f2=3, tw=1, tl=56, xg=(2, 6, 10, 14, 18))

def wreg(t, j):
    u = t * 7 + j
    return ar(8 * u, 8) if u < 32 else vr(V_WT + 8 * (u - 32), 8)
def wreg_half(t, j, hf):
    u = t * 7 + j
    return ar(8 * u + 4 * hf, 4) if u < 32 else vr(V_WT + 8 * (u - 32) + 4 * hf, 4)
def acc(t): return V_ACC + 4 * t
def memf(j): return V_MEMF + 4 * j
def SM(d, a, b): return f'v_smfmac_f32_16x16x64_bf16 {vr(d,4)}, {vr(a,4)}, {b}, v{V_IDX}'
def M(t, j): return SM(acc(t), memf(j), wreg(t, j))
def zero(r): return f'v_mov_b32 v{r}, 0'
def zero4(a): return [zero(a + i) for i in range(4)]

def zero_ds(a): return f'ds_read_b128 {vr(a,4)}, v{V_L16} offset:{L_ZERO}'
def pause(o, n, dyn=None):
    if dyn is not None and CFG.get('dyn'):
        L = o.new('Lpz')
        o(f's_mov_b32 s{S_T1}, s{dyn}')
        o.raw('.p2align 4')
        o(f'{L}:\ns_sub_u32 s{S_T1}, s{S_T1}, 1\ns_cbranch_scc0 {L}')
    if CFG.get('nops'):
        for _ in range(n // 4):
            o('s_nop 15')
    elif n >= 4:
        o(f's_sleep {n // 4}')
    if n % 4:
        o(f's_nop {4 * (n % 4) - 1}')

def post(t):
    a = acc(t)
    return [f'v_add_f32 v{a}, v{a}, v{a+2}', f'v_add_f32 v{a+1}, v{a+1}, v{a+3}',
            f'v_cvt_pk_bf16_f32 v{a}, v{a}, v{a+1}', f'ds_write_b32 v{V_TW}, v{a} offset:{t*256}']

def merge(o, main, fill):
    for i, m in enumerate(main):
        o(m)
        for f in fill.get(i, []):
            o(f)

LIGHT = None
MARK = False
VERIFY = None
def stamp(o, k, on):
    if MARK:
        o(f'; MARK {k}')
    if on or (LIGHT and k in LIGHT):
        o(f's_memtime {sr(S_ST+2*k,2)}')

def trace(o, reset=False):
    if CFG.get('trace'):
        if reset:
            o('s_mov_b32 s76, 0')
        o('s_memtime s[78:79]\ns_waitcnt lgkmcnt(0)\ns_mov_b32 m0, s76\ns_nop 0\nv_writelane_b32 v0, s78, m0\ns_add_u32 s76, s76, 1\ns_and_b32 s76, s76, 63')

def flags_reload(o):
    o(f'''
    v_lshrrev_b32 v{V_TMP+1}, 2, v{V_L16}
    buffer_load_dword v{V_TMP}, v{V_TMP+1}, {sr(S_WS,4)}, s{S_FA} offen sc1
    s_waitcnt vmcnt(0)
    v_cmp_ne_u32 {sr(S_FM,2)}, 0, v{V_TMP}
    s_nop 0
    ''')

def heads_up_wait(o, w, vl4, exit_label, gap, dyn):
    if w == 2:
        L, X = o.new('Lhu'), o.new('Lhx')
        ld = f'buffer_load_dword v{V_TMP}, v{vl4}, {sr(S_WS,4)}, s{S_HU} offen sc1'
        o(f's_cmp_eq_u32 s{S_MODE}, 1')
        o(f's_cbranch_scc1 {X}')
        pause(o, gap, dyn)
        for _ in range(CFG['hd'] - 1):
            o(ld)
            o(f's_nop {CFG["hs"]}')
        o.label(L)
        o(ld)
        o(f's_sub_u32 s{S_BUD}, s{S_BUD}, 1')
        o(f's_cbranch_scc1 {exit_label}')
        o(f's_waitcnt vmcnt({CFG["hd"]-1})')
        o(f'v_cmp_eq_u32 vcc, -1, v{V_TMP}')
        o(f's_cbranch_vccnz {L}')
        o.label(X)
    o('s_barrier')
    o(f's_add_u32 s{S_HU}, s{S_HU}, {SBS}')

def mem_issue(o):
    o(f'buffer_load_dwordx4 {vr(memf(0),4)}, v{V_L16}, {sr(S_WS,4)}, s{S_M0} offen sc1')
    o(f'buffer_load_dwordx4 {vr(memf(1),4)}, v{V_L16}, {sr(S_WS,4)}, s{S_M1} offen sc1')

def poll_and_head(o, w, exit_label, extra_reads, fill2, stamps, early=(), after_barrier=None, depth=2, nbar=7):
    kk = [(j + 2 * w) % 7 for j in range(7)]
    L, OK = o.new('Lpm'), o.new('Lok')
    m = memf(0)
    dp = depth
    o(f's_branch {OK}')
    o.label(L)
    if CFG['mask']:
        o('s_mov_b64 exec, vcc')
    mem_issue(o)
    if CFG['mask']:
        o('s_mov_b64 exec, -1')
    o(f's_sub_u32 s{S_BUD}, s{S_BUD}, 1')
    o(f's_cbranch_scc1 {exit_label}')
    if CFG['spec']:
        o('s_nop 2')
        for z in zero4(acc(0)) + zero4(acc(1)):
            o(z)
    o.label(OK)
    o(f's_waitcnt vmcnt({2*dp-1})')
    o(f'v_max3_u32 v{V_TMP}, v{m}, v{m+1}, v{m+2}')
    o(f's_waitcnt vmcnt({2*dp-2})')
    trace(o)
    stamp(o, 0, stamps)
    o(f'v_max3_u32 v{V_TMP+2}, v{m+4}, v{m+5}, v{m+6}')
    o(f'v_max3_u32 v{V_TMP}, v{m+3}, v{m+7}, v{V_TMP}')
    if CFG['spec']:
        o(M(0, 0))
    o(f'v_max_u32 v{V_TMP}, v{V_TMP}, v{V_TMP+2}')
    o(f'v_cmp_eq_u32 vcc, -1, v{V_TMP}')
    if CFG['spec']:
        o(M(1, 0))
        o(f'ds_write_b128 v{V_L16}, {vr(memf(0),4)} offset:{L_MEMS+kk[0]*1024}')
        o(f's_cbranch_vccnz {L}')
    else:
        o(f's_cbranch_vccnz {L}')
        o(M(0, 0))
        o(f'ds_write_b128 v{V_L16}, {vr(memf(0),4)} offset:{L_MEMS+kk[0]*1024}')
        o(M(1, 0))
    ms = [M(t, 0) for t in range(2, 7)] + [M(t, 1) for t in range(7)]
    for i in range(nbar - 2):
        o(ms.pop(0))
        if w != 3 and i == CFG['w1g']:
            o(f'ds_write_b128 v{V_L16}, {vr(memf(1),4)} offset:{L_MEMS+kk[1]*1024}')
        if i < len(early):
            o(early[i])
    o('s_waitcnt lgkmcnt(0)')
    stamp(o, 4, stamps)
    o('s_barrier')
    stamp(o, 5, stamps)
    rd = [f'ds_read_b128 {vr(memf(j),4)}, v{V_L16} offset:{L_MEMS+kk[j]*1024}' for j in range(2, 7)]
    o(rd[0])
    if nbar == 7:
        o(rd[1])
    if after_barrier:
        after_barrier()
    rest = rd[(2 if nbar == 7 else 1):] + extra_reads
    fill = {i: [r] for i, r in enumerate(rest[:len(ms)])}
    for k, v in fill2.items():
        fill.setdefault(k, []).extend(v)
    merge(o, ms, fill)
    stamp(o, 6, stamps)
    return rest[len(ms):]

def ld0(o): o(f'buffer_load_dwordx4 {vr(memf(0),4)}, v{V_L16}, {sr(S_WS,4)}, s{S_M0} offen sc1')
def ld1(o): o(f'buffer_load_dwordx4 {vr(memf(1),4)}, v{V_L16}, {sr(S_WS,4)}, s{S_M1} offen sc1')

def head_split(o, w, exit_label, extra_reads, tail_code, stamps, early):
    kk = [(j + 2 * w) % 7 for j in range(7)]
    L, OK, L1, OK1 = o.new('Lpm'), o.new('Lok'), o.new('Lp1'), o.new('Lok')
    m = memf(0)
    o(f's_branch {OK}')
    o.label(L)
    mem_issue(o)
    o(f's_sub_u32 s{S_BUD}, s{S_BUD}, 1')
    o(f's_cbranch_scc1 {exit_label}')
    o('s_nop 2')
    for z in zero4(acc(0)) + zero4(acc(1)):
        o(z)
    o.label(OK)
    o('s_waitcnt vmcnt(3)')
    trace(o)
    stamp(o, 0, stamps)
    o(f'v_max3_u32 v{V_TMP}, v{m}, v{m+1}, v{m+2}')
    o(f'v_max_u32 v{V_TMP}, v{V_TMP}, v{m+3}')
    o(M(0, 0))
    o(f'v_cmp_eq_u32 vcc, -1, v{V_TMP}')
    o(M(1, 0))
    o(f's_cbranch_vccnz {L}')
    o(M(2, 0))
    o(f'ds_write_b128 v{V_L16}, {vr(memf(0),4)} offset:{L_MEMS+kk[0]*1024}')
    nb = CFG['nb']
    for t in range(3, nb):
        o(M(t, 0))
    o('s_waitcnt vmcnt(2)')
    o(f'v_max3_u32 v{V_TMP}, v{m+4}, v{m+5}, v{m+6}')
    o(f'v_max_u32 v{V_TMP}, v{V_TMP}, v{m+7}')
    rest = [M(t, 0) for t in range(nb, 7)] + [M(t, 1) for t in range(7)]
    if w != 3:
        o(f'ds_write_b128 v{V_L16}, {vr(memf(1),4)} offset:{L_MEMS+kk[1]*1024}')
    o(rest.pop(0))
    o(f'v_cmp_eq_u32 vcc, -1, v{V_TMP}')
    o(rest.pop(0))
    o(f's_cbranch_vccnz {L1}')
    o.label(OK1)
    for i in range(CFG['nw']):
        o(rest.pop(0))
        if i < len(early):
            o(early[i])
    o('s_waitcnt lgkmcnt(0)')
    stamp(o, 4, stamps)
    o('s_barrier')
    stamp(o, 5, stamps)
    rd = [f'ds_read_b128 {vr(memf(j),4)}, v{V_L16} offset:{L_MEMS+kk[j]*1024}' for j in range(2, 7)] + extra_reads
    o(rd.pop(0))
    o(rd.pop(0))
    for x in rest:
        o(x)
        if rd:
            o(rd.pop(0))
    stamp(o, 6, stamps)
    def slow():
        o.label(L1)
        o('s_waitcnt vmcnt(0)')
        o(f'v_max3_u32 v{V_TMP}, v{m+4}, v{m+5}, v{m+6}')
        o(f'v_max_u32 v{V_TMP}, v{V_TMP}, v{m+7}')
        if w != 3:
            o(f'ds_write_b128 v{V_L16}, {vr(memf(1),4)} offset:{L_MEMS+kk[1]*1024}')
        o(f'v_cmp_eq_u32 vcc, -1, v{V_TMP}')
        o(f's_cbranch_vccz {OK1}')
        ld1(o)
        o(f's_sub_u32 s{S_BUD}, s{S_BUD}, 1')
        o(f's_cbranch_scc1 {exit_label}')
        o(f's_branch {L1}')
    tail_code.append(slow)
    return rd

def load_weights(o, w, isA):
    kk = [(j + 2 * w) % 7 for j in range(7)]
    n = 0
    for t in range(7):
        voff = V_L16
        base = (7 * w + t) * 14336
        for j in range(7):
            o(f's_add_u32 s{S_T1}, s{S_T0}, {base + kk[j]*2048}')
            for hf in range(2):
                o(f'buffer_load_dwordx4 {wreg_half(t,j,hf)}, v{voff}, {sr(S_WS,4)}, s{S_T1} offen offset:{hf*1024}')
                n += 1
            if n % 14 == 0 and n >= 42:
                o('s_waitcnt vmcnt(40)')

def xkey_loads(w):
    r = []
    for kt in range(2):
        for ks in range(2):
            for hf in range(2):
                d = V_XK + kt * 16 + ks * 8 + hf * 4
                va = V_A1 if (ks == 1 and hf == 1) else V_L16
                r.append(f'buffer_load_dwordx4 {vr(d,4)}, v{va}, {sr(S_WS,4)}, s{S_X0+kt} offen offset:{(8*ks+4*hf)*256}')
    return r

def tile_phase(extra):
    main, fill = [], {}
    for t in range(7):
        for j in range(2, 7):
            main.append(M(t, j))
    for t in range(6):
        p = post(t)
        b = 5 * (t + 1)
        fill.setdefault(b + 2, []).append(p[0])
        fill.setdefault(b + 3, []).append(p[1])
        fill.setdefault(b + 4, []).append(p[2])
        fill.setdefault(min(b + 5, 34), []).append(p[3])
    for k, v in extra.items():
        fill.setdefault(k, []).extend(v)
    return main, fill

def gen_A(o, w, nsteps, stamps, exit_label):
    o(f'''
    v_and_b32 v{V_TMP}, 15, v0                 ; n
    v_lshrrev_b32 v{V_TMP+1}, 4, v0            ; q
    v_and_b32 v{V_TMP+2}, 1, v{V_TMP+1}        ; q&1
    v_and_b32 v{V_A1}, 0x1f0, v{V_L16}         ; (l&31)*16
    v_lshrrev_b32 v{V_TW}, 2, v{V_TMP}
    v_lshlrev_b32 v{V_TW}, 6, v{V_TW}
    v_and_b32 v{V_A0}, 1, v0
    v_lshl_add_u32 v{V_TW}, v{V_A0}, 5, v{V_TW}
    v_lshl_add_u32 v{V_TW}, v{V_TMP+1}, 3, v{V_TW}
    v_bfe_u32 v{V_A0}, v0, 1, 1
    v_lshl_add_u32 v{V_TW}, v{V_A0}, 2, v{V_TW}
    v_add_u32 v{V_TW}, {L_TIMG + w*2048}, v{V_TW}
    v_lshlrev_b32 v{V_TR}, 8, v{V_TMP+1}
    v_lshl_add_u32 v{V_TR}, v{V_TMP}, 3, v{V_TR}
    v_add_u32 v{V_TR}, {L_TIMG + w*2048}, v{V_TR}
    ; (q>>1)*256 + (4*(j>>1) + 2*(q&1) + (j&1))*16
    v_bfe_u32 v{V_A2}, v0, 1, 1
    v_lshlrev_b32 v{V_A2}, 7, v{V_A2}
    v_bfe_u32 v{V_A0}, v0, 2, 1
    v_lshl_add_u32 v{V_A2}, v{V_A0}, 6, v{V_A2}
    v_lshl_add_u32 v{V_A2}, v{V_TMP+2}, 5, v{V_A2}
    v_and_b32 v{V_A0}, 1, v0
    v_lshl_add_u32 v{V_A2}, v{V_A0}, 4, v{V_A2}
    v_lshrrev_b32 v{V_A0}, 5, v0
    v_lshl_add_u32 v{V_A2}, v{V_A0}, 8, v{V_A2}
    v_lshlrev_b32 v{V_A0}, 6, v{V_TMP+1}
    v_bfe_u32 v{V_A3}, v0, 2, 1
    v_lshl_add_u32 v{V_A0}, v{V_A3}, 5, v{V_A0}
    v_add_u32 v{V_A0}, {(w&1)*16}, v{V_A0}
    v_lshrrev_b32 v{V_A3}, 3, v{V_TMP}
    v_lshl_add_u32 v{V_A6}, v{V_A3}, 8, v{V_A0}
    v_and_b32 v{V_A3}, 3, v0
    v_lshl_add_u32 v{V_A6}, v{V_A3}, 2, v{V_A6}
    v_lshl_add_u32 v{V_A7}, v{V_A3}, 1, v{V_A0}
    s_and_b32 s{S_T2}, s{S_ROLE}, 3
    s_lshl_b32 s{S_T3}, s{S_T2}, 9
    v_add_u32 v{V_A6}, s{S_T3}, v{V_A6}
    s_lshr_b32 s{S_T3}, s{S_T2}, 1
    s_lshl_b32 s{S_T3}, s{S_T3}, 8
    s_and_b32 s{S_T2}, s{S_T2}, 1
    s_lshl_b32 s{S_T2}, s{S_T2}, 3
    s_add_u32 s{S_T3}, s{S_T3}, s{S_T2}
    v_add_u32 v{V_A7}, s{S_T3}, v{V_A7}
    s_lshr_b32 s{S_PB}, s{S_ROLE}, 2
    s_mul_i32 s{S_PB}, s{S_PB}, 2560
    s_add_u32 s{S_PB}, s{S_PB}, {OFF_PB}
    v_lshlrev_b32 v{V_A4}, 3, v0
    v_mov_b32 v{V_A5}, 0
    v_mov_b32 v{V_TMP}, 0
    v_lshlrev_b32 v{V_TMP+1}, 2, v0
    ds_write_b32 v{V_TMP+1}, v{V_TMP} offset:{L_TIMG + w*2048 + 1792}
    ds_write_b32 v{V_TMP+1}, v{V_TMP} offset:{L_MEMS + 7168}
    s_mul_i32 s{S_T0}, s{S_ROLE}, {HSZ}
    s_add_u32 s{S_T0}, s{S_T0}, {OFF_AF}
    v_lshlrev_b32 v{V_A3}, 7, v0
    v_min_u32 v{V_A0}, {22*128}, v{V_A3}
    s_mul_i32 s{S_Z}, s{S_ROLE}, {23*128}
    s_add_u32 s{S_Z}, s{S_Z}, {OFF_SB + SBS*(2 if CFG['hu'] else 1)}
    s_mul_i32 s{S_TOUCH}, s{S_ROLE}, {WBB}
    s_add_u32 s{S_TOUCH}, s{S_TOUCH}, {OFF_WB + w*128}
    v_min_u32 v{V_A3}, {(CFG['tl']-1)*128}, v{V_A3}
    v_lshlrev_b32 v{V_A3}, 2, v{V_A3}
    s_mov_b32 s{S_X0}, {OFF_XN + 14*w*256}
    s_mov_b32 s{S_X1}, {OFF_XN + 14*w*256 + 14336}
    ''')
    if CFG['pre'] and w >= 2:
        o(f's_sub_u32 s{S_T1}, s{S_Z}, {SBS*(3-w)}')
        o(f'buffer_load_dword v{V_TMP+2}, v{V_A0}, {sr(S_WS,4)}, s{S_T1} offen')
    load_weights(o, w, True)
    if VERIFY: VERIFY(o, V_ACC)
    V_L4 = V_A5 if w >= CFG['tw'] else V_TMP + 1
    o(f's_cmp_eq_u32 s{S_MODE}, 0\ns_cselect_b32 s{S_MO}, 0x42800000, -1.0')
    if w < 2:
        o(f'v_and_b32 v{V_A0}, 0x37, v0\nv_lshlrev_b32 v{V_A0}, 2, v{V_A0}\nv_add_u32 v{V_A0}, {L_SP + 4096 + 32*w}, v{V_A0}')
    o(f'v_lshlrev_b32 v{V_L4}, 2, v0')
    for t in range(7):
        for z in zero4(acc(t)):
            o(z)
    o('s_waitcnt vmcnt(0) lgkmcnt(0)')
    if CFG['diag']: o('s_memrealtime s[70:71]\ns_memtime s[80:81]\ns_mov_b32 s76, 0')
    for _ in range(CFG['dA']):
        mem_issue(o)
    LOOP = o.new('LA')
    o.label(LOOP)
    mkr = []
    for ks in range(2):
        for hf in range(2):
            mkr.append(f'ds_read_b128 {vr(V_MK+ks*8+hf*4,4)}, v{V_A2} offset:{L_MEMS+(7*w+4*ks+2*hf)*256}')
    xl = xkey_loads(w)
    xl = [xl[0], xl[1], xl[4], xl[5], xl[2], xl[3], xl[6], xl[7]]
    if CFG.get('nox'): xl = ['s_nop 0'] * 8
    tail_code = []
    TF0, TF1 = acc(1), acc(2)
    SA = [memf(0), memf(1), memf(2) if CFG['k3'] else acc(0)]
    if CFG['split']:
        left = head_split(o, w, exit_label, mkr, tail_code, stamps, xl[:2])
        assert len(left) <= 4
        o('s_waitcnt lgkmcnt(%d)' % (0 if stamps else 4 - len(left) + 3))
        extra = {}
        free = [0, 2, 3, 4, 5, 6, 11, 16, 10, 15]
        seq = [xl[2]] + left[:1] + [xl[3]] + left[1:] + [xl[4], xl[5], xl[6], xl[7]]
        for g, x in zip(free, seq):
            extra.setdefault(g, []).append(x)
        extra[1] = ['s_waitcnt lgkmcnt(%d)' % (0 if stamps else 4 - len(left))]
        extra.setdefault(20, []).append('s_waitcnt vmcnt(8)')
        extra.setdefault(21, []).append(zero_ds(SA[0]))
        extra.setdefault(25, []).append(zero_ds(SA[1]))
        extra.setdefault(26, []).append(f'ds_read_b64_tr_b16 {vr(TF0,2)}, v{V_TR}')
        extra.setdefault(30, []).append(zero_ds(SA[2]))
        extra.setdefault(31, []).append(f'ds_read_b64_tr_b16 {vr(TF0+2,2)}, v{V_TR} offset:128')
    else:
        nbar = CFG['nbar']
        early = [''] * (nbar - 2)
        for g, x in zip([0, 1, 3, 4, 5, 6] if CFG['k3'] == 1 else [0, 3, 5, 6] if CFG['k3'] == 2 else [3, 4, 5, 6], xl):
            early[g] = x
        sbt = (lambda: o(f'buffer_load_dword v{V_A6}, v{V_A0}, {sr(S_WS,4)}, s{S_Z} offen')) if False else None
        left = poll_and_head(o, w, exit_label, [], {}, stamps, early, sbt, CFG['dA'], nbar)
        nl = len(left)
        o(f's_waitcnt lgkmcnt({4 - nl})')
        extra = {}
        out = 4 - nl
        for g in range(4):
            extra[g] = []
            if left:
                extra[g].append(left.pop(0)); out += 1
            out -= 1
            if g in (0, 1, 3) or nl:
                extra[g].append(f's_waitcnt lgkmcnt({max(out - (1 if g == 1 and not nl else 0), 0)})')
        extra[2].append(xl[4])
        extra.update({4: [mkr[0]], 5: [xl[5]], 6: [mkr[1]], 11: [xl[6]], 16: [xl[7]], 10: [mkr[2]], 15: [mkr[3]],
                      20: ['s_waitcnt vmcnt(%d)' % (9 if sbt else 8)], 21: [zero_ds(SA[0])], 25: [zero_ds(SA[1])], 30: [zero_ds(SA[2])],
                      26: [f'ds_read_b64_tr_b16 {vr(TF0,2)}, v{V_TR}'], 31: [f'ds_read_b64_tr_b16 {vr(TF0+2,2)}, v{V_TR} offset:128']})
    if CFG['k3']:
        main = [M(t, 2) for t in range(7)] + [M(t, j) for t in range(7) for j in range(3, 7)]
        if CFG['k3'] == 1:
            fill = {0: [xl[6]], 1: [mkr[0]], 2: [mkr[1]], 3: [xl[7]], 4: [mkr[2]], 5: [mkr[3]],
                    6: ['s_waitcnt vmcnt(8) lgkmcnt(%d)' % (0 if stamps else 4)],
                    7: [zero_ds(SA[0])], 8: [zero_ds(SA[1])], 9: [zero_ds(SA[2])]}
        else:
            fill = {0: [xl[4]], 1: [mkr[0]], 2: [mkr[1]], 3: [xl[5]], 4: [mkr[2]], 5: [mkr[3]],
                    6: ['s_waitcnt vmcnt(6) lgkmcnt(%d)' % (0 if stamps else 4)],
                    7: [xl[6]], 8: [zero_ds(SA[0])], 9: [zero_ds(SA[1])], 10: [zero_ds(SA[2])], 11: [xl[7]]}
        for t in range(6):
            for i, x in enumerate(post(t)):
                fill.setdefault(min(7 + 4 * (t + 1) + 1 + i, 34), []).append(x)
        fill[28].append(f'ds_read_b64_tr_b16 {vr(TF0,2)}, v{V_TR}')
        fill[29].append(f'ds_read_b64_tr_b16 {vr(TF0+2,2)}, v{V_TR} offset:128')
        w5 = fill[34].pop()
    else:
        main, fill = tile_phase(extra)
    merge(o, main, fill)
    stamp(o, 12, stamps)
    keys = lambda kt, ks: vr(V_XK + kt * 16 + ks * 8, 8) if kt < 2 else vr(V_MK + ks * 8, 8)
    o('s_waitcnt vmcnt(%d) lgkmcnt(%d)' % (4, 0 if stamps else 1))
    o(SM(SA[0], TF0, keys(0, 0)))
    if CFG['k3']:
        o(w5)
    o(SM(SA[1], TF0, keys(1, 0)))
    p6 = post(6)
    o(p6[0]); o(p6[1]); o(p6[2]); o(p6[3])
    o(f'ds_read_b64_tr_b16 {vr(TF1,2)}, v{V_TR} offset:1024')
    o(f'ds_read_b64_tr_b16 {vr(TF1+2,2)}, v{V_TR} offset:1152')
    o(SM(SA[2], TF0, keys(2, 0)))
    stamp(o, 7, stamps)
    for z in zero4(acc(5))[:CFG['f1']]:
        o('s_nop 1')
        o(z)
    o('s_waitcnt vmcnt(0) lgkmcnt(0)')
    stamp(o, 8, stamps)
    Y = [acc(3), acc(4)]
    for kt in range(3):
        o(SM(SA[kt], TF1, keys(kt, 1)))
    first = 1 - (w & 1)
    plane = lambda par, src: L_SP + (par * 4 + src) * 512
    add = lambda par, kt: o(f'v_add_f32 v{Y[par]+kt}, v{SA[kt]+par}, v{SA[kt]+2+par}')
    o('s_nop 0')
    add(first, 0); add(1 - first, 0)
    o('s_nop 1')
    add(first, 1)
    o(f'ds_write_b64 v{V_A4}, {vr(Y[first],2)} offset:{plane(first, w)}')
    add(1 - first, 1)
    if w >= 2:
        o(f'ds_write_b64 v{V_A4}, {vr(Y[1-first],2)} offset:{plane(1-first, w)}')
    for par in range(2):
        o(f'v_add_f32_dpp v{Y[0]+2}, v{SA[2]+par}, v{SA[2]+2+par} quad_perm:[0,1,2,3] row_mask:0xf bank_mask:{(3, 12)[par]}')
    o(f'ds_write_b32 v{V_L4}, v{Y[0]+2} offset:{L_SP + 4096 + 256*w}')
    for z in zero4(acc(6))[:CFG['f2']]:
        o('s_nop 2')
        o(z)
    if not CFG.get('nwA'): o('s_waitcnt lgkmcnt(0)')
    stamp(o, 13, stamps)
    o('s_barrier')
    stamp(o, 9, stamps)
    L1, L2 = o.new('Ls'), o.new('Ls')
    SLOW, BACK = o.new('Lslow'), o.new('Lback')
    R = memf(3)
    E = memf(6)
    s0, s1, s2 = Y[w & 1], Y[w & 1] + 1, Y[w & 1] + 2
    if w < 2:
        u = (L_SP >> 9) + 4 * w
        o(f'ds_read2st64_b64 {vr(R,4)}, v{V_A4} offset0:{u+2} offset1:{u+3}')
        o(f'ds_read_b64 {vr(R+4,2)}, v{V_A4} offset:{plane(w, 1-w)}')
        o(f'ds_read2st64_b32 {vr(R+6,2)}, v{V_A0} offset0:0 offset1:1')
        o(f'ds_read2st64_b32 {vr(R+8,2)}, v{V_A0} offset0:2 offset1:3')
        o('s_waitcnt lgkmcnt(%d)' % (0 if stamps else 3))
        o(f'v_pk_add_f32 {vr(s0,2)}, {vr(s0,2)}, {vr(R,2)}')
        o(f'v_pk_add_f32 {vr(s0,2)}, {vr(s0,2)}, {vr(R+2,2)}')
        o('s_waitcnt lgkmcnt(%d)' % (0 if stamps else 2))
        o(f'v_pk_add_f32 {vr(s0,2)}, {vr(s0,2)}, {vr(R+4,2)}')
        o(f'v_exp_f32 v{E}, v{s0}')
        o('s_waitcnt lgkmcnt(0)')
        o(f'v_pk_add_f32 {vr(R+6,2)}, {vr(R+6,2)}, {vr(R+8,2)}')
        o(f'v_exp_f32 v{E+1}, v{s1}')
        o(f'v_add_f32 v{s2}, v{R+6}, v{R+7}')
        o(f'v_exp_f32 v{E+2}, v{s2}')
        stamp(o, 10, stamps)
        dpp = lambda op, r, sh: f'{op}_dpp v{r}, v{r}, v{r} row_ror:{sh} row_mask:0xf bank_mask:0xf'
        o(f'v_add_f32 v{E+3}, v{E}, v{E+1}')
        o(f'v_fma_f32 v{E+3}, v{E+2}, 0.5, v{E+3}')
        o(f'v_max3_f32 v{V_TMP}, |v{s0}|, |v{s1}|, |v{s2}|')
        o(f'v_cmp_nge_f32 vcc, s{S_MO}, v{V_TMP}')
        o(dpp('v_add_f32', E + 3, 8))
        for sh in (4, 2, 1):
            o('s_nop 1')
            o(dpp('v_add_f32', E + 3, sh))
        stamp(o, 11, stamps)
        o(f'v_rcp_f32 v{E+3}, v{E+3}')
        o(f's_cbranch_vccnz {SLOW}')
        def pstore(sc):
            o(f'v_mul_f32 v{E}, v{E}, v{E+3}')
            o(f'v_mul_f32 v{E+1}, v{E+1}, v{E+3}')
            o(f'v_mul_f32 v{E+2}, v{E+2}, v{E+3}')
            o(f'v_cvt_pk_bf16_f32 v{E}, |v{E}|, |v{E+1}|')
            o(f'buffer_store_dword v{E}, v{V_A6}, {sr(S_WS,4)}, s{S_PB} offen{sc}')
            o(f'v_cvt_pk_bf16_f32 v{E+2}, |v{E+2}|, |v{E+2}|')
            o(f'buffer_store_short v{E+2}, v{V_A7}, {sr(S_WS,4)}, s{S_PB} offen offset:2048{sc}')
        o.label(BACK)
        pstore('')
        o.label(L2)
        o(f's_add_u32 s{S_PB}, s{S_PB}, {SBS}')
    elif w == 2:
        for z in (zero4(acc(0)) + zero4(acc(1)) + zero4(acc(2)))[:CFG['trk']]:
            o(z)
            o('s_nop 3')
    stamp(o, 3, stamps)
    o('s_barrier')
    for r, v in ((S_X0, SBS), (S_X1, SBS), (S_TOUCH, WBS), (S_Z, SBS), (S_M0, SBS), (S_M1, SBS), (S_STEP, 1)):
        o(f's_add_u32 s{r}, s{r}, {v}')
    if CFG.get('steplog'):
        o(f's_memtime s[78:79]\ns_waitcnt lgkmcnt(0)\ns_mov_b32 m0, s{S_STEP}\ns_nop 0\nv_writelane_b32 v0, s78, m0')
    if CFG['diag']:
        for st, sg in ((1, 88), (24, 90)):
            Lq = o.new('Lq')
            o(f's_cmp_lg_u32 s{S_STEP}, {st}\ns_cbranch_scc1 {Lq}\ns_memrealtime s[{sg}:{sg+1}]\ns_waitcnt lgkmcnt(0)\n{Lq}:')
    o(f's_cmp_ge_u32 s{S_STEP}, {nsteps}')
    o(f's_cbranch_scc1 {exit_label}')
    trace(o, True)
    if w == 3 and not CFG['hu']:
        o(f'buffer_load_dword v{V_TMP+2}, v{V_A0}, {sr(S_WS,4)}, s{S_Z} offen')
    if w < CFG['tw']:
        LT2 = o.new('Lt')
        if CFG['flags']:
            o(f'v_cmp_ne_u32 {sr(S_FM,2)}, 0, v{V_A5}')
            o(f'v_lshrrev_b32 v{V_TMP+1}, 2, v{V_L16}')
            o(f'buffer_load_dword v{V_A5}, v{V_TMP+1}, {sr(S_WS,4)}, s{S_FA} offen sc1')
            o(f's_bitcmp1_b64 {sr(S_FM,2)}, s{S_STEP}')
            o(f's_cbranch_scc0 {LT2}')
        o(f'buffer_load_dword v{V_TMP+2}, v{V_A3}, {sr(S_WS,4)}, s{S_TOUCH} offen sc1')
        o.label(LT2)
    trace(o)
    if CFG['hu']:
        heads_up_wait(o, w, V_L4, exit_label, CFG['hgA'], None)
        pause(o, CFG['gapA'], 92)
    else:
        pause(o, CFG['gapA'] + CFG['wo%d' % w], 92)
    zs = [z for t in range(7) for z in zero4(acc(t))]
    def zz(n):
        for _ in range(n):
            if zs:
                o(zs.pop(0))
                o(f's_nop {CFG["zn"]}')
    sq = CFG['sq']
    if CFG['hu']:
        zs_pre = 28 - 3 * sq - CFG['za']
        idx = max(i for i, l in enumerate(o.lines) if 's_cbranch_scc1 ' + exit_label in l and 's_cmp_ge_u32' in o.lines[i-1])
        o.lines[idx+1:idx+1] = ['    ' + zs.pop(0) for _ in range(zs_pre)]
    else:
        zz(28 - 3 * sq - CFG['za'])
    if CFG['split']:
        ld0(o); zz(sq); ld1(o); zz(sq); ld0(o); zz(sq); ld1(o)
    else:
        mem_issue(o); zz(2 * sq); mem_issue(o); zz(sq)
        if CFG['dA'] == 3:
            zz(28); mem_issue(o)
    zz(28)
    o(f's_branch {LOOP}')
    for f in tail_code:
        f()
    if w < 2:
        o.label(SLOW)
        o(f'v_max3_f32 v{V_TMP}, v{s0}, v{s1}, v{s2}')
        for sh in (8, 4, 2, 1):
            o('s_nop 1')
            o(f'v_max_f32_dpp v{V_TMP}, v{V_TMP}, v{V_TMP} row_ror:{sh} row_mask:0xf bank_mask:0xf')
        for kt in range(3):
            o(f'v_sub_f32 v{s0+kt}, v{s0+kt}, v{V_TMP}')
            o(f'v_exp_f32 v{E+kt}, v{s0+kt}')
        o('s_nop 0')
        o(f'v_add_f32 v{E+3}, v{E}, v{E+1}')
        o(f'v_fma_f32 v{E+3}, v{E+2}, 0.5, v{E+3}')
        for sh in (8, 4, 2, 1):
            o('s_nop 1')
            o(dpp('v_add_f32', E + 3, sh))
        o(f'v_rcp_f32 v{E+3}, v{E+3}')
        o(f's_cmp_eq_u32 s{S_MODE}, 0')
        o(f's_cbranch_scc1 {BACK}')
        pstore(' sc1')
        o(f's_branch {L2}')

def gen_B(o, w, nsteps, stamps, exit_label):
    o(f's_sub_u32 s{S_T2}, s{S_ROLE}, 16')
    o(f's_mul_i32 s{S_T3}, s{S_T2}, 28')
    o(f'''
    v_and_b32 v{V_TMP}, 15, v0                 ; n
    v_lshrrev_b32 v{V_TMP+1}, 4, v0            ; q
    ''')
    o(f's_mul_i32 s{S_T0}, s{S_T2}, {HSZ}')
    o(f's_add_u32 s{S_T0}, s{S_T0}, {OFF_BT}')
    load_weights(o, w, False)
    if VERIFY: VERIFY(o, V_ACC)
    V_KEEP, V_JUNK = V_A6, V_TMP + 2
    o(f'''
    v_lshlrev_b32 v{V_TW}, 4, v{V_TMP}
    v_lshl_add_u32 v{V_TW}, v{V_TMP+1}, 2, v{V_TW}
    v_add_u32 v{V_TW}, {L_TIMG + w*2048}, v{V_TW}
    v_mul_u32_u24 v{V_TR}, 28, v{V_TMP+1}
    v_add_u32 v{V_TR}, v{V_TR}, v{V_TMP}
    v_lshlrev_b32 v{V_TR}, 4, v{V_TR}
    v_add_u32 v{V_TR}, {L_TIMG + w*2048}, v{V_TR}
    v_lshlrev_b32 v{V_A7}, 1, v{V_TMP}
    v_add_u32 v{V_A7}, s{S_T3}, v{V_A7}
    v_lshrrev_b32 v{V_A5}, 4, v{V_A7}
    v_lshlrev_b32 v{V_A5}, 8, v{V_A5}
    v_lshl_add_u32 v{V_A5}, v{V_TMP+1}, 6, v{V_A5}
    v_bfe_u32 v{V_A6}, v{V_A7}, 3, 1
    v_lshl_add_u32 v{V_A5}, v{V_A6}, 5, v{V_A5}
    v_bfe_u32 v{V_A6}, v{V_A7}, 1, 2
    v_lshl_add_u32 v{V_A5}, v{V_A6}, 2, v{V_A5}
    v_add_u32 v{V_A5}, {16*(w&1)}, v{V_A5}
    v_mov_b32 v{V_A7}, 0x80000000
    v_cmp_gt_u32 vcc, 14, v{V_TMP}
    s_nop 1
    v_cndmask_b32 v{V_A5}, v{V_A7}, v{V_A5}, vcc
    v_cmp_gt_u32 vcc, 32, v0
    s_nop 1
    v_cndmask_b32 v{V_A2}, v{V_A7}, v{V_L16}, vcc
    v_lshlrev_b32 v{V_A3}, 3, v0               ; l*8
    v_mov_b32 v{V_A4}, 0x80008000
    v_min_u32 v{V_A0}, 13, v{V_TMP}
    v_mul_u32_u24 v{V_A1}, 14, v{V_TMP+1}
    v_add_lshl_u32 v{V_A0}, v{V_A0}, v{V_A1}, 4    ; (14q + min(n,13))*16
    s_mul_i32 s{S_T3}, s{S_T2}, {WBB}
    s_add_u32 s{S_Z}, s{S_T3}, {OFF_WB + w*7168}
    s_add_u32 s{S_Z+1}, s{S_Z}, 3584
    s_mov_b32 s{S_PB}, {OFF_PB + w*2560}
    s_mov_b32 s{S_MO}, {OFF_MEMI + SBS}
    s_mov_b32 s{S_ZP}, {OFF_MEMG + nsteps*SCS}
    s_mov_b32 s{S_MG}, {OFF_MEMG + 2048*w}
    s_cmp_eq_u32 s{S_T2}, 0
    s_cselect_b32 s{S_T0}, 0, {OOB}
    s_cmp_eq_u32 s{S_T2}, {1 if w != 3 else 99}
    s_cselect_b32 s{S_T1}, 0, {OOB}
    v_or_b32 v{V_A1}, s{S_T0}, v{V_L16}
    v_or_b32 v{V_A7}, s{S_T1}, v{V_L16}
    ''')
    o('s_waitcnt vmcnt(0)')
    for t in range(7):
        for z in zero4(acc(t)):
            o(z)
    ZM = [V_MK, V_MK + 8]
    o(f'''
    v_mov_b32 v{V_MEMF}, -1
    v_mov_b32 v{V_MEMF+1}, -1
    v_mov_b32 v{V_MEMF+2}, 0
    ds_write_b64 v{V_A3}, {vr(V_MEMF,2)} offset:{L_SP + 512*w}
    ds_write_b64 v{V_A3}, {vr(V_MEMF,2)} offset:{L_SP + 2048 + 512*w}
    v_lshrrev_b32 v{V_TMP}, 1, v{V_A3}
    ds_write_b32 v{V_TMP}, v{V_MEMF+2} offset:{L_TIMG + w*2048 + 1792}
    s_waitcnt lgkmcnt(0)
    ''')
    if CFG['hu']:
        o(f'''
        s_lshl_b32 s{S_T0}, s{S_T2}, 4
        s_add_u32 s{S_T0}, s{S_T0}, {4*w}
        v_cmp_eq_u32 vcc, 0, v0
        v_mov_b32 v{V_TMP}, s{S_T0}
        v_mov_b32 v{V_TMP+1}, {OOB}
        v_cndmask_b32 v0, v{V_TMP+1}, v{V_TMP}, vcc
        ''')
        if w == 3:
            o(f'''
            v_lshlrev_b32 v{V_A5}, 3, v{V_L16}
            v_min_u32 v{V_A5}, {22*128}, v{V_A5}
            s_mul_i32 s{S_TOUCH}, s{S_T2}, {23*128}
            s_add_u32 s{S_TOUCH}, s{S_TOUCH}, {OFF_SB + 2*SBS}
            ''')
    if CFG.get('now'):
        for r in range(32): o(zero(V_XK + r))
    for z in zero4(V_MK + 4) + zero4(V_MK + 12):
        o(z)
    if CFG['diag']: o('s_memrealtime s[70:71]\ns_memtime s[80:81]\ns_mov_b32 s76, 0')
    for _ in range(CFG['dBm']):
        mem_issue(o)
    LOOP = o.new('LB')
    o.label(LOOP)
    Wr = lambda u, ct: V_XK + 16 * u + 8 * ct
    wl = []
    for hl in range(4):
        for ct in range(2):
            wl.append(f'buffer_load_dwordx4 {vr(Wr(hl>>1,ct)+4*(hl&1),4)}, v{V_A0}, {sr(S_WS,4)}, s{S_Z+(hl>>1)} offen offset:{(hl&1)*1792+ct*896} sc1')
    if CFG.get('now'): wl = ['s_nop 0'] * 8
    pub = f'buffer_store_dword v{V_KEEP}, v{V_A5}, {sr(S_WS,4)}, s{S_ZP} offen sc1'
    early = []
    pubs = [f'buffer_store_dwordx4 {vr(memf(0),4)}, v{V_A1}, {sr(S_WS,4)}, s{S_MG} offen sc1',
            f'buffer_store_dwordx4 {vr(memf(1),4)}, v{V_A7}, {sr(S_WS,4)}, s{S_MG} offen offset:1024 sc1']
    vs = CFG['vs']
    pos = [(w if vs > 2 else 0) + vs * i for i in range(8)]
    nh = 14 - CFG['nbarB']
    f2 = {g: [x] for g, x in zip(pos, wl) if g < nh}
    if CFG['hu'] and w == 3:
        f2.setdefault(1, []).append(f'buffer_load_dword v{V_KEEP}, v{V_A5}, {sr(S_WS,4)}, s{S_TOUCH} offen')
    LFW, LFB = o.new('Lfw'), o.new('Lfb')
    def chk():
        if CFG['flags']:
            o(f's_bitcmp1_b64 {sr(S_FM,2)}, s{S_STEP}')
            o(f's_cbranch_scc0 {LFW}')
            o.label(LFB)
    poll_and_head(o, w, exit_label, [], f2, stamps, early, chk, CFG['dBm'], CFG['nbarB'])
    o('s_waitcnt lgkmcnt(0)')
    D = [memf(0), memf(1)]
    ex = {}
    ex[5] = [zero_ds(D[0])]
    ex[6] = [zero_ds(D[1])]
    if CFG['flags']:
        ex[31] = [f'v_lshrrev_b32 v{V_TMP+1}, 2, v{V_L16}', f'buffer_load_dword v{V_JUNK}, v{V_TMP+1}, {sr(S_WS,4)}, s{S_FA} offen sc1']
    for g, x in zip(pos, wl):
        if g >= nh:
            ex.setdefault(g - nh, []).append(x)
    LPB = o.new('Lpub')
    ex.setdefault(2, []).extend([f's_cmp_gt_u32 s{S_T2}, 1', f's_cbranch_scc1 {LPB}', pubs[0], pubs[1], f'{LPB}:'])
    sal = [f's_add_u32 s{S_M0}, s{S_M0}, {SBS}', f's_add_u32 s{S_M1}, s{S_M1}, {SBS}', f's_add_u32 s{S_STEP}, s{S_STEP}, 1', f's_add_u32 s{S_MG}, s{S_MG}, {SCS}', f's_add_u32 s{S_TOUCH}, s{S_TOUCH}, {SBS}']
    for i, v in enumerate(sal):
        ex.setdefault(i, []).append(v)
    main, fill = tile_phase(ex)
    if CFG.get('bslow'):
        for g in range(35):
            fill.setdefault(g, []).append(f's_nop {CFG["bslow"]}')
    if CFG.get('bskip'):
        main = ['s_nop 3'] * 35
    merge(o, main, fill)
    o('s_nop 7')
    for p in post(6):
        o(p)
    o(f'ds_read_b128 {vr(ZM[0],4)}, v{V_TR}')
    o(f'ds_read_b128 {vr(ZM[1],4)}, v{V_TR} offset:224')
    P = memf(2)
    V_NEG = memf(6)
    if w < 2 and CFG['nwB']:
        o(f'v_mov_b32 v{V_NEG}, -1\nv_mov_b32 v{V_NEG+1}, -1')
    def p_issue():
        o(f'buffer_load_dwordx4 {vr(P,4)}, v{V_L16}, {sr(S_WS,4)}, s{S_PB} offen sc1')
        o(f'buffer_load_dwordx4 {vr(P+4,4)}, v{V_L16}, {sr(S_WS,4)}, s{S_PB} offen offset:1024 sc1')
        o(f'buffer_load_dwordx4 {vr(P+8,4)}, v{V_A2}, {sr(S_WS,4)}, s{S_PB} offen offset:2048 sc1')
    o(f's_add_u32 s{S_Z}, s{S_Z}, {WBS}')
    o(f's_add_u32 s{S_Z+1}, s{S_Z+1}, {WBS}')
    o('s_waitcnt lgkmcnt(0)')
    stamp(o, 1, stamps)
    if CFG.get('steplog') == 2:
        o(f's_memtime s[78:79]\ns_waitcnt vmcnt(0)\ns_memtime s[76:77]\ns_waitcnt lgkmcnt(0)\ns_sub_u32 s78, s76, s78\ns_mov_b32 m0, s{S_STEP}\ns_nop 0\nv_writelane_b32 v0, s78, m0')
    pause(o, CFG['gapB'], 93)
    trace(o, True)
    zs = [z for t in range(7) for z in zero4(acc(t))]
    def zz(n):
        for _ in range(n):
            if zs:
                o(zs.pop(0))
                o(f's_nop {CFG["zn"]}')
    if CFG['prog']:
        pl = [f'buffer_load_dwordx4 {vr(P,4)}, v{V_L16}, {sr(S_WS,4)}, s{S_PB} offen sc1',
              f'buffer_load_dwordx4 {vr(P+4,4)}, v{V_L16}, {sr(S_WS,4)}, s{S_PB} offen offset:1024 sc1',
              f'buffer_load_dwordx4 {vr(P+8,4)}, v{V_A2}, {sr(S_WS,4)}, s{S_PB} offen offset:2048 sc1']
        if CFG['pbar']:
            o('s_barrier')
        pq = CFG['pq']
        zz(28 - 5 * pq)
        for i in range(6):
            o(pl[i % 3])
            zz(pq)
    else:
        zz(28 - CFG['spP'] - CFG['zb'])
        p_issue()
        zz(CFG['spP'])
        p_issue()
        zz(28)
        if CFG['dP'] == 3:
            pause(o, 3); p_issue()
    LP, OK = o.new('Lpp'), o.new('Lok')
    T0, T1 = V_TMP, V_TMP + 1
    o(f's_branch {OK}')
    o.label(LP)
    if CFG['mask']:
        o('s_mov_b64 exec, vcc')
    p_issue()
    if CFG['mask']:
        o('s_mov_b64 exec, -1')
    o(f's_sub_u32 s{S_BUD}, s{S_BUD}, 1')
    o(f's_cbranch_scc1 {exit_label}')
    Y = V_XK if not CFG.get('now') else memf(5)
    if CFG['prog']:
        o('s_nop 2')
        for z in zero4(D[0]) + zero4(D[1]):
            o(z)
        o.label(OK)
        ops = [(vr(Wr(0, 0), 8), vr(Wr(0, 1), 8)), (vr(Wr(1, 0), 8), vr(Wr(1, 1), 8)), (vr(ZM[0], 8), vr(ZM[1], 8))]
        for i in range(3):
            p = P + 4 * i
            o(f's_waitcnt vmcnt({5-i})')
            if i == 2:
                stamp(o, 2, stamps)
            if i == 0:
                o(f'v_or_b32 v{T0}, v{p}, v{p+1}')
            else:
                o(f'v_or3_b32 v{T0}, v{T0}, v{p}, v{p+1}')
            o(f'v_or3_b32 v{T0}, v{T0}, v{p+2}, v{p+3}')
            o(SM(D[0], p, ops[i][0]))
            if i == 2:
                o(f'v_and_b32 v{T0}, v{T0}, v{V_A4}')
            o(SM(D[1], p, ops[i][1]))
        o(f'v_cmp_ne_u32 vcc, 0, v{T0}')
        o(f's_cmp_eq_u32 s{S_MODE}, 1')
        o('s_nop 0')
        o(f's_cbranch_vccnz {LP}')
        stamp(o, 7, stamps)
        o(f'v_add_f32 v{Y}, v{D[0]}, v{D[0]+2}')
        o(f'v_add_f32 v{Y+2}, v{D[0]+1}, v{D[0]+3}')
        o('s_nop 1')
        o(f'v_add_f32 v{Y+1}, v{D[1]}, v{D[1]+2}')
        o(f'v_add_f32 v{Y+3}, v{D[1]+1}, v{D[1]+3}')
    else:
        sp = CFG['specB']
        if sp:
            o('s_nop 2')
            for z in zero4(D[0]):
                o(z)
        o.label(OK)
        dq = 3 * (CFG['dP'] - 1)
        o(f's_waitcnt vmcnt({dq+2})')
        o(f'v_or3_b32 v{T0}, v{P}, v{P+1}, v{P+2}')
        o(f's_waitcnt vmcnt({dq+1})')
        o(f'v_or3_b32 v{T1}, v{P+4}, v{P+5}, v{P+6}')
        o(f'v_or3_b32 v{T0}, v{T0}, v{P+3}, v{P+7}')
        if sp: o(SM(D[0], P, vr(Wr(0, 0), 8)))
        o(f's_waitcnt vmcnt({dq})')
        trace(o)
        stamp(o, 2, stamps)
        o(f'v_or3_b32 v{T1}, v{T1}, v{P+8}, v{P+9}')
        o(f'v_or3_b32 v{T0}, v{T0}, v{P+10}, v{P+11}')
        if sp: o(SM(D[0], P + 4, vr(Wr(1, 0), 8)))
        o(f'v_bitop3_b32 v{T0}, v{T0}, v{T1}, v{V_A4} bitop3:0xa8')
        o(f'v_cmp_ne_u32 vcc, 0, v{T0}')
        if sp: o(SM(D[0], P + 8, vr(ZM[0], 8)))
        o(f's_cbranch_vccnz {LP}')
        if not sp:
            o(SM(D[0], P, vr(Wr(0, 0), 8)))
            o(SM(D[0], P + 4, vr(Wr(1, 0), 8)))
            o(SM(D[0], P + 8, vr(ZM[0], 8)))
        o(SM(D[1], P, vr(Wr(0, 1), 8)))
        if CFG['hu'] and CFG['hp'] == 0:
            o(f'buffer_store_dword v{V_MK+4}, v0, {sr(S_WS,4)}, s{S_HU} offen')
        o(SM(D[1], P + 4, vr(Wr(1, 1), 8)))
        o(SM(D[1], P + 8, vr(ZM[1], 8)))
        stamp(o, 7, stamps)
        o(f'v_add_f32 v{Y}, v{D[0]}, v{D[0]+2}')
        o(f'v_add_f32 v{Y+2}, v{D[0]+1}, v{D[0]+3}')
        o(f's_cmp_eq_u32 s{S_MODE}, 1')
        if CFG['hu'] and CFG['hp'] == 1:
            o(f'buffer_store_dword v{V_MK+4}, v0, {sr(S_WS,4)}, s{S_HU} offen')
            o('s_nop 3')
        else:
            o('s_nop 4')
        o(f'v_add_f32 v{Y+1}, v{D[1]}, v{D[1]+2}')
        o(f'v_add_f32 v{Y+3}, v{D[1]+1}, v{D[1]+3}')

    if w == 0:
        o(f'ds_write_b64 v{V_A3}, {vr(Y+2,2)} offset:{L_SP + 2048}')
    elif w == 1:
        o(f'ds_write_b64 v{V_A3}, {vr(Y,2)} offset:{L_SP + 512}')
    else:
        o(f'ds_write_b64 v{V_A3}, {vr(Y,2)} offset:{L_SP + 512*w}')
        o(f'ds_write_b64 v{V_A3}, {vr(Y+2,2)} offset:{L_SP + 2048 + 512*w}')
    if not CFG['nwB']: o('s_waitcnt lgkmcnt(0)')
    stamp(o, 8, stamps)
    o('s_barrier')
    stamp(o, 9, stamps)
    L1, L2 = o.new('Ls'), o.new('Ls')
    if w < 2:
        R = Y + 4
        own = Y + 2 * w
        srcs = [x for x in range(4) if x != w]
        for i, sw in enumerate(srcs):
            o(f'ds_read_b64 {vr(R+2*i,2)}, v{V_A3} offset:{L_SP + 2048*w + 512*sw}')
        LSL, LSB = o.new('Lrs'), o.new('Lrb')
        SU = R + 6
        rds = [f'ds_read_b64 {vr(R+2*i,2)}, v{V_A3} offset:{L_SP + 2048*w + 512*sw}' for i, sw in enumerate(srcs)]
        arms = [f'ds_write_b64 v{V_A3}, {vr(V_NEG,2)} offset:{L_SP + 2048*w + 512*sw}' for sw in srcs]
        for i in range(3):
            o('s_waitcnt lgkmcnt(%d)' % (0 if stamps else 2 - i))
            o(f'v_pk_add_f32 {vr(SU,2)}, {vr(own if i == 0 else SU,2)}, {vr(R+2*i,2)}')
        if CFG['nwB']:
            o(f'v_cmp_u_f32 vcc, v{SU}, v{SU+1}')
            o(f'v_cvt_pk_bf16_f32 v{V_KEEP}, v{SU}, v{SU+1}')
            o(f's_cbranch_scc1 {L1}')
            o(f'v_cndmask_b32 v{V_KEEP}, v{V_KEEP}, v{V_NEG}, vcc')
        else:
            o(f'v_cvt_pk_bf16_f32 v{V_KEEP}, v{SU}, v{SU+1}')
            o(f'v_min_u32 v{V_KEEP}, 0xfffffffe, v{V_KEEP}')
            o(f's_cbranch_scc1 {L1}')
        o(f'buffer_store_dword v{V_KEEP}, v{V_A5}, {sr(S_WS,4)}, s{S_MO} offen')
        o.label(L2)
        if CFG['nwB']:
            o(f's_cbranch_vccnz {LSL}')
            o.label(LSB)
            for a in arms:
                o(a)
    elif w == 2 and CFG['trkB']:
        for i in range(CFG['trkB']):
            o(f'v_mov_b32 v{V_TMP}, 0\ns_nop 3')
    elif not CFG['hu']:
        pause(o, 6)
    stamp(o, 3, stamps)
    LAST = o.new('Llast')
    if CFG['flags']:
        o(f'v_cmp_ne_u32 {sr(S_FM,2)}, 0, v{V_JUNK}')
    o(f's_cmp_ge_u32 s{S_STEP}, {nsteps}')
    o(f's_cbranch_scc1 {LAST}')
    o(f's_add_u32 s{S_MO}, s{S_MO}, {SBS}')
    o(f's_add_u32 s{S_PB}, s{S_PB}, {SBS}')
    if CFG['hu']:
        if w == 2:
            o(f'v_lshrrev_b32 v{V_TMP+1}, 2, v{V_L16}')
        heads_up_wait(o, w, V_TMP + 1, exit_label, 0, None)
    pause(o, CFG['gapB2'], 94)
    mem_issue(o)
    for _ in range(CFG['dBm'] - 1):
        pause(o, CFG['sp'])
        mem_issue(o)
    o(f's_branch {LOOP}')
    if w < 2:
        o.label(L1)
        if CFG['nwB']:
            o(f'v_cndmask_b32 v{V_KEEP}, v{V_KEEP}, v{V_NEG}, vcc')
        o(f'buffer_store_dword v{V_KEEP}, v{V_A5}, {sr(S_WS,4)}, s{S_MO} offen sc1')
        o(f's_branch {L2}')
        if CFG['nwB']:
            LS2 = o.new('Lr2')
            o.label(LSL)
            for r in rds:
                o(r)
            o(f's_sub_u32 s{S_BUD}, s{S_BUD}, 1')
            o(f's_cbranch_scc1 {exit_label}')
            o('s_waitcnt vmcnt(0) lgkmcnt(0)')
            o(f'v_max3_u32 v{V_TMP}, v{R}, v{R+1}, v{R+2}')
            o(f'v_max3_u32 v{V_TMP}, v{V_TMP}, v{R+3}, v{R+4}')
            o(f'v_max_u32 v{V_TMP}, v{V_TMP}, v{R+5}')
            o(f'v_cmp_eq_u32 vcc, -1, v{V_TMP}')
            o(f's_cbranch_vccnz {LSL}')
            for i in range(3):
                o(f'v_pk_add_f32 {vr(SU,2)}, {vr(own if i == 0 else SU,2)}, {vr(R+2*i,2)}')
            o(f'v_cvt_pk_bf16_f32 v{V_KEEP}, v{SU}, v{SU+1}')
            o(f'v_min_u32 v{V_KEEP}, 0xfffffffe, v{V_KEEP}')
            o(f's_cmp_eq_u32 s{S_MODE}, 1')
            o(f's_cbranch_scc1 {LS2}')
            o(f'buffer_store_dword v{V_KEEP}, v{V_A5}, {sr(S_WS,4)}, s{S_MO} offen')
            o(f's_branch {LSB}')
            o.label(LS2)
            o(f'buffer_store_dword v{V_KEEP}, v{V_A5}, {sr(S_WS,4)}, s{S_MO} offen sc1')
            o(f's_branch {LSB}')
    if CFG['flags']:
        o.label(LFW)
        flags_reload(o)
        o(f's_bitcmp1_b64 {sr(S_FM,2)}, s{S_STEP}')
        o(f's_cbranch_scc1 {LFB}')
        o(f's_sub_u32 s{S_BUD}, s{S_BUD}, 1')
        o(f's_cbranch_scc1 {exit_label}')
        o('s_sleep 2')
        o(f's_branch {LFW}')
    o.label(LAST)
    if w < 2:
        o(pub)
    o(f's_branch {exit_label}')

def team_common_setup(o, w):
    kk = [(j + 2 * w) % 7 for j in range(7)]
    o(f'''
    v_lshlrev_b32 v{V_L16}, 4, v0
    v_mov_b32 v{V_IDX}, 0x44444444
    v_mov_b32 v{V_TMP}, 0xeeeeeeee
    v_and_b32 v{V_TMP+1}, 2, v0
    v_cmp_ne_u32 vcc, 0, v{V_TMP+1}
    s_nop 1
    v_cndmask_b32 v{V_IDX}, v{V_IDX}, v{V_TMP}, vcc
    v_mov_b32 v{V_TMP}, 0
    v_lshlrev_b32 v{V_TMP+1}, 2, v0
    ds_write_b32 v{V_TMP+1}, v{V_TMP} offset:{L_ZERO + 256*w}
    s_mov_b32 s{S_STEP}, 0
    s_mov_b32 s{S_HU}, {OFF_HU}
    s_mov_b64 {sr(S_FM,2)}, 0
    s_and_b32 s{S_FA}, s{S_ROLE}, 15
    s_lshl_b32 s{S_FA}, s{S_FA}, 8
    s_add_u32 s{S_FA}, s{S_FA}, {OFF_FL}
    s_mov_b32 s{S_M0}, {OFF_MEMI + kk[0]*1024}
    s_mov_b32 s{S_M1}, {OFF_MEMI + kk[1]*1024}
    ''')

def gen_team_body(o, exit_label, nsteps=63, stamps=False):
    labs = {}
    for role in 'AB':
        for w in range(4):
            labs[role, w] = o.new(f'Lteam{role}{w}')
    LB = o.new('LteamB')
    o(f's_cmp_ge_u32 s{S_ROLE}, 16')
    o(f's_cbranch_scc1 {LB}')
    for role in 'AB':
        if role == 'B':
            o.label(LB)
        for w in range(1, 4):
            o(f's_cmp_eq_u32 s{S_W}, {w}')
            o(f's_cbranch_scc1 {labs[role,w]}')
        o(f's_branch {labs[role,0]}')
    for role in 'AB':
        for w in range(4):
            o.raw('.p2align 6')
            o.label(labs[role, w])
            team_common_setup(o, w)
            if role == 'A':
                gen_A(o, w, nsteps, stamps, exit_label)
            else:
                gen_B(o, w, nsteps, stamps, exit_label)
```

```python
from common import *

S_WS, S_DBG = 4, 12
S_W, S_ROLE, S_STEP, S_BUD = 16, 17, 18, 19
S_M0, S_M1 = 20, 21
S_T0, S_T1, S_T2, S_T3 = 22, 23, 24, 25
S_PB = 26
S_X0, S_X1 = 27, 28
S_Z = 30
S_MO = 35
S_MG = 36
S_MODE = 37
S_TOUCH = 38
S_ZP = 39
S_FM = 82
S_HU = 34
S_FA = 84
S_ST = 40

V_L16, V_IDX = 1, 2
V_TW, V_TR = 3, 4
V_A0, V_A1, V_A2, V_A3, V_A4, V_A5, V_A6, V_A7 = 5, 6, 7, 8, 9, 10, 11, 12
V_TMP = 13
V_MEMF = 16
V_ACC = 44
V_XK = 72
V_MK = 104
V_WT = 120

L_MEMS = 0
L_TIMG = 7424
L_SP = L_TIMG + 8192 + 256
L_ZERO = L_SP + 8192
L_END = L_ZERO + 1024

CFG = dict(nops=0, nwB=1, nbarB=9, prog=0, pq=4, pbar=1, pre=0, hu=0, hd=4, hs=12, hgA=20, hp=1, vs=2, w1g=2, nbar=10, split=0, nb=4, nw=4, sq=3, zn=1, za=4, zb=4, trk=8, wo0=0, wo1=1, wo2=1, wo3=0, ne=5, lg0=12, lgs=6, dP=2, spP=10, spec=1, specB=1, mask=0, dA=2, dBm=1, flags=0, diag=1, gapA=44, gapB=3, gapB2=13, sp=6, ahead=1, f1=3, f2=3, tw=1, tl=56, xg=(2, 6, 10, 14, 18))

def wreg(t, j):
    u = t * 7 + j
    return ar(8 * u, 8) if u < 32 else vr(V_WT + 8 * (u - 32), 8)
def wreg_half(t, j, hf):
    u = t * 7 + j
    return ar(8 * u + 4 * hf, 4) if u < 32 else vr(V_WT + 8 * (u - 32) + 4 * hf, 4)
def acc(t): return V_ACC + 4 * t
def memf(j): return V_MEMF + 4 * j
def SM(d, a, b): return f'v_smfmac_f32_16x16x64_bf16 {vr(d,4)}, {vr(a,4)}, {b}, v{V_IDX}'
def M(t, j): return SM(acc(t), memf(j), wreg(t, j))
def zero(r): return f'v_mov_b32 v{r}, 0'
def zero4(a): return [zero(a + i) for i in range(4)]

def zero_ds(a): return f'ds_read_b128 {vr(a,4)}, v{V_L16} offset:{L_ZERO}'
def pause(o, n, dyn=None):
    if dyn is not None and CFG.get('dyn'):
        L = o.new('Lpz')
        o(f's_mov_b32 s{S_T1}, s{dyn}')
        o.raw('.p2align 4')
        o(f'{L}:\ns_sub_u32 s{S_T1}, s{S_T1}, 1\ns_cbranch_scc0 {L}')
    if CFG.get('nops'):
        for _ in range(n // 4):
            o('s_nop 15')
    elif n >= 4:
        o(f's_sleep {n // 4}')
    if n % 4:
        o(f's_nop {4 * (n % 4) - 1}')

def post(t):
    a = acc(t)
    return [f'v_add_f32 v{a}, v{a}, v{a+2}', f'v_add_f32 v{a+1}, v{a+1}, v{a+3}',
            f'v_cvt_pk_bf16_f32 v{a}, v{a}, v{a+1}', f'ds_write_b32 v{V_TW}, v{a} offset:{t*256}']

def merge(o, main, fill):
    for i, m in enumerate(main):
        o(m)
        for f in fill.get(i, []):
            o(f)

LIGHT = None
MARK = False
VERIFY = None
def stamp(o, k, on):
    if MARK:
        o(f'; MARK {k}')
    if on or (LIGHT and k in LIGHT):
        o(f's_memtime {sr(S_ST+2*k,2)}')

def trace(o, reset=False):
    if CFG.get('trace'):
        if reset:
            o('s_mov_b32 s76, 0')
        o('s_memtime s[78:79]\ns_waitcnt lgkmcnt(0)\ns_mov_b32 m0, s76\ns_nop 0\nv_writelane_b32 v0, s78, m0\ns_add_u32 s76, s76, 1\ns_and_b32 s76, s76, 63')

def flags_reload(o):
    o(f'''
    v_lshrrev_b32 v{V_TMP+1}, 2, v{V_L16}
    buffer_load_dword v{V_TMP}, v{V_TMP+1}, {sr(S_WS,4)}, s{S_FA} offen sc1
    s_waitcnt vmcnt(0)
    v_cmp_ne_u32 {sr(S_FM,2)}, 0, v{V_TMP}
    s_nop 0
    ''')

def heads_up_wait(o, w, vl4, exit_label, gap, dyn):
    if w == 2:
        L, X = o.new('Lhu'), o.new('Lhx')
        ld = f'buffer_load_dword v{V_TMP}, v{vl4}, {sr(S_WS,4)}, s{S_HU} offen sc1'
        o(f's_cmp_eq_u32 s{S_MODE}, 1')
        o(f's_cbranch_scc1 {X}')
        pause(o, gap, dyn)
        for _ in range(CFG['hd'] - 1):
            o(ld)
            o(f's_nop {CFG["hs"]}')
        o.label(L)
        o(ld)
        o(f's_sub_u32 s{S_BUD}, s{S_BUD}, 1')
        o(f's_cbranch_scc1 {exit_label}')
        o(f's_waitcnt vmcnt({CFG["hd"]-1})')
        o(f'v_cmp_eq_u32 vcc, -1, v{V_TMP}')
        o(f's_cbranch_vccnz {L}')
        o.label(X)
    o('s_barrier')
    o(f's_add_u32 s{S_HU}, s{S_HU}, {SBS}')

def mem_issue(o):
    o(f'buffer_load_dwordx4 {vr(memf(0),4)}, v{V_L16}, {sr(S_WS,4)}, s{S_M0} offen sc1')
    o(f'buffer_load_dwordx4 {vr(memf(1),4)}, v{V_L16}, {sr(S_WS,4)}, s{S_M1} offen sc1')

def poll_and_head(o, w, exit_label, extra_reads, fill2, stamps, early=(), after_barrier=None, depth=2, nbar=7):
    kk = [(j + 2 * w) % 7 for j in range(7)]
    L, OK = o.new('Lpm'), o.new('Lok')
    m = memf(0)
    dp = depth
    o(f's_branch {OK}')
    o.label(L)
    if CFG['mask']:
        o('s_mov_b64 exec, vcc')
    mem_issue(o)
    if CFG['mask']:
        o('s_mov_b64 exec, -1')
    o(f's_sub_u32 s{S_BUD}, s{S_BUD}, 1')
    o(f's_cbranch_scc1 {exit_label}')
    if CFG['spec']:
        o('s_nop 2')
        for z in zero4(acc(0)) + zero4(acc(1)):
            o(z)
    o.label(OK)
    o(f's_waitcnt vmcnt({2*dp-1})')
    o(f'v_max3_u32 v{V_TMP}, v{m}, v{m+1}, v{m+2}')
    o(f's_waitcnt vmcnt({2*dp-2})')
    trace(o)
    stamp(o, 0, stamps)
    o(f'v_max3_u32 v{V_TMP+2}, v{m+4}, v{m+5}, v{m+6}')
    o(f'v_max3_u32 v{V_TMP}, v{m+3}, v{m+7}, v{V_TMP}')
    if CFG['spec']:
        o(M(0, 0))
    o(f'v_max_u32 v{V_TMP}, v{V_TMP}, v{V_TMP+2}')
    o(f'v_cmp_eq_u32 vcc, -1, v{V_TMP}')
    if CFG['spec']:
        o(M(1, 0))
        o(f'ds_write_b128 v{V_L16}, {vr(memf(0),4)} offset:{L_MEMS+kk[0]*1024}')
        o(f's_cbranch_vccnz {L}')
    else:
        o(f's_cbranch_vccnz {L}')
        o(M(0, 0))
        o(f'ds_write_b128 v{V_L16}, {vr(memf(0),4)} offset:{L_MEMS+kk[0]*1024}')
        o(M(1, 0))
    ms = [M(t, 0) for t in range(2, 7)] + [M(t, 1) for t in range(7)]
    for i in range(nbar - 2):
        o(ms.pop(0))
        if w != 3 and i == CFG['w1g']:
            o(f'ds_write_b128 v{V_L16}, {vr(memf(1),4)} offset:{L_MEMS+kk[1]*1024}')
        if i < len(early):
            o(early[i])
    o('s_waitcnt lgkmcnt(0)')
    stamp(o, 4, stamps)
    o('s_barrier')
    stamp(o, 5, stamps)
    rd = [f'ds_read_b128 {vr(memf(j),4)}, v{V_L16} offset:{L_MEMS+kk[j]*1024}' for j in range(2, 7)]
    o(rd[0])
    if nbar == 7:
        o(rd[1])
    if after_barrier:
        after_barrier()
    rest = rd[(2 if nbar == 7 else 1):] + extra_reads
    fill = {i: [r] for i, r in enumerate(rest[:len(ms)])}
    for k, v in fill2.items():
        fill.setdefault(k, []).extend(v)
    merge(o, ms, fill)
    stamp(o, 6, stamps)
    return rest[len(ms):]

def ld0(o): o(f'buffer_load_dwordx4 {vr(memf(0),4)}, v{V_L16}, {sr(S_WS,4)}, s{S_M0} offen sc1')
def ld1(o): o(f'buffer_load_dwordx4 {vr(memf(1),4)}, v{V_L16}, {sr(S_WS,4)}, s{S_M1} offen sc1')

def head_split(o, w, exit_label, extra_reads, tail_code, stamps, early):
    kk = [(j + 2 * w) % 7 for j in range(7)]
    L, OK, L1, OK1 = o.new('Lpm'), o.new('Lok'), o.new('Lp1'), o.new('Lok')
    m = memf(0)
    o(f's_branch {OK}')
    o.label(L)
    mem_issue(o)
    o(f's_sub_u32 s{S_BUD}, s{S_BUD}, 1')
    o(f's_cbranch_scc1 {exit_label}')
    o('s_nop 2')
    for z in zero4(acc(0)) + zero4(acc(1)):
        o(z)
    o.label(OK)
    o('s_waitcnt vmcnt(3)')
    trace(o)
    stamp(o, 0, stamps)
    o(f'v_max3_u32 v{V_TMP}, v{m}, v{m+1}, v{m+2}')
    o(f'v_max_u32 v{V_TMP}, v{V_TMP}, v{m+3}')
    o(M(0, 0))
    o(f'v_cmp_eq_u32 vcc, -1, v{V_TMP}')
    o(M(1, 0))
    o(f's_cbranch_vccnz {L}')
    o(M(2, 0))
    o(f'ds_write_b128 v{V_L16}, {vr(memf(0),4)} offset:{L_MEMS+kk[0]*1024}')
    nb = CFG['nb']
    for t in range(3, nb):
        o(M(t, 0))
    o('s_waitcnt vmcnt(2)')
    o(f'v_max3_u32 v{V_TMP}, v{m+4}, v{m+5}, v{m+6}')
    o(f'v_max_u32 v{V_TMP}, v{V_TMP}, v{m+7}')
    rest = [M(t, 0) for t in range(nb, 7)] + [M(t, 1) for t in range(7)]
    if w != 3:
        o(f'ds_write_b128 v{V_L16}, {vr(memf(1),4)} offset:{L_MEMS+kk[1]*1024}')
    o(rest.pop(0))
    o(f'v_cmp_eq_u32 vcc, -1, v{V_TMP}')
    o(rest.pop(0))
    o(f's_cbranch_vccnz {L1}')
    o.label(OK1)
    for i in range(CFG['nw']):
        o(rest.pop(0))
        if i < len(early):
            o(early[i])
    o('s_waitcnt lgkmcnt(0)')
    stamp(o, 4, stamps)
    o('s_barrier')
    stamp(o, 5, stamps)
    rd = [f'ds_read_b128 {vr(memf(j),4)}, v{V_L16} offset:{L_MEMS+kk[j]*1024}' for j in range(2, 7)] + extra_reads
    o(rd.pop(0))
    o(rd.pop(0))
    for x in rest:
        o(x)
        if rd:
            o(rd.pop(0))
    stamp(o, 6, stamps)
    def slow():
        o.label(L1)
        o('s_waitcnt vmcnt(0)')
        o(f'v_max3_u32 v{V_TMP}, v{m+4}, v{m+5}, v{m+6}')
        o(f'v_max_u32 v{V_TMP}, v{V_TMP}, v{m+7}')
        if w != 3:
            o(f'ds_write_b128 v{V_L16}, {vr(memf(1),4)} offset:{L_MEMS+kk[1]*1024}')
        o(f'v_cmp_eq_u32 vcc, -1, v{V_TMP}')
        o(f's_cbranch_vccz {OK1}')
        ld1(o)
        o(f's_sub_u32 s{S_BUD}, s{S_BUD}, 1')
        o(f's_cbranch_scc1 {exit_label}')
        o(f's_branch {L1}')
    tail_code.append(slow)
    return rd

def load_weights(o, w, isA):
    kk = [(j + 2 * w) % 7 for j in range(7)]
    n = 0
    for t in range(7):
        voff = V_L16
        base = (7 * w + t) * 14336
        for j in range(7):
            o(f's_add_u32 s{S_T1}, s{S_T0}, {base + kk[j]*2048}')
            for hf in range(2):
                o(f'buffer_load_dwordx4 {wreg_half(t,j,hf)}, v{voff}, {sr(S_WS,4)}, s{S_T1} offen offset:{hf*1024}')
                n += 1
            if n % 14 == 0 and n >= 42:
                o('s_waitcnt vmcnt(40)')

def xkey_loads(w):
    r = []
    for kt in range(2):
        for ks in range(2):
            for hf in range(2):
                d = V_XK + kt * 16 + ks * 8 + hf * 4
                va = V_A1 if (ks == 1 and hf == 1) else V_L16
                r.append(f'buffer_load_dwordx4 {vr(d,4)}, v{va}, {sr(S_WS,4)}, s{S_X0+kt} offen offset:{(8*ks+4*hf)*256}')
    return r

def tile_phase(extra):
    main, fill = [], {}
    for t in range(7):
        for j in range(2, 7):
            main.append(M(t, j))
    for t in range(6):
        p = post(t)
        b = 5 * (t + 1)
        fill.setdefault(b + 2, []).append(p[0])
        fill.setdefault(b + 3, []).append(p[1])
        fill.setdefault(b + 4, []).append(p[2])
        fill.setdefault(min(b + 5, 34), []).append(p[3])
    for k, v in extra.items():
        fill.setdefault(k, []).extend(v)
    return main, fill

def gen_A(o, w, nsteps, stamps, exit_label):
    o(f'''
    v_and_b32 v{V_TMP}, 15, v0                 ; n
    v_lshrrev_b32 v{V_TMP+1}, 4, v0            ; q
    v_and_b32 v{V_TMP+2}, 1, v{V_TMP+1}        ; q&1
    v_and_b32 v{V_A1}, 0x1f0, v{V_L16}         ; (l&31)*16
    v_lshrrev_b32 v{V_TW}, 2, v{V_TMP}
    v_lshlrev_b32 v{V_TW}, 6, v{V_TW}
    v_and_b32 v{V_A0}, 1, v0
    v_lshl_add_u32 v{V_TW}, v{V_A0}, 5, v{V_TW}
    v_lshl_add_u32 v{V_TW}, v{V_TMP+1}, 3, v{V_TW}
    v_bfe_u32 v{V_A0}, v0, 1, 1
    v_lshl_add_u32 v{V_TW}, v{V_A0}, 2, v{V_TW}
    v_add_u32 v{V_TW}, {L_TIMG + w*2048}, v{V_TW}
    v_lshlrev_b32 v{V_TR}, 8, v{V_TMP+1}
    v_lshl_add_u32 v{V_TR}, v{V_TMP}, 3, v{V_TR}
    v_add_u32 v{V_TR}, {L_TIMG + w*2048}, v{V_TR}
    ; (q>>1)*256 + (4*(j>>1) + 2*(q&1) + (j&1))*16
    v_bfe_u32 v{V_A2}, v0, 1, 1
    v_lshlrev_b32 v{V_A2}, 7, v{V_A2}
    v_bfe_u32 v{V_A0}, v0, 2, 1
    v_lshl_add_u32 v{V_A2}, v{V_A0}, 6, v{V_A2}
    v_lshl_add_u32 v{V_A2}, v{V_TMP+2}, 5, v{V_A2}
    v_and_b32 v{V_A0}, 1, v0
    v_lshl_add_u32 v{V_A2}, v{V_A0}, 4, v{V_A2}
    v_lshrrev_b32 v{V_A0}, 5, v0
    v_lshl_add_u32 v{V_A2}, v{V_A0}, 8, v{V_A2}
    v_lshlrev_b32 v{V_A0}, 6, v{V_TMP+1}
    v_bfe_u32 v{V_A3}, v0, 2, 1
    v_lshl_add_u32 v{V_A0}, v{V_A3}, 5, v{V_A0}
    v_add_u32 v{V_A0}, {(w&1)*16}, v{V_A0}
    v_lshrrev_b32 v{V_A3}, 3, v{V_TMP}
    v_lshl_add_u32 v{V_A6}, v{V_A3}, 8, v{V_A0}
    v_and_b32 v{V_A3}, 3, v0
    v_lshl_add_u32 v{V_A6}, v{V_A3}, 2, v{V_A6}
    v_lshl_add_u32 v{V_A7}, v{V_A3}, 1, v{V_A0}
    s_and_b32 s{S_T2}, s{S_ROLE}, 3
    s_lshl_b32 s{S_T3}, s{S_T2}, 9
    v_add_u32 v{V_A6}, s{S_T3}, v{V_A6}
    s_lshr_b32 s{S_T3}, s{S_T2}, 1
    s_lshl_b32 s{S_T3}, s{S_T3}, 8
    s_and_b32 s{S_T2}, s{S_T2}, 1
    s_lshl_b32 s{S_T2}, s{S_T2}, 3
    s_add_u32 s{S_T3}, s{S_T3}, s{S_T2}
    v_add_u32 v{V_A7}, s{S_T3}, v{V_A7}
    s_lshr_b32 s{S_PB}, s{S_ROLE}, 2
    s_mul_i32 s{S_PB}, s{S_PB}, 2560
    s_add_u32 s{S_PB}, s{S_PB}, {OFF_PB}
    v_lshlrev_b32 v{V_A4}, 3, v0
    v_mov_b32 v{V_A5}, 0
    v_mov_b32 v{V_TMP}, 0
    v_lshlrev_b32 v{V_TMP+1}, 2, v0
    ds_write_b32 v{V_TMP+1}, v{V_TMP} offset:{L_TIMG + w*2048 + 1792}
    ds_write_b32 v{V_TMP+1}, v{V_TMP} offset:{L_MEMS + 7168}
    s_mul_i32 s{S_T0}, s{S_ROLE}, {HSZ}
    s_add_u32 s{S_T0}, s{S_T0}, {OFF_AF}
    v_lshlrev_b32 v{V_A3}, 7, v0
    v_min_u32 v{V_A0}, {22*128}, v{V_A3}
    s_mul_i32 s{S_Z}, s{S_ROLE}, {23*128}
    s_add_u32 s{S_Z}, s{S_Z}, {OFF_SB + SBS*(2 if CFG['hu'] else 1)}
    s_mul_i32 s{S_TOUCH}, s{S_ROLE}, {WBB}
    s_add_u32 s{S_TOUCH}, s{S_TOUCH}, {OFF_WB + w*128}
    v_min_u32 v{V_A3}, {(CFG['tl']-1)*128}, v{V_A3}
    v_lshlrev_b32 v{V_A3}, 2, v{V_A3}
    s_mov_b32 s{S_X0}, {OFF_XN + 14*w*256}
    s_mov_b32 s{S_X1}, {OFF_XN + 14*w*256 + 14336}
    ''')
    if CFG['pre'] and w >= 2:
        o(f's_sub_u32 s{S_T1}, s{S_Z}, {SBS*(3-w)}')
        o(f'buffer_load_dword v{V_TMP+2}, v{V_A0}, {sr(S_WS,4)}, s{S_T1} offen')
    load_weights(o, w, True)
    if VERIFY: VERIFY(o, V_ACC)
    V_L4 = V_A5 if w >= CFG['tw'] else V_TMP + 1
    if w < 2:
        o(f'v_and_b32 v{V_A0}, 0x37, v0\nv_lshlrev_b32 v{V_A0}, 2, v{V_A0}\nv_add_u32 v{V_A0}, {L_SP + 4096 + 32*w}, v{V_A0}')
    o(f'v_lshlrev_b32 v{V_L4}, 2, v0')
    for t in range(7):
        for z in zero4(acc(t)):
            o(z)
    o('s_waitcnt vmcnt(0) lgkmcnt(0)')
    if CFG['diag']: o('s_memrealtime s[70:71]\ns_memtime s[80:81]\ns_mov_b32 s76, 0')
    for _ in range(CFG['dA']):
        mem_issue(o)
    LOOP = o.new('LA')
    o.label(LOOP)
    mkr = []
    for ks in range(2):
        for hf in range(2):
            mkr.append(f'ds_read_b128 {vr(V_MK+ks*8+hf*4,4)}, v{V_A2} offset:{L_MEMS+(7*w+4*ks+2*hf)*256}')
    xl = xkey_loads(w)
    xl = [xl[0], xl[1], xl[4], xl[5], xl[2], xl[3], xl[6], xl[7]]
    if CFG.get('nox'): xl = ['s_nop 0'] * 8
    tail_code = []
    TF0, TF1 = acc(1), acc(2)
    SA = [memf(0), memf(1), acc(0)]
    if CFG['split']:
        left = head_split(o, w, exit_label, mkr, tail_code, stamps, xl[:2])
        assert len(left) <= 4
        o('s_waitcnt lgkmcnt(%d)' % (0 if stamps else 4 - len(left) + 3))
        extra = {}
        free = [0, 2, 3, 4, 5, 6, 11, 16, 10, 15]
        seq = [xl[2]] + left[:1] + [xl[3]] + left[1:] + [xl[4], xl[5], xl[6], xl[7]]
        for g, x in zip(free, seq):
            extra.setdefault(g, []).append(x)
        extra[1] = ['s_waitcnt lgkmcnt(%d)' % (0 if stamps else 4 - len(left))]
        extra.setdefault(20, []).append('s_waitcnt vmcnt(8)')
        extra.setdefault(21, []).append(zero_ds(SA[0]))
        extra.setdefault(25, []).append(zero_ds(SA[1]))
        extra.setdefault(26, []).append(f'ds_read_b64_tr_b16 {vr(TF0,2)}, v{V_TR}')
        extra.setdefault(30, []).append(zero_ds(SA[2]))
        extra.setdefault(31, []).append(f'ds_read_b64_tr_b16 {vr(TF0+2,2)}, v{V_TR} offset:128')
    else:
        nbar = CFG['nbar']
        early = [''] * (nbar - 2)
        for g, x in zip([g for g in range(nbar - 3) if g != CFG['w1g']][-4:], xl):
            early[g] = x
        sbt = (lambda: o(f'buffer_load_dword v{V_A6}, v{V_A0}, {sr(S_WS,4)}, s{S_Z} offen')) if False else None
        left = poll_and_head(o, w, exit_label, [], {}, stamps, early, sbt, CFG['dA'], nbar)
        nl = len(left)
        o(f's_waitcnt lgkmcnt({4 - nl})')
        extra = {}
        out = 4 - nl
        for g in range(4):
            extra[g] = []
            if left:
                extra[g].append(left.pop(0)); out += 1
            out -= 1
            if g in (0, 1, 3) or nl:
                extra[g].append(f's_waitcnt lgkmcnt({max(out - (1 if g == 1 and not nl else 0), 0)})')
        extra[2].append(xl[4])
        extra.update({4: [mkr[0]], 5: [xl[5]], 6: [mkr[1]], 11: [xl[6]], 16: [xl[7]], 10: [mkr[2]], 15: [mkr[3]],
                      20: ['s_waitcnt vmcnt(%d)' % (9 if sbt else 8)], 21: [zero_ds(SA[0])], 25: [zero_ds(SA[1])], 30: [zero_ds(SA[2])],
                      26: [f'ds_read_b64_tr_b16 {vr(TF0,2)}, v{V_TR}'], 31: [f'ds_read_b64_tr_b16 {vr(TF0+2,2)}, v{V_TR} offset:128']})
    main, fill = tile_phase(extra)
    merge(o, main, fill)
    stamp(o, 12, stamps)
    keys = lambda kt, ks: vr(V_XK + kt * 16 + ks * 8, 8) if kt < 2 else vr(V_MK + ks * 8, 8)
    o('s_waitcnt vmcnt(%d) lgkmcnt(%d)' % (4, 0 if stamps else 1))
    o(SM(SA[0], TF0, keys(0, 0)))
    o(SM(SA[1], TF0, keys(1, 0)))
    p6 = post(6)
    o(p6[0]); o(p6[1]); o(p6[2]); o(p6[3])
    o(f'ds_read_b64_tr_b16 {vr(TF1,2)}, v{V_TR} offset:1024')
    o(f'ds_read_b64_tr_b16 {vr(TF1+2,2)}, v{V_TR} offset:1152')
    o(SM(SA[2], TF0, keys(2, 0)))
    stamp(o, 7, stamps)
    for z in zero4(acc(5))[:CFG['f1']]:
        o('s_nop 1')
        o(z)
    o('s_waitcnt vmcnt(0) lgkmcnt(0)')
    stamp(o, 8, stamps)
    Y = [acc(3), acc(4)]
    for kt in range(3):
        o(SM(SA[kt], TF1, keys(kt, 1)))
    first = 1 - (w & 1)
    plane = lambda par, src: L_SP + (par * 4 + src) * 512
    add = lambda par, kt: o(f'v_add_f32 v{Y[par]+kt}, v{SA[kt]+par}, v{SA[kt]+2+par}')
    o(f's_cmp_eq_u32 s{S_MODE}, 1')
    add(first, 0); add(1 - first, 0)
    o('s_nop 1')
    add(first, 1)
    o(f'ds_write_b64 v{V_A4}, {vr(Y[first],2)} offset:{plane(first, w)}')
    add(1 - first, 1)
    if w >= 2:
        o(f'ds_write_b64 v{V_A4}, {vr(Y[1-first],2)} offset:{plane(1-first, w)}')
    for par in range(2):
        o(f'v_add_f32_dpp v{Y[0]+2}, v{SA[2]+par}, v{SA[2]+2+par} quad_perm:[0,1,2,3] row_mask:0xf bank_mask:{(3, 12)[par]}')
    o(f'ds_write_b32 v{V_L4}, v{Y[0]+2} offset:{L_SP + 4096 + 256*w}')
    for z in zero4(acc(6))[:CFG['f2']]:
        o('s_nop 2')
        o(z)
    if not CFG.get('nwA'): o('s_waitcnt lgkmcnt(0)')
    stamp(o, 13, stamps)
    o('s_barrier')
    stamp(o, 9, stamps)
    L1, L2 = o.new('Ls'), o.new('Ls')
    SLOW, BACK = o.new('Lslow'), o.new('Lback')
    R = memf(2)
    E = memf(5)
    s0, s1, s2 = Y[w & 1], Y[w & 1] + 1, Y[w & 1] + 2
    if w < 2:
        u = (L_SP >> 9) + 4 * w
        o(f'ds_read2st64_b64 {vr(R,4)}, v{V_A4} offset0:{u+2} offset1:{u+3}')
        o(f'ds_read_b64 {vr(R+4,2)}, v{V_A4} offset:{plane(w, 1-w)}')
        o(f'ds_read2st64_b32 {vr(R+6,2)}, v{V_A0} offset0:0 offset1:1')
        o(f'ds_read2st64_b32 {vr(R+8,2)}, v{V_A0} offset0:2 offset1:3')
        o('s_waitcnt lgkmcnt(%d)' % (0 if stamps else 3))
        o(f'v_pk_add_f32 {vr(s0,2)}, {vr(s0,2)}, {vr(R,2)}')
        o(f'v_pk_add_f32 {vr(s0,2)}, {vr(s0,2)}, {vr(R+2,2)}')
        o('s_waitcnt lgkmcnt(%d)' % (0 if stamps else 2))
        o(f'v_pk_add_f32 {vr(s0,2)}, {vr(s0,2)}, {vr(R+4,2)}')
        o(f'v_exp_f32 v{E}, v{s0}')
        o('s_waitcnt lgkmcnt(0)')
        o(f'v_pk_add_f32 {vr(R+6,2)}, {vr(R+6,2)}, {vr(R+8,2)}')
        o(f'v_exp_f32 v{E+1}, v{s1}')
        o(f'v_add_f32 v{s2}, v{R+6}, v{R+7}')
        o(f'v_exp_f32 v{E+2}, v{s2}')
        stamp(o, 10, stamps)
        dpp = lambda op, r, sh: f'{op}_dpp v{r}, v{r}, v{r} row_ror:{sh} row_mask:0xf bank_mask:0xf'
        o(f'v_add_f32 v{E+3}, v{E}, v{E+1}')
        o(f'v_fma_f32 v{E+3}, v{E+2}, 0.5, v{E+3}')
        o(f'v_max3_f32 v{V_TMP}, |v{s0}|, |v{s1}|, |v{s2}|')
        o(f'v_cmp_nge_f32 vcc, 0x42800000, v{V_TMP}')
        o(dpp('v_add_f32', E + 3, 8))
        for sh in (4, 2, 1):
            o('s_nop 1')
            o(dpp('v_add_f32', E + 3, sh))
        stamp(o, 11, stamps)
        o(f'v_rcp_f32 v{E+3}, v{E+3}')
        o(f's_cbranch_vccnz {SLOW}')
        o.label(BACK)
        o(f'v_mul_f32 v{E}, v{E}, v{E+3}')
        o(f'v_mul_f32 v{E+1}, v{E+1}, v{E+3}')
        o(f'v_mul_f32 v{E+2}, v{E+2}, v{E+3}')
        o(f'v_cvt_pk_bf16_f32 v{E}, |v{E}|, |v{E+1}|')
        o(f'v_cvt_pk_bf16_f32 v{E+2}, |v{E+2}|, |v{E+2}|')
        o(f's_cbranch_scc1 {L1}')
        o(f'buffer_store_dword v{E}, v{V_A6}, {sr(S_WS,4)}, s{S_PB} offen')
        o(f'buffer_store_short v{E+2}, v{V_A7}, {sr(S_WS,4)}, s{S_PB} offen offset:2048')
        o.label(L2)
        o(f's_add_u32 s{S_PB}, s{S_PB}, {SBS}')
    elif w == 2:
        for z in (zero4(acc(0)) + zero4(acc(1)) + zero4(acc(2)))[:CFG['trk']]:
            o(z)
            o('s_nop 3')
    stamp(o, 3, stamps)
    o('s_barrier')
    for r, v in ((S_X0, SBS), (S_X1, SBS), (S_TOUCH, WBS), (S_Z, SBS), (S_M0, SBS), (S_M1, SBS), (S_STEP, 1)):
        o(f's_add_u32 s{r}, s{r}, {v}')
    if CFG.get('steplog'):
        o(f's_memtime s[78:79]\ns_waitcnt lgkmcnt(0)\ns_mov_b32 m0, s{S_STEP}\ns_nop 0\nv_writelane_b32 v0, s78, m0')
    if CFG['diag']:
        for st, sg in ((1, 88), (24, 90)):
            Lq = o.new('Lq')
            o(f's_cmp_lg_u32 s{S_STEP}, {st}\ns_cbranch_scc1 {Lq}\ns_memrealtime s[{sg}:{sg+1}]\ns_waitcnt lgkmcnt(0)\n{Lq}:')
    o(f's_cmp_ge_u32 s{S_STEP}, {nsteps}')
    o(f's_cbranch_scc1 {exit_label}')
    trace(o, True)
    if w == 3 and not CFG['hu']:
        o(f'buffer_load_dword v{V_TMP+2}, v{V_A0}, {sr(S_WS,4)}, s{S_Z} offen')
    if w < CFG['tw']:
        LT2 = o.new('Lt')
        if CFG['flags']:
            o(f'v_cmp_ne_u32 {sr(S_FM,2)}, 0, v{V_A5}')
            o(f'v_lshrrev_b32 v{V_TMP+1}, 2, v{V_L16}')
            o(f'buffer_load_dword v{V_A5}, v{V_TMP+1}, {sr(S_WS,4)}, s{S_FA} offen sc1')
            o(f's_bitcmp1_b64 {sr(S_FM,2)}, s{S_STEP}')
            o(f's_cbranch_scc0 {LT2}')
        o(f'buffer_load_dword v{V_TMP+2}, v{V_A3}, {sr(S_WS,4)}, s{S_TOUCH} offen sc1')
        o.label(LT2)
    trace(o)
    if CFG['hu']:
        heads_up_wait(o, w, V_L4, exit_label, CFG['hgA'], None)
        pause(o, CFG['gapA'], 92)
    else:
        pause(o, CFG['gapA'] + CFG['wo%d' % w], 92)
    zs = [z for t in range(7) for z in zero4(acc(t))]
    def zz(n):
        for _ in range(n):
            if zs:
                o(zs.pop(0))
                o(f's_nop {CFG["zn"]}')
    sq = CFG['sq']
    if CFG['hu']:
        zs_pre = 28 - 3 * sq - CFG['za']
        idx = max(i for i, l in enumerate(o.lines) if 's_cbranch_scc1 ' + exit_label in l and 's_cmp_ge_u32' in o.lines[i-1])
        o.lines[idx+1:idx+1] = ['    ' + zs.pop(0) for _ in range(zs_pre)]
    else:
        zz(28 - 3 * sq - CFG['za'])
    if CFG['split']:
        ld0(o); zz(sq); ld1(o); zz(sq); ld0(o); zz(sq); ld1(o)
    else:
        mem_issue(o); zz(2 * sq); mem_issue(o); zz(sq)
    zz(28)
    o(f's_branch {LOOP}')
    for f in tail_code:
        f()
    if w < 2:
        o.label(L1)
        o(f'buffer_store_dword v{E}, v{V_A6}, {sr(S_WS,4)}, s{S_PB} offen sc1')
        o(f'buffer_store_short v{E+2}, v{V_A7}, {sr(S_WS,4)}, s{S_PB} offen offset:2048 sc1')
        o(f's_branch {L2}')
        o.label(SLOW)
        o(f'v_max3_f32 v{V_TMP}, v{s0}, v{s1}, v{s2}')
        for sh in (8, 4, 2, 1):
            o('s_nop 1')
            o(f'v_max_f32_dpp v{V_TMP}, v{V_TMP}, v{V_TMP} row_ror:{sh} row_mask:0xf bank_mask:0xf')
        for kt in range(3):
            o(f'v_sub_f32 v{s0+kt}, v{s0+kt}, v{V_TMP}')
            o(f'v_exp_f32 v{E+kt}, v{s0+kt}')
        o('s_nop 0')
        o(f'v_add_f32 v{E+3}, v{E}, v{E+1}')
        o(f'v_fma_f32 v{E+3}, v{E+2}, 0.5, v{E+3}')
        for sh in (8, 4, 2, 1):
            o('s_nop 1')
            o(dpp('v_add_f32', E + 3, sh))
        o(f'v_rcp_f32 v{E+3}, v{E+3}')
        o(f's_branch {BACK}')

def gen_B(o, w, nsteps, stamps, exit_label):
    o(f's_sub_u32 s{S_T2}, s{S_ROLE}, 16')
    o(f's_mul_i32 s{S_T3}, s{S_T2}, 28')
    o(f'''
    v_and_b32 v{V_TMP}, 15, v0                 ; n
    v_lshrrev_b32 v{V_TMP+1}, 4, v0            ; q
    ''')
    o(f's_mul_i32 s{S_T0}, s{S_T2}, {HSZ}')
    o(f's_add_u32 s{S_T0}, s{S_T0}, {OFF_BT}')
    load_weights(o, w, False)
    if VERIFY: VERIFY(o, V_ACC)
    V_KEEP, V_JUNK = V_A6, V_TMP + 2
    o(f'''
    v_lshlrev_b32 v{V_TW}, 4, v{V_TMP}
    v_lshl_add_u32 v{V_TW}, v{V_TMP+1}, 2, v{V_TW}
    v_add_u32 v{V_TW}, {L_TIMG + w*2048}, v{V_TW}
    v_mul_u32_u24 v{V_TR}, 28, v{V_TMP+1}
    v_add_u32 v{V_TR}, v{V_TR}, v{V_TMP}
    v_lshlrev_b32 v{V_TR}, 4, v{V_TR}
    v_add_u32 v{V_TR}, {L_TIMG + w*2048}, v{V_TR}
    v_lshlrev_b32 v{V_A7}, 1, v{V_TMP}
    v_add_u32 v{V_A7}, s{S_T3}, v{V_A7}
    v_lshrrev_b32 v{V_A5}, 4, v{V_A7}
    v_lshlrev_b32 v{V_A5}, 8, v{V_A5}
    v_lshl_add_u32 v{V_A5}, v{V_TMP+1}, 6, v{V_A5}
    v_bfe_u32 v{V_A6}, v{V_A7}, 3, 1
    v_lshl_add_u32 v{V_A5}, v{V_A6}, 5, v{V_A5}
    v_bfe_u32 v{V_A6}, v{V_A7}, 1, 2
    v_lshl_add_u32 v{V_A5}, v{V_A6}, 2, v{V_A5}
    v_add_u32 v{V_A5}, {16*(w&1)}, v{V_A5}
    v_mov_b32 v{V_A7}, 0x80000000
    v_cmp_gt_u32 vcc, 14, v{V_TMP}
    s_nop 1
    v_cndmask_b32 v{V_A5}, v{V_A7}, v{V_A5}, vcc
    v_cmp_gt_u32 vcc, 32, v0
    s_nop 1
    v_cndmask_b32 v{V_A2}, v{V_A7}, v{V_L16}, vcc
    v_lshlrev_b32 v{V_A3}, 3, v0               ; l*8
    v_mov_b32 v{V_A4}, 0x80008000
    v_min_u32 v{V_A0}, 13, v{V_TMP}
    v_mul_u32_u24 v{V_A1}, 14, v{V_TMP+1}
    v_add_lshl_u32 v{V_A0}, v{V_A0}, v{V_A1}, 4    ; (14q + min(n,13))*16
    s_mul_i32 s{S_T3}, s{S_T2}, {WBB}
    s_add_u32 s{S_Z}, s{S_T3}, {OFF_WB + w*7168}
    s_add_u32 s{S_Z+1}, s{S_Z}, 3584
    s_mov_b32 s{S_PB}, {OFF_PB + w*2560}
    s_mov_b32 s{S_MO}, {OFF_MEMI + SBS}
    s_mov_b32 s{S_ZP}, {OFF_MEMG + nsteps*SCS}
    s_mov_b32 s{S_MG}, {OFF_MEMG + 2048*w}
    s_cmp_eq_u32 s{S_T2}, 0
    s_cselect_b32 s{S_T0}, 0, {OOB}
    s_cmp_eq_u32 s{S_T2}, {1 if w != 3 else 99}
    s_cselect_b32 s{S_T1}, 0, {OOB}
    v_or_b32 v{V_A1}, s{S_T0}, v{V_L16}
    v_or_b32 v{V_A7}, s{S_T1}, v{V_L16}
    ''')
    o('s_waitcnt vmcnt(0)')
    for t in range(7):
        for z in zero4(acc(t)):
            o(z)
    ZM = [V_MK, V_MK + 8]
    o(f'''
    v_mov_b32 v{V_MEMF}, -1
    v_mov_b32 v{V_MEMF+1}, -1
    v_mov_b32 v{V_MEMF+2}, 0
    ds_write_b64 v{V_A3}, {vr(V_MEMF,2)} offset:{L_SP + 512*w}
    ds_write_b64 v{V_A3}, {vr(V_MEMF,2)} offset:{L_SP + 2048 + 512*w}
    v_lshrrev_b32 v{V_TMP}, 1, v{V_A3}
    ds_write_b32 v{V_TMP}, v{V_MEMF+2} offset:{L_TIMG + w*2048 + 1792}
    s_waitcnt lgkmcnt(0)
    ''')
    if CFG['hu']:
        o(f'''
        s_lshl_b32 s{S_T0}, s{S_T2}, 4
        s_add_u32 s{S_T0}, s{S_T0}, {4*w}
        v_cmp_eq_u32 vcc, 0, v0
        v_mov_b32 v{V_TMP}, s{S_T0}
        v_mov_b32 v{V_TMP+1}, {OOB}
        v_cndmask_b32 v0, v{V_TMP+1}, v{V_TMP}, vcc
        ''')
        if w == 3:
            o(f'''
            v_lshlrev_b32 v{V_A5}, 3, v{V_L16}
            v_min_u32 v{V_A5}, {22*128}, v{V_A5}
            s_mul_i32 s{S_TOUCH}, s{S_T2}, {23*128}
            s_add_u32 s{S_TOUCH}, s{S_TOUCH}, {OFF_SB + 2*SBS}
            ''')
    if CFG.get('now'):
        for r in range(32): o(zero(V_XK + r))
    for z in zero4(V_MK + 4) + zero4(V_MK + 12):
        o(z)
    if CFG['diag']: o('s_memrealtime s[70:71]\ns_memtime s[80:81]\ns_mov_b32 s76, 0')
    for _ in range(CFG['dBm']):
        mem_issue(o)
    LOOP = o.new('LB')
    o.label(LOOP)
    Wr = lambda u, ct: V_XK + 16 * u + 8 * ct
    wl = []
    for hl in range(4):
        for ct in range(2):
            wl.append(f'buffer_load_dwordx4 {vr(Wr(hl>>1,ct)+4*(hl&1),4)}, v{V_A0}, {sr(S_WS,4)}, s{S_Z+(hl>>1)} offen offset:{(hl&1)*1792+ct*896} sc1')
    if CFG.get('now'): wl = ['s_nop 0'] * 8
    pub = f'buffer_store_dword v{V_KEEP}, v{V_A5}, {sr(S_WS,4)}, s{S_ZP} offen sc1'
    early = []
    pubs = [f'buffer_store_dwordx4 {vr(memf(0),4)}, v{V_A1}, {sr(S_WS,4)}, s{S_MG} offen sc1',
            f'buffer_store_dwordx4 {vr(memf(1),4)}, v{V_A7}, {sr(S_WS,4)}, s{S_MG} offen offset:1024 sc1']
    vs = CFG['vs']
    pos = [(w if vs > 2 else 0) + vs * i for i in range(8)]
    nh = 14 - CFG['nbarB']
    f2 = {g: [x] for g, x in zip(pos, wl) if g < nh}
    if CFG['hu'] and w == 3:
        f2.setdefault(1, []).append(f'buffer_load_dword v{V_KEEP}, v{V_A5}, {sr(S_WS,4)}, s{S_TOUCH} offen')
    LFW, LFB = o.new('Lfw'), o.new('Lfb')
    def chk():
        if CFG['flags']:
            o(f's_bitcmp1_b64 {sr(S_FM,2)}, s{S_STEP}')
            o(f's_cbranch_scc0 {LFW}')
            o.label(LFB)
    poll_and_head(o, w, exit_label, [], f2, stamps, early, chk, CFG['dBm'], CFG['nbarB'])
    o('s_waitcnt lgkmcnt(0)')
    D = [memf(0), memf(1)]
    ex = {}
    ex[5] = [zero_ds(D[0])]
    ex[6] = [zero_ds(D[1])]
    if CFG['flags']:
        ex[31] = [f'v_lshrrev_b32 v{V_TMP+1}, 2, v{V_L16}', f'buffer_load_dword v{V_JUNK}, v{V_TMP+1}, {sr(S_WS,4)}, s{S_FA} offen sc1']
    for g, x in zip(pos, wl):
        if g >= nh:
            ex.setdefault(g - nh, []).append(x)
    LPB = o.new('Lpub')
    ex.setdefault(2, []).extend([f's_cmp_gt_u32 s{S_T2}, 1', f's_cbranch_scc1 {LPB}', pubs[0], pubs[1], f'{LPB}:'])
    sal = [f's_add_u32 s{S_M0}, s{S_M0}, {SBS}', f's_add_u32 s{S_M1}, s{S_M1}, {SBS}', f's_add_u32 s{S_STEP}, s{S_STEP}, 1', f's_add_u32 s{S_MG}, s{S_MG}, {SCS}', f's_add_u32 s{S_TOUCH}, s{S_TOUCH}, {SBS}']
    for i, v in enumerate(sal):
        ex.setdefault(i, []).append(v)
    main, fill = tile_phase(ex)
    if CFG.get('bslow'):
        for g in range(35):
            fill.setdefault(g, []).append(f's_nop {CFG["bslow"]}')
    if CFG.get('bskip'):
        main = ['s_nop 3'] * 35
    merge(o, main, fill)
    o('s_nop 7')
    for p in post(6):
        o(p)
    o(f'ds_read_b128 {vr(ZM[0],4)}, v{V_TR}')
    o(f'ds_read_b128 {vr(ZM[1],4)}, v{V_TR} offset:224')
    P = memf(2)
    V_NEG = memf(6)
    if w < 2 and CFG['nwB']:
        o(f'v_mov_b32 v{V_NEG}, -1\nv_mov_b32 v{V_NEG+1}, -1')
    def p_issue():
        o(f'buffer_load_dwordx4 {vr(P,4)}, v{V_L16}, {sr(S_WS,4)}, s{S_PB} offen sc1')
        o(f'buffer_load_dwordx4 {vr(P+4,4)}, v{V_L16}, {sr(S_WS,4)}, s{S_PB} offen offset:1024 sc1')
        o(f'buffer_load_dwordx4 {vr(P+8,4)}, v{V_A2}, {sr(S_WS,4)}, s{S_PB} offen offset:2048 sc1')
    o(f's_add_u32 s{S_Z}, s{S_Z}, {WBS}')
    o(f's_add_u32 s{S_Z+1}, s{S_Z+1}, {WBS}')
    o('s_waitcnt lgkmcnt(0)')
    stamp(o, 1, stamps)
    if CFG.get('steplog') == 2:
        o(f's_memtime s[78:79]\ns_waitcnt vmcnt(0)\ns_memtime s[76:77]\ns_waitcnt lgkmcnt(0)\ns_sub_u32 s78, s76, s78\ns_mov_b32 m0, s{S_STEP}\ns_nop 0\nv_writelane_b32 v0, s78, m0')
    pause(o, CFG['gapB'], 93)
    trace(o, True)
    zs = [z for t in range(7) for z in zero4(acc(t))]
    def zz(n):
        for _ in range(n):
            if zs:
                o(zs.pop(0))
                o(f's_nop {CFG["zn"]}')
    if CFG['prog']:
        pl = [f'buffer_load_dwordx4 {vr(P,4)}, v{V_L16}, {sr(S_WS,4)}, s{S_PB} offen sc1',
              f'buffer_load_dwordx4 {vr(P+4,4)}, v{V_L16}, {sr(S_WS,4)}, s{S_PB} offen offset:1024 sc1',
              f'buffer_load_dwordx4 {vr(P+8,4)}, v{V_A2}, {sr(S_WS,4)}, s{S_PB} offen offset:2048 sc1']
        if CFG['pbar']:
            o('s_barrier')
        pq = CFG['pq']
        zz(28 - 5 * pq)
        for i in range(6):
            o(pl[i % 3])
            zz(pq)
    else:
        zz(28 - CFG['spP'] - CFG['zb'])
        p_issue()
        zz(CFG['spP'])
        p_issue()
        zz(28)
    LP, OK = o.new('Lpp'), o.new('Lok')
    T0, T1 = V_TMP, V_TMP + 1
    o(f's_branch {OK}')
    o.label(LP)
    if CFG['mask']:
        o('s_mov_b64 exec, vcc')
    p_issue()
    if CFG['mask']:
        o('s_mov_b64 exec, -1')
    o(f's_sub_u32 s{S_BUD}, s{S_BUD}, 1')
    o(f's_cbranch_scc1 {exit_label}')
    Y = V_XK if not CFG.get('now') else memf(5)
    if CFG['prog']:
        o('s_nop 2')
        for z in zero4(D[0]) + zero4(D[1]):
            o(z)
        o.label(OK)
        ops = [(vr(Wr(0, 0), 8), vr(Wr(0, 1), 8)), (vr(Wr(1, 0), 8), vr(Wr(1, 1), 8)), (vr(ZM[0], 8), vr(ZM[1], 8))]
        for i in range(3):
            p = P + 4 * i
            o(f's_waitcnt vmcnt({5-i})')
            if i == 2:
                stamp(o, 2, stamps)
            if i == 0:
                o(f'v_or_b32 v{T0}, v{p}, v{p+1}')
            else:
                o(f'v_or3_b32 v{T0}, v{T0}, v{p}, v{p+1}')
            o(f'v_or3_b32 v{T0}, v{T0}, v{p+2}, v{p+3}')
            o(SM(D[0], p, ops[i][0]))
            if i == 2:
                o(f'v_and_b32 v{T0}, v{T0}, v{V_A4}')
            o(SM(D[1], p, ops[i][1]))
        o(f'v_cmp_ne_u32 vcc, 0, v{T0}')
        o(f's_cmp_eq_u32 s{S_MODE}, 1')
        o('s_nop 0')
        o(f's_cbranch_vccnz {LP}')
        stamp(o, 7, stamps)
        o(f'v_add_f32 v{Y}, v{D[0]}, v{D[0]+2}')
        o(f'v_add_f32 v{Y+2}, v{D[0]+1}, v{D[0]+3}')
        o('s_nop 1')
        o(f'v_add_f32 v{Y+1}, v{D[1]}, v{D[1]+2}')
        o(f'v_add_f32 v{Y+3}, v{D[1]+1}, v{D[1]+3}')
    else:
        sp = CFG['specB']
        if sp:
            o('s_nop 2')
            for z in zero4(D[0]):
                o(z)
        o.label(OK)
        dq = 3 * (CFG['dP'] - 1)
        o(f's_waitcnt vmcnt({dq+2})')
        o(f'v_or3_b32 v{T0}, v{P}, v{P+1}, v{P+2}')
        o(f's_waitcnt vmcnt({dq+1})')
        o(f'v_or3_b32 v{T1}, v{P+4}, v{P+5}, v{P+6}')
        o(f'v_or3_b32 v{T0}, v{T0}, v{P+3}, v{P+7}')
        if sp: o(SM(D[0], P, vr(Wr(0, 0), 8)))
        o(f's_waitcnt vmcnt({dq})')
        trace(o)
        stamp(o, 2, stamps)
        o(f'v_or3_b32 v{T1}, v{T1}, v{P+8}, v{P+9}')
        o(f'v_or3_b32 v{T0}, v{T0}, v{P+10}, v{P+11}')
        if sp: o(SM(D[0], P + 4, vr(Wr(1, 0), 8)))
        o(f'v_bitop3_b32 v{T0}, v{T0}, v{T1}, v{V_A4} bitop3:0xa8')
        o(f'v_cmp_ne_u32 vcc, 0, v{T0}')
        if sp: o(SM(D[0], P + 8, vr(ZM[0], 8)))
        o(f's_cbranch_vccnz {LP}')
        if not sp:
            o(SM(D[0], P, vr(Wr(0, 0), 8)))
            o(SM(D[0], P + 4, vr(Wr(1, 0), 8)))
            o(SM(D[0], P + 8, vr(ZM[0], 8)))
        o(SM(D[1], P, vr(Wr(0, 1), 8)))
        if CFG['hu'] and CFG['hp'] == 0:
            o(f'buffer_store_dword v{V_MK+4}, v0, {sr(S_WS,4)}, s{S_HU} offen')
        o(SM(D[1], P + 4, vr(Wr(1, 1), 8)))
        o(SM(D[1], P + 8, vr(ZM[1], 8)))
        stamp(o, 7, stamps)
        o(f'v_add_f32 v{Y}, v{D[0]}, v{D[0]+2}')
        o(f'v_add_f32 v{Y+2}, v{D[0]+1}, v{D[0]+3}')
        o(f's_cmp_eq_u32 s{S_MODE}, 1')
        if CFG['hu'] and CFG['hp'] == 1:
            o(f'buffer_store_dword v{V_MK+4}, v0, {sr(S_WS,4)}, s{S_HU} offen')
            o('s_nop 3')
        else:
            o('s_nop 4')
        o(f'v_add_f32 v{Y+1}, v{D[1]}, v{D[1]+2}')
        o(f'v_add_f32 v{Y+3}, v{D[1]+1}, v{D[1]+3}')

    if w == 0:
        o(f'ds_write_b64 v{V_A3}, {vr(Y+2,2)} offset:{L_SP + 2048}')
    elif w == 1:
        o(f'ds_write_b64 v{V_A3}, {vr(Y,2)} offset:{L_SP + 512}')
    else:
        o(f'ds_write_b64 v{V_A3}, {vr(Y,2)} offset:{L_SP + 512*w}')
        o(f'ds_write_b64 v{V_A3}, {vr(Y+2,2)} offset:{L_SP + 2048 + 512*w}')
    if not CFG['nwB']: o('s_waitcnt lgkmcnt(0)')
    stamp(o, 8, stamps)
    o('s_barrier')
    stamp(o, 9, stamps)
    L1, L2 = o.new('Ls'), o.new('Ls')
    if w < 2:
        R = Y + 4
        own = Y + 2 * w
        srcs = [x for x in range(4) if x != w]
        for i, sw in enumerate(srcs):
            o(f'ds_read_b64 {vr(R+2*i,2)}, v{V_A3} offset:{L_SP + 2048*w + 512*sw}')
        LSL, LSB = o.new('Lrs'), o.new('Lrb')
        SU = R + 6
        rds = [f'ds_read_b64 {vr(R+2*i,2)}, v{V_A3} offset:{L_SP + 2048*w + 512*sw}' for i, sw in enumerate(srcs)]
        arms = [f'ds_write_b64 v{V_A3}, {vr(V_NEG,2)} offset:{L_SP + 2048*w + 512*sw}' for sw in srcs]
        for i in range(3):
            o('s_waitcnt lgkmcnt(%d)' % (0 if stamps else 2 - i))
            o(f'v_pk_add_f32 {vr(SU,2)}, {vr(own if i == 0 else SU,2)}, {vr(R+2*i,2)}')
        if CFG['nwB']:
            o(f'v_cmp_u_f32 vcc, v{SU}, v{SU+1}')
            o(f'v_cvt_pk_bf16_f32 v{V_KEEP}, v{SU}, v{SU+1}')
            o(f's_cbranch_scc1 {L1}')
            o(f'v_cndmask_b32 v{V_KEEP}, v{V_KEEP}, v{V_NEG}, vcc')
        else:
            o(f'v_cvt_pk_bf16_f32 v{V_KEEP}, v{SU}, v{SU+1}')
            o(f'v_min_u32 v{V_KEEP}, 0xfffffffe, v{V_KEEP}')
            o(f's_cbranch_scc1 {L1}')
        o(f'buffer_store_dword v{V_KEEP}, v{V_A5}, {sr(S_WS,4)}, s{S_MO} offen')
        o.label(L2)
        if CFG['nwB']:
            o(f's_cbranch_vccnz {LSL}')
            o.label(LSB)
            for a in arms:
                o(a)
    elif not CFG['hu']:
        pause(o, 6)
    stamp(o, 3, stamps)
    LAST = o.new('Llast')
    if CFG['flags']:
        o(f'v_cmp_ne_u32 {sr(S_FM,2)}, 0, v{V_JUNK}')
    o(f's_cmp_ge_u32 s{S_STEP}, {nsteps}')
    o(f's_cbranch_scc1 {LAST}')
    o(f's_add_u32 s{S_MO}, s{S_MO}, {SBS}')
    o(f's_add_u32 s{S_PB}, s{S_PB}, {SBS}')
    if CFG['hu']:
        if w == 2:
            o(f'v_lshrrev_b32 v{V_TMP+1}, 2, v{V_L16}')
        heads_up_wait(o, w, V_TMP + 1, exit_label, 0, None)
    pause(o, CFG['gapB2'], 94)
    mem_issue(o)
    for _ in range(CFG['dBm'] - 1):
        pause(o, CFG['sp'])
        mem_issue(o)
    o(f's_branch {LOOP}')
    if w < 2:
        o.label(L1)
        if CFG['nwB']:
            o(f'v_cndmask_b32 v{V_KEEP}, v{V_KEEP}, v{V_NEG}, vcc')
        o(f'buffer_store_dword v{V_KEEP}, v{V_A5}, {sr(S_WS,4)}, s{S_MO} offen sc1')
        o(f's_branch {L2}')
        if CFG['nwB']:
            LS2 = o.new('Lr2')
            o.label(LSL)
            for r in rds:
                o(r)
            o(f's_sub_u32 s{S_BUD}, s{S_BUD}, 1')
            o(f's_cbranch_scc1 {exit_label}')
            o('s_waitcnt vmcnt(0) lgkmcnt(0)')
            o(f'v_max3_u32 v{V_TMP}, v{R}, v{R+1}, v{R+2}')
            o(f'v_max3_u32 v{V_TMP}, v{V_TMP}, v{R+3}, v{R+4}')
            o(f'v_max_u32 v{V_TMP}, v{V_TMP}, v{R+5}')
            o(f'v_cmp_eq_u32 vcc, -1, v{V_TMP}')
            o(f's_cbranch_vccnz {LSL}')
            for i in range(3):
                o(f'v_pk_add_f32 {vr(SU,2)}, {vr(own if i == 0 else SU,2)}, {vr(R+2*i,2)}')
            o(f'v_cvt_pk_bf16_f32 v{V_KEEP}, v{SU}, v{SU+1}')
            o(f'v_min_u32 v{V_KEEP}, 0xfffffffe, v{V_KEEP}')
            o(f's_cmp_eq_u32 s{S_MODE}, 1')
            o(f's_cbranch_scc1 {LS2}')
            o(f'buffer_store_dword v{V_KEEP}, v{V_A5}, {sr(S_WS,4)}, s{S_MO} offen')
            o(f's_branch {LSB}')
            o.label(LS2)
            o(f'buffer_store_dword v{V_KEEP}, v{V_A5}, {sr(S_WS,4)}, s{S_MO} offen sc1')
            o(f's_branch {LSB}')
    if CFG['flags']:
        o.label(LFW)
        flags_reload(o)
        o(f's_bitcmp1_b64 {sr(S_FM,2)}, s{S_STEP}')
        o(f's_cbranch_scc1 {LFB}')
        o(f's_sub_u32 s{S_BUD}, s{S_BUD}, 1')
        o(f's_cbranch_scc1 {exit_label}')
        o('s_sleep 2')
        o(f's_branch {LFW}')
    o.label(LAST)
    if w < 2:
        o(pub)
    o(f's_branch {exit_label}')

def team_common_setup(o, w):
    kk = [(j + 2 * w) % 7 for j in range(7)]
    o(f'''
    v_lshlrev_b32 v{V_L16}, 4, v0
    v_mov_b32 v{V_IDX}, 0x44444444
    v_mov_b32 v{V_TMP}, 0xeeeeeeee
    v_and_b32 v{V_TMP+1}, 2, v0
    v_cmp_ne_u32 vcc, 0, v{V_TMP+1}
    s_nop 1
    v_cndmask_b32 v{V_IDX}, v{V_IDX}, v{V_TMP}, vcc
    v_mov_b32 v{V_TMP}, 0
    v_lshlrev_b32 v{V_TMP+1}, 2, v0
    ds_write_b32 v{V_TMP+1}, v{V_TMP} offset:{L_ZERO + 256*w}
    s_mov_b32 s{S_STEP}, 0
    s_mov_b32 s{S_HU}, {OFF_HU}
    s_mov_b64 {sr(S_FM,2)}, 0
    s_and_b32 s{S_FA}, s{S_ROLE}, 15
    s_lshl_b32 s{S_FA}, s{S_FA}, 8
    s_add_u32 s{S_FA}, s{S_FA}, {OFF_FL}
    s_mov_b32 s{S_M0}, {OFF_MEMI + kk[0]*1024}
    s_mov_b32 s{S_M1}, {OFF_MEMI + kk[1]*1024}
    ''')

def gen_team_body(o, exit_label, nsteps=63, stamps=False):
    labs = {}
    for role in 'AB':
        for w in range(4):
            labs[role, w] = o.new(f'Lteam{role}{w}')
    LB = o.new('LteamB')
    o(f's_cmp_ge_u32 s{S_ROLE}, 16')
    o(f's_cbranch_scc1 {LB}')
    for role in 'AB':
        if role == 'B':
            o.label(LB)
        for w in range(1, 4):
            o(f's_cmp_eq_u32 s{S_W}, {w}')
            o(f's_cbranch_scc1 {labs[role,w]}')
        o(f's_branch {labs[role,0]}')
    for role in 'AB':
        for w in range(4):
            o.raw('.p2align 6')
            o.label(labs[role, w])
            team_common_setup(o, w)
            if role == 'A':
                gen_A(o, w, nsteps, stamps, exit_label)
            else:
                gen_B(o, w, nsteps, stamps, exit_label)
```
